```python
import torch

def _softmax(x, axis=-1):
    return torch.softmax(x, dim=axis)
def _gelu(x):
    return torch.nn.functional.gelu(x, approximate="tanh")
def _silu(x):
    return torch.nn.functional.silu(x)
def _sigmoid(x):
    return torch.sigmoid(x)
def _layernorm(x, axis=-1, eps=1e-5):
    m = x.mean(dim=axis, keepdim=True)
    v = x.var(dim=axis, keepdim=True, unbiased=False)
    return (x - m) / torch.sqrt(v + eps)
def _scatter_add(tgt, idx, src, axis=0):
    return tgt.clone().index_add_(axis, idx, src)
def _segment_sum(src, seg, n):
    out = torch.zeros((n,) + src.shape[1:], dtype=src.dtype)
    return out.index_add_(0, seg, src)
def _pad(x, pw):
    flat = tuple(v for pair in reversed(pw) for v in pair)
    return torch.nn.functional.pad(x, flat)

kernel_name = 'sequential_preLN__ssm_conv_s4__glu_gated_reglu__prompt'

def setup_inputs():

    _w = (lambda a: (lambda t: t.to(torch.bfloat16) if t.is_floating_point() else t)(torch.as_tensor(a)))
    def _A_setup():
        B, L, D, N = 1, 2048, 448, 256
        A_re = -(lambda _x: torch.exp(torch.as_tensor(_x)))((lambda *s: torch.randn(*s, dtype=torch.bfloat16) * 3.2)(D, N))
        A_im = torch.pi * (lambda *s: torch.randn(*s, dtype=torch.bfloat16) * 0.05)(D, N)
        B_re = (lambda *s: torch.randn(*s, dtype=torch.bfloat16) * 0.05)(D, N)
        B_im = (lambda *s: torch.randn(*s, dtype=torch.bfloat16) * 0.05)(D, N)
        C_re = (lambda *s: torch.randn(*s, dtype=torch.bfloat16) * 0.05)(D, N)
        C_im = (lambda *s: torch.randn(*s, dtype=torch.bfloat16) * 0.05)(D, N)
        log_dt = (lambda *s: torch.randn(*s, dtype=torch.bfloat16) * 0.05)(D) * 0.5 - 4.0
        Dskip = (lambda *s: torch.randn(*s, dtype=torch.bfloat16) * 0.05)(D)
        return {
            "u": _w((lambda *s: torch.randn(*s, dtype=torch.bfloat16) * 0.05)(B, L, D)),
            "A_re": _w(A_re),
            "A_im": _w(A_im),
            "B_re": _w(B_re),
            "B_im": _w(B_im),
            "C_re": _w(C_re),
            "C_im": _w(C_im),
            "log_dt": _w(log_dt),
            "Dskip": _w(Dskip),
        }
    _A_in = _A_setup()

    def _B_setup():
        B, S, D, F = 1, 2048, 448, 1792
        return {
            "x": _w((lambda *s: torch.randn(*s, dtype=torch.bfloat16) * 0.05)(B, S, D)),
            "W_gate": _w((lambda *s: torch.randn(*s, dtype=torch.bfloat16) * 0.4)(D, F) * (2.0 / D) ** 0.5),
            "W_up": _w((lambda *s: torch.randn(*s, dtype=torch.bfloat16) * 0.4)(D, F) * (2.0 / D) ** 0.5),
            "W_down": _w((lambda *s: torch.randn(*s, dtype=torch.bfloat16) * 0.4)(F, D) * (1.0 / F) ** 0.5),
        }
    _B_in = _B_setup()

    return {
        "A_u": _A_in["u"],
        "A_A_re": _A_in["A_re"],
        "A_A_im": _A_in["A_im"],
        "A_B_re": _A_in["B_re"],
        "A_B_im": _A_in["B_im"],
        "A_C_re": _A_in["C_re"],
        "A_C_im": _A_in["C_im"],
        "A_log_dt": _A_in["log_dt"],
        "A_Dskip": _A_in["Dskip"],
        "B_x": _B_in["x"],
        "B_W_gate": _B_in["W_gate"],
        "B_W_up": _B_in["W_up"],
        "B_W_down": _B_in["W_down"],
    }

def reference(A_u, A_A_re, A_A_im, A_B_re, A_B_im, A_C_re, A_C_im, A_log_dt, A_Dskip, B_x, B_W_gate, B_W_up, B_W_down):
    def _A_ref(u, A_re, A_im, B_re, B_im, C_re, C_im, log_dt, Dskip):
        Bsz, L, D = u.shape
        dt = torch.exp(log_dt)[:, None]
        A = A_re + 1j * A_im
        Bc = B_re + 1j * B_im
        Cc = C_re + 1j * C_im
        logdA = dt * A
        dB = dt * Bc
        l = (lambda x, dt: x.to(dt))(torch.arange(L), A_re.dtype)
        P = torch.exp(logdA[:, :, None] * l[None, None, :])
        K = torch.einsum("dn,dnl,dn->dl", Cc, P, dB).real
        L2 = 2 * L
        Kp = _pad(K, ((0, 0), (0, L)))
        up = (lambda x, *d: x.permute(*d))(u, 0, 2, 1)
        up = _pad(up, ((0, 0), (0, 0), (0, L)))
        Kf = (lambda x, axes=(-2,-1): torch.fft.rfft2(x.float(), dim=axes))(Kp[:, None, :], axes=(-2, -1))
        Uf = (lambda x, axes=(-2,-1): torch.fft.rfft2(x.float(), dim=axes))(up[:, :, None, :], axes=(-2, -1))
        Yf = Uf * Kf[None, :, :, :]
        y = (lambda x, s, axes=(-2,-1): torch.fft.irfft2(x, s=s, dim=axes).to(torch.bfloat16))(Yf, (1, L2), axes=(-2, -1))[:, :, 0, :L]
        y = (lambda x, *d: x.permute(*d))(y, 0, 2, 1) + u * Dskip[None, None, :]
        return y

    def _B_ref(x, W_gate, W_up, W_down):
        gate = torch.einsum("bsd,df->bsf", x, W_gate)
        up = torch.einsum("bsd,df->bsf", x, W_up)
        gate = gate * (lambda x, dt: x.to(dt))(gate > 0, gate.dtype)
        h = gate * up
        return torch.einsum("bsf,fd->bsd", h, W_down)

    x = A_u
    h = x + _A_ref(_layernorm(x, axis=-1), A_A_re, A_A_im, A_B_re, A_B_im, A_C_re, A_C_im, A_log_dt, A_Dskip)
    h2 = h + _B_ref(_layernorm(h, axis=-1), B_W_gate, B_W_up, B_W_down)
    return h2
```

```python
import sys

NAME = "sequential_preLN__ssm_conv_s4__glu_gated_reglu__prompt"
L, D, N, F = 2048, 448, 256, 1792

WS_UT = 0x0001000
WS_XT = 0x0200000
WS_RR = 0x0400000
WS_HT = 0x0600000
WS_CS = 0x0800000
WS_R2 = 0x0810000
WS_HA = 0x1000000
WS_SIZE = 0x10000000

KA = dict(x=0, A_re=8, A_im=16, B_re=24, B_im=32, C_re=40, C_im=48, log_dt=56, Dskip=64,
          B_x=72, Wg=80, Wu=88, Wd=96, out=104, dbg=112, ws=120)


class Asm:
    def __init__(self):
        self.lines = []

    def __call__(self, s, *a):
        for ln in s.strip("\n").split("\n"):
            ln = ln.strip()
            if ln:
                self.lines.append("    " + ln)

    def label(self, n):
        self.lines.append(n + ":")

    def raw(self, s):
        self.lines.append(s)

    def text(self):
        return "\n".join(self.lines) + "\n"


def v(a, n=1):
    return f"v{a}" if n == 1 else f"v[{a}:{a+n-1}]"


def s(a, n=1):
    return f"s{a}" if n == 1 else f"s[{a}:{a+n-1}]"


def cmul(A, d, x, y, t):
    A(f"v_pk_mul_f32 {v(t,2)}, {v(x,2)}, {v(y,2)} op_sel:[0,0] op_sel_hi:[1,0]")
    A(f"v_pk_fma_f32 {v(d,2)}, {v(x,2)}, {v(y,2)}, {v(t,2)} op_sel:[1,1,0] op_sel_hi:[0,1,1] neg_lo:[1,0,0]")


def srd(A, sd, sbase, off, nbytes):
    if off:
        A(f"s_add_u32 {s(sd)}, {s(sbase)}, {off:#x}")
        A(f"s_addc_u32 {s(sd+1)}, {s(sbase+1)}, 0")
    else:
        A(f"s_mov_b32 {s(sd)}, {s(sbase)}")
        A(f"s_mov_b32 {s(sd+1)}, {s(sbase+1)}")
    A(f"s_mov_b32 {s(sd+2)}, {nbytes:#x}")
    A(f"s_mov_b32 {s(sd+3)}, 0x00020000")


def kernel_begin(A, name):
    A.raw(".text")
    A.raw(f".globl {name}")
    A.raw(".p2align 8")
    A.raw(f".type {name},@function")
    A.label(name)


def kernel_desc(name, vgpr, sgpr=96, accum=None):
    if accum is None:
        accum = (vgpr + 3) // 4 * 4
    return f""".section .rodata,"a"
.p2align 6
.amdhsa_kernel {name}
  .amdhsa_next_free_vgpr {vgpr}
  .amdhsa_next_free_sgpr {sgpr}
  .amdhsa_accum_offset {accum}
  .amdhsa_group_segment_fixed_size 0
  .amdhsa_kernarg_size 128
  .amdhsa_user_sgpr_count 2
  .amdhsa_user_sgpr_kernarg_segment_ptr 1
  .amdhsa_system_sgpr_workgroup_id_x 1
.end_amdhsa_kernel
"""


K1_NKG, K1_NLN, K1_NCS = 224, 64, 56
K1_GRID = K1_NKG + K1_NLN + K1_NCS
KG_ROW = 288
KG_WREG = 64 * KG_ROW
K1_LDS = 4 * KG_WREG
LN_S = 928


def gen_kgen(A):
    A.label("K1_kgen")
    A(f"""
    s_load_dwordx16 s[4:19], s[0:1], {KA['A_re']}
    s_load_dwordx2 s[20:21], s[0:1], {KA['ws']}
    v_lshrrev_b32 v1, 6, v0
    v_and_b32 v2, 63, v0                 ; lane
    s_nop 0
    v_readfirstlane_b32 s22, v1
    s_lshl_b32 s26, s2, 2
    s_nop 2
    s_lshr_b32 s23, s22, 1               ; dsel
    s_and_b32 s24, s22, 1                ; half
    s_lshl_b32 s25, s2, 1
    s_add_u32 s25, s25, s23              ; d
    s_lshl_b32 s27, s25, 9
    s_lshl_b32 s28, s24, 8
    s_add_u32 s27, s27, s28              ; d*512 + half*256
    v_lshl_add_u32 v3, v2, 2, s27
    s_waitcnt lgkmcnt(0)
    global_load_dword v4, v3, s[4:5]
    global_load_dword v5, v3, s[6:7]
    global_load_dword v6, v3, s[8:9]
    global_load_dword v7, v3, s[10:11]
    global_load_dword v8, v3, s[12:13]
    global_load_dword v9, v3, s[14:15]
    s_load_dword s29, s[16:17], s26
    s_load_dword s30, s[18:19], s26
    """)
    A(f"""
    s_mul_i32 s31, s22, {KG_WREG}
    v_lshl_add_u32 v10, v2, 2, s31
    v_and_b32 v15, 15, v2                ; j
    v_lshrrev_b32 v16, 4, v2             ; g
    v_mul_u32_u24 v11, {KG_ROW}, v15
    v_lshl_add_u32 v11, v16, 4, v11
    v_add_u32 v11, s31, v11
    v_lshlrev_b32 v17, 4, v16
    """)
    pos = lambda l: (l & 7) * 272 + (l >> 3)
    alphas = [[0, 4, 128, 132], [512, 516, 1024, 1536], [256, 384, 2048, 2049]]
    for T in range(3):
        tab = [pos(a) for a in alphas[T]]
        lo = tab[0] | (tab[1] << 16)
        hi = tab[2] | (tab[3] << 16)
        A(f"""
        s_mov_b32 s32, {lo:#x}
        s_mov_b32 s33, {hi:#x}
        v_lshrrev_b64 v[18:19], v17, s[32:33]
        v_and_b32 v18, 0xffff, v18
        v_add_u32 v18, v18, v15
        v_lshl_add_u32 v{12+T}, v18, 2, s31
        """)
    A(f"""
    v_lshlrev_b32 v18, 3, v0
    v_sub_u32 v18, 2047, v18
    s_movk_i32 s34, 1088
    """)
    for e in range(0, 8, 2):
        A(f"""
        v_subrev_u32 v28, {e}, v18
        v_subrev_u32 v29, {e+1}, v18
        v_cvt_f32_u32 v28, v28
        v_cvt_f32_u32 v29, v29
        v_cvt_pk_bf16_f32 v30, v28, v29
        v_lshlrev_b32 v28, 16, v30
        v_and_b32 v29, 0xffff0000, v30
        v_cvt_u32_f32 v28, v28
        v_cvt_u32_f32 v29, v29
        v_and_b32 v30, 7, v28
        v_and_b32 v31, 7, v29
        v_lshrrev_b32 v28, 1, v28
        v_lshrrev_b32 v29, 1, v29
        v_and_b32 v28, -4, v28
        v_and_b32 v29, -4, v29
        v_mad_u32_u24 v{20+e}, v30, s34, v28
        v_mad_u32_u24 v{21+e}, v31, s34, v29
        """)
    A(f"""
    s_waitcnt lgkmcnt(0)
    s_lshl_b32 s35, s23, 4
    s_lshr_b32 s29, s29, s35
    s_lshl_b32 s29, s29, 16
    s_lshr_b32 s30, s30, s35
    s_lshl_b32 s30, s30, 16
    s_cmp_eq_u32 s24, 0
    s_cselect_b32 s30, s30, 0
    v_mov_b32 v28, 0x3fb8aa3b            ; log2(e)
    v_mul_f32 v28, s29, v28
    v_exp_f32 v28, v28
    v_mov_b32 v29, 0
    v_writelane_b32 v29, s30, 0
    v_cvt_pk_bf16_f32 v28, v28, v28
    v_lshlrev_b32 v28, 16, v28
    v_mov_b32 v30, 0x00003f80
    ds_write_b32 v10, v30
    """)
    ACC = 32
    for i in range(12):
        A(f"v_mov_b32 v{ACC+i}, 0")
    A("s_mov_b32 s36, 2")
    A("s_waitcnt vmcnt(0)")
    A.label("K1_kg_pass")
    AR, AI = 44, 45
    BP, CP = 46, 48
    A2, B2 = 50, 51
    T0, T1 = 52, 54
    P = {r: 56 + 2 * (r - 1) for r in range(1, 8)}
    Z8, Q1 = 70, 72
    QA, QB = 74, 76
    BA, BB = 78, 80
    X0, X1 = 82, 84
    E0, E1, E2 = 86, 88, 90
    W0, W1 = 92, 93
    FR = 96
    A(f"""
    v_lshlrev_b32 v{AR}, 16, v4
    v_lshlrev_b32 v{AI}, 16, v5
    v_lshlrev_b32 v{BP}, 16, v6
    v_lshlrev_b32 v{BP+1}, 16, v7
    v_lshlrev_b32 v{CP}, 16, v8
    v_lshlrev_b32 v{CP+1}, 16, v9
    v_mul_f32 v{A2}, v28, v{AR}
    v_mul_f32 v{B2}, v28, v{AI}
    v_mul_f32 v{A2}, 0x3fb8aa3b, v{A2}
    v_mul_f32 v{B2}, 0.15915494, v{B2}
    v_mul_f32 v{E1}, 0x41000000, v{A2}
    v_mul_f32 v{E1+1}, 0x41000000, v{B2}
    v_mul_f32 v{E2}, 0x43000000, v{A2}
    v_mul_f32 v{E2+1}, 0x43000000, v{B2}
    v_exp_f32 v{E0}, v{A2}
    v_fract_f32 v{E0+1}, v{B2}
    v_exp_f32 v{E1}, v{E1}
    v_fract_f32 v{E1+1}, v{E1+1}
    v_exp_f32 v{E2}, v{E2}
    v_fract_f32 v{E2+1}, v{E2+1}
    v_cos_f32 v{P[1]}, v{E0+1}
    v_sin_f32 v{P[1]+1}, v{E0+1}
    v_cos_f32 v{Z8}, v{E1+1}
    v_sin_f32 v{Z8+1}, v{E1+1}
    v_cos_f32 v{Q1}, v{E2+1}
    v_sin_f32 v{Q1+1}, v{E2+1}
    """)
    cmul(A, BA, CP, BP, T0)
    A(f"""
    v_pk_mul_f32 {v(P[1],2)}, {v(P[1],2)}, {v(E0,2)} op_sel_hi:[1,0]
    v_pk_mul_f32 {v(Z8,2)}, {v(Z8,2)}, {v(E1,2)} op_sel_hi:[1,0]
    v_pk_mul_f32 {v(Q1,2)}, {v(Q1,2)}, {v(E2,2)} op_sel_hi:[1,0]
    v_pk_mul_f32 {v(BA,2)}, {v(BA,2)}, v[28:29] op_sel_hi:[1,0]
    """)
    rowof = {}
    for T in range(3):
        for g in range(4):
            for r in range(4):
                beta = [r, 128 * r, 2 * r][T]
                e = alphas[T][g] + beta
                if e <= 2048:
                    rowof[e] = 16 * T + 4 * g + r
    sa, sb = [], []

    def emitA(e, reg):
        sa.append(lambda e=e, reg=reg: (A(f"v_cvt_pk_bf16_f32 v{W0}, v{reg}, v{reg+1}"),
                                          A(f"ds_write_b32 v10, v{W0} offset:{rowof[e]*KG_ROW}")))

    def mulA(d, x, y):
        sa.append(lambda d=d, x=x, y=y: cmul(A, d, x, y, T0))

    emitA(1, P[1])
    mulA(P[2], P[1], P[1]); emitA(2, P[2])
    mulA(P[3], P[2], P[1]); emitA(3, P[3])
    mulA(P[4], P[2], P[2]); emitA(4, P[4])
    mulA(P[5], P[4], P[1]); emitA(5, P[5])
    mulA(P[6], P[4], P[2]); emitA(6, P[6])
    mulA(P[7], P[4], P[3]); emitA(7, P[7])
    cur = Q1
    xs = [X0, X1]
    xi = 0
    for i in range(1, 17):
        if i > 1:
            nxt = QA if cur != QA else QB
            mulA(nxt, cur, Q1)
            cur = nxt
        emitA(128 * i, cur)
        extra = {1: range(1, 8), 2: (2, 4, 6), 3: (2, 4, 6), 4: (4,), 5: (4,), 6: (4,), 7: (4,)}.get(i, ())
        for r in extra:
            mulA(xs[xi], cur, P[r])
            emitA(128 * i + r, xs[xi])
            xi ^= 1
    curb = BA
    for j in range(16):
        if j > 0:
            nxt = BB if curb == BA else BA
            sb.append(lambda d=nxt, x=curb: cmul(A, d, x, Z8, T1))
            curb = nxt
        sb.append(lambda j=j, reg=curb: (A(f"v_cvt_pk_bf16_f32 v{W1}, v{reg}, -v{reg+1}"),
                                          A(f"ds_write_b32 v10, v{W1} offset:{(48+j)*KG_ROW}")))
    ia = ib = 0
    while ia < len(sa) or ib < len(sb):
        for _ in range(2):
            if ia < len(sa):
                sa[ia](); ia += 1
        if ib < len(sb):
            sb[ib](); ib += 1
    for r in range(4, 10):
        A(f"v_lshrrev_b32 v{r}, 16, v{r}")
    A("s_waitcnt lgkmcnt(0)")
    for ks in range(4):
        for q, T in enumerate((3, 0, 1, 2)):
            A(f"ds_read_b128 {v(FR+16*ks+4*q,4)}, v11 offset:{T*16*KG_ROW + ks*64}")
    for ks in range(4):
        A(f"s_waitcnt lgkmcnt({12-4*ks})")
        for T in range(3):
            A(f"v_mfma_f32_16x16x32_bf16 {v(ACC+4*T,4)}, {v(FR+16*ks+4+4*T,4)}, {v(FR+16*ks,4)}, {v(ACC+4*T,4)}")
    A("""
    s_sub_u32 s36, s36, 1
    s_cmp_lg_u32 s36, 0
    s_cbranch_scc1 K1_kg_pass
    s_nop 7
    """)
    A(f"v_add_f32 v{ACC}, v{ACC}, v29")
    for T in range(3):
        for r in range(4):
            beta = [r, 128 * r, 2 * r][T]
            off = 4 * (pos(beta))
            A(f"ds_write_b32 v{12+T}, v{ACC+4*T+r} offset:{off}")
    srd(A, 40, 20, WS_RR, D * 4096)
    A(f"""
    s_lshl_b32 s37, s2, 13               ; d0*4096
    v_lshlrev_b32 v3, 4, v0
    s_waitcnt lgkmcnt(0)
    s_barrier
    """)
    for ds in range(2):
        for e in range(8):
            A(f"ds_read2st64_b32 {v(FR+16*ds+2*e,2)}, v{20+e} offset0:{144*ds} offset1:{144*ds+72}")
    for ds in range(2):
        A(f"s_waitcnt lgkmcnt({8-8*ds})")
        for e in range(8):
            A(f"v_add_f32 v{FR+16*ds+2*e}, v{FR+16*ds+2*e}, v{FR+16*ds+2*e+1}")
        for q in range(4):
            A(f"v_cvt_pk_bf16_f32 v{44+4*ds+q}, v{FR+16*ds+4*q}, v{FR+16*ds+4*q+2}")
        if ds == 1:
            A("s_add_u32 s37, s37, 4096")
        A(f"buffer_store_dwordx4 {v(44+4*ds,4)}, v3, s[40:43], s37 offen")
    A("s_endpgm")


def reduce8(A, r, t):
    A(f"""
    s_nop 1
    v_add_f32_dpp v{r}, v{r}, v{r} quad_perm:[1,0,3,2] row_mask:0xf bank_mask:0xf
    s_nop 1
    v_add_f32_dpp v{r}, v{r}, v{r} quad_perm:[2,3,0,1] row_mask:0xf bank_mask:0xf
    s_nop 1
    v_add_f32_dpp v{r}, v{r}, v{r} row_half_mirror row_mask:0xf bank_mask:0xf
    """)


def gen_ln1(A):
    A.label("K1_ln1")
    X = 8
    AF = 36
    U = 92
    A(f"""
    s_load_dwordx2 s[4:5], s[0:1], {KA['x']}
    s_load_dwordx2 s[20:21], s[0:1], {KA['ws']}
    s_sub_u32 s3, s2, {K1_NKG}
    s_mul_i32 s6, s3, {32*896}
    v_lshrrev_b32 v1, 3, v0              ; row
    v_and_b32 v2, 7, v0                  ; c8
    v_mul_u32_u24 v3, 896, v1
    v_lshl_add_u32 v3, v2, 4, v3
    v_mul_u32_u24 v4, {LN_S}, v1
    v_lshl_add_u32 v4, v2, 4, v4
    s_waitcnt lgkmcnt(0)
    s_add_u32 s4, s4, s6
    s_addc_u32 s5, s5, 0
    """)
    for j in range(7):
        A(f"global_load_dwordx4 {v(X+4*j,4)}, v3, s[4:5] offset:{128*j}")
    A(f"""
    v_and_b32 v5, 63, v0                 ; lane
    v_lshrrev_b32 v6, 6, v0              ; wave
    v_lshrrev_b32 v7, 4, v5              ; g
    v_bfe_u32 v120, v5, 2, 2             ; r
    v_lshl_add_u32 v120, v7, 3, v120     ; row = 8g + r
    v_mul_u32_u24 v120, {LN_S}, v120
    v_and_b32 v121, 3, v5
    v_lshl_add_u32 v120, v121, 3, v120
    v_lshl_add_u32 v120, v6, 5, v120
    v_and_b32 v121, 15, v5
    v_lshl_add_u32 v121, v6, 4, v121     ; 16w + j
    v_lshlrev_b32 v121, 12, v121
    v_lshl_add_u32 v121, v7, 4, v121
    s_mov_b32 s7, 0x3f803f80
    v_mov_b32 v122, 0
    v_mov_b32 v123, 0
    v_mov_b32 v124, 0
    v_mov_b32 v125, 0
    """)
    srd(A, 8, 20, 0, WS_HT)
    A(f"""
    s_lshl_b32 s12, s3, 6                ; t0*2
    s_add_u32 s13, s12, {WS_UT:#x}
    s_add_u32 s12, s12, {WS_XT:#x}
    """)
    for j in range(7):
        A(f"s_waitcnt vmcnt({6-j})")
        A(f"ds_write_b128 v4, {v(X+4*j,4)} offset:{128*j}")
        for q in range(4):
            A(f"v_dot2c_f32_bf16 v{122+(q&1)}, s7, v{X+4*j+q}")
    A("s_nop 2")
    A("v_add_f32 v122, v122, v123")
    reduce8(A, 122, 123)
    A(f"""
    v_mul_f32 v122, 0x3b124925, v122
    v_cvt_pk_bf16_f32 v126, v122, v122
    v_lshlrev_b32 v126, 16, v126         ; m_bf
    v_sub_f32 v123, v122, v126
    """)
    for i in range(28):
        A(f"""
        v_lshlrev_b32 v{AF+2*i}, 16, v{X+i}
        v_and_b32 v{AF+2*i+1}, 0xffff0000, v{X+i}
        v_pk_add_f32 {v(AF+2*i,2)}, {v(AF+2*i,2)}, v[126:127] op_sel_hi:[1,0] neg_lo:[0,1] neg_hi:[0,1]
        v_pk_fma_f32 v[124:125], {v(AF+2*i,2)}, {v(AF+2*i,2)}, v[124:125]
        v_cvt_pk_bf16_f32 v{U+i}, v{AF+2*i}, v{AF+2*i+1}
        """)
    A("v_add_f32 v124, v124, v125")
    reduce8(A, 124, 125)
    A(f"""
    v_mul_f32 v124, 0x3b124925, v124
    v_fma_f32 v124, -v123, v123, v124    ; var
    v_max_f32 v124, 0, v124
    v_cvt_pk_bf16_f32 v124, v124, v124
    v_lshlrev_b32 v124, 16, v124
    v_add_f32 v124, 0x3727c5ac, v124     ; + 1e-5
    v_cvt_pk_bf16_f32 v124, v124, v124
    v_lshlrev_b32 v124, 16, v124
    v_sqrt_f32 v124, v124
    s_nop 0
    v_cvt_pk_bf16_f32 v124, v124, v124
    v_lshlrev_b32 v124, 16, v124
    v_rcp_f32 v126, v124
    s_nop 0
    """)
    for i in range(28):
        A(f"""
        v_lshlrev_b32 v{AF+2*i}, 16, v{U+i}
        v_and_b32 v{AF+2*i+1}, 0xffff0000, v{U+i}
        v_pk_mul_f32 {v(AF+2*i,2)}, {v(AF+2*i,2)}, v[126:127] op_sel_hi:[1,0]
        v_cvt_pk_bf16_f32 v{U+i}, v{AF+2*i}, v{AF+2*i+1}
        """)
        if i % 4 == 3:
            j = i // 4
            A(f"ds_write_b128 v4, {v(U+4*j,4)} offset:{128*j + 32*LN_S}")
    A("""
    s_waitcnt lgkmcnt(0)
    s_barrier
    """)
    TB = 8
    for arr in (1, 0):
        for k in range(7):
            b = TB + 4 * (7 * arr + k)
            A(f"ds_read_b64_tr_b16 {v(b,2)}, v120 offset:{128*k + arr*32*LN_S}")
            A(f"ds_read_b64_tr_b16 {v(b+2,2)}, v120 offset:{128*k + arr*32*LN_S + 4*LN_S}")
        for k in range(7):
            b = TB + 4 * (7 * arr + k)
            A(f"s_waitcnt lgkmcnt({12-2*k})")
            A(f"buffer_store_dwordx4 {v(b,4)}, v121, s[8:11], s{12+arr} offen")
            if k < 6:
                A(f"s_add_u32 s{12+arr}, s{12+arr}, {64*4096:#x}")
    A("s_endpgm")


def gen_colsum(A):
    A.label("K1_colsum")
    X = 8
    S = 64
    A(f"""
    s_sub_u32 s3, s2, {K1_NKG+K1_NLN}      ; 0..55
    s_load_dwordx4 s[16:19], s[0:1], {KA['Wg']}
    s_load_dwordx2 s[20:21], s[0:1], {KA['ws']}
    s_cmp_ge_u32 s3, 28
    s_cselect_b32 s7, 28, 0
    s_sub_u32 s7, s3, s7
    s_lshl_b32 s7, s7, 7
    v_lshrrev_b32 v1, 3, v0              ; r32
    v_and_b32 v2, 7, v0
    v_mul_u32_u24 v3, 3584, v1
    v_lshl_add_u32 v3, v2, 4, v3
    v_add_u32 v3, s7, v3
    s_waitcnt lgkmcnt(0)
    s_cmp_ge_u32 s3, 28
    s_cselect_b32 s4, s18, s16
    s_cselect_b32 s5, s19, s17
    """)
    srd(A, 8, 4, 0, D * F * 2)
    A("s_mov_b32 s12, 0")
    for j in range(14):
        A(f"buffer_load_dwordx4 {v(X+4*j,4)}, v3, s[8:11], s12 offen")
        if j < 13:
            A(f"s_add_u32 s12, s12, {32*3584:#x}")
    for i in range(8):
        A(f"v_mov_b32 v{S+i}, 0")
    for j in range(14):
        A(f"s_waitcnt vmcnt({13-j})")
        for q in range(4):
            A(f"""
            v_lshlrev_b32 v72, 16, v{X+4*j+q}
            v_and_b32 v73, 0xffff0000, v{X+4*j+q}
            v_pk_add_f32 {v(S+2*q,2)}, {v(S+2*q,2)}, v[72:73]
            """)
    A(f"""
    v_mul_u32_u24 v4, 272, v1
    v_lshl_add_u32 v4, v2, 5, v4
    ds_write_b128 v4, {v(S,4)}
    ds_write_b128 v4, {v(S+4,4)} offset:16
    s_waitcnt lgkmcnt(0)
    s_barrier
    v_and_b32 v5, 63, v0
    v_lshrrev_b32 v6, 6, v0
    v_mul_u32_u24 v7, {8*272}, v6
    v_lshl_add_u32 v7, v5, 2, v7
    """)
    for i in range(8):
        A(f"ds_read_b32 v{X+i}, v7 offset:{272*i}")
    A("s_waitcnt lgkmcnt(0)")
    for i in range(1, 8):
        A(f"v_add_f32 v{X}, v{X}, v{X+i}")
    A(f"""
    v_lshlrev_b32 v7, 2, v0
    ds_write_b32 v7, v{X} offset:{32*272}
    s_waitcnt lgkmcnt(0)
    s_barrier
    v_lshlrev_b32 v7, 2, v5
    ds_read_b32 v{X}, v7 offset:{32*272}
    ds_read_b32 v{X+1}, v7 offset:{32*272+256}
    ds_read_b32 v{X+2}, v7 offset:{32*272+512}
    ds_read_b32 v{X+3}, v7 offset:{32*272+768}
    """)
    srd(A, 8, 20, WS_CS, 2 * F * 4)
    A(f"""
    s_lshl_b32 s12, s3, 8
    s_waitcnt lgkmcnt(0)
    v_add_f32 v{X}, v{X}, v{X+1}
    v_add_f32 v{X+2}, v{X+2}, v{X+3}
    v_add_f32 v{X}, v{X}, v{X+2}
    buffer_store_dword v{X}, v7, s[8:11], s12 offen
    s_endpgm
    """)


def gen_k1(A):
    kernel_begin(A, "k1_kernel")
    A(f"""
    s_cmp_ge_u32 s2, {K1_GRID}
    s_cbranch_scc1 K1_exit
    s_cmp_ge_u32 s2, {K1_NKG+K1_NLN}
    s_cbranch_scc1 K1_colsum
    s_cmp_ge_u32 s2, {K1_NKG}
    s_cbranch_scc1 K1_ln1
    """)
    gen_kgen(A)
    gen_ln1(A)
    gen_colsum(A)
    A.label("K1_exit")
    A("s_endpgm")
    return kernel_desc("k1_kernel", 160)


CV_KS = 4160
CV_US = 4576
CV_UOFF = 4 * CV_KS
CV_D = CV_UOFF + 2 * CV_US
K2_LDS = 2 * CV_D + 64
K2_GRID = 224


def gen_k2(A):
    kernel_begin(A, "k2_kernel")
    A(f"""
    s_cmp_ge_u32 s2, {K2_GRID}
    s_cbranch_scc1 K2_exit
    s_load_dwordx2 s[20:21], s[0:1], {KA['ws']}
    v_lshrrev_b32 v1, 6, v0
    v_and_b32 v2, 63, v0                 ; lane
    s_nop 0
    v_readfirstlane_b32 s22, v1          ; wave
    v_lshlrev_b32 v3, 4, v2              ; lane*16
    s_nop 2
    s_lshr_b32 s23, s22, 1               ; dsel
    s_and_b32 s24, s22, 1                ; role
    s_lshl_b32 s25, s2, 1
    s_add_u32 s25, s25, s23              ; d
    s_lshl_b32 s26, s25, 12              ; d*4096
    s_mul_i32 s27, s23, {CV_D}
    s_add_u32 s27, s27, 64
    s_waitcnt lgkmcnt(0)
    s_add_u32 s4, s20, s26
    s_addc_u32 s5, s21, 0
    s_add_u32 s4, s4, {WS_RR:#x}
    s_addc_u32 s5, s5, 0
    s_mov_b32 s6, 4096
    s_mov_b32 s7, 0x00020000
    """)
    srd(A, 8, 20, 0, WS_CS)
    A(f"""
    s_lshl_b32 s28, s24, 3
    s_mul_i32 s29, s24, {2*CV_KS}
    s_add_u32 s29, s29, s27
    s_mul_i32 s30, s24, {CV_US}
    s_add_u32 s30, s30, s27
    s_add_u32 s30, s30, {CV_UOFF+448}
    s_lshl_b32 s31, s24, 1
    s_sub_u32 s31, s26, s31
    s_add_u32 s31, s31, {WS_UT:#x}
    s_mov_b32 m0, s30
    s_nop 0
    """)
    for i in range(4):
        A(f"buffer_load_dwordx4 v3, s[8:11], s31 offen offset:{1024*i} lds")
    A("s_mov_b32 m0, s29")
    A("s_nop 0")
    for i in range(4):
        A(f"buffer_load_dwordx4 v3, s[4:7], s28 offen offset:{1024*i} lds")
    A(f"""
    s_add_u32 m0, s29, {CV_KS}
    s_add_u32 s28, s28, 4
    """)
    for i in range(4):
        A(f"buffer_load_dwordx4 v3, s[4:7], s28 offen offset:{1024*i} lds")
    A(f"""
    v_and_b32 v4, 15, v2                 ; i (or n)
    v_lshrrev_b32 v5, 4, v2              ; g
    v_lshlrev_b32 v6, 7, v5
    v_lshl_add_u32 v6, v4, 2, v6         ; 128g + 4i
    s_add_u32 s32, s26, {WS_XT:#x}
    s_add_u32 s33, s26, {WS_HT:#x}
    v_mov_b32 v8, 0
    v_mov_b32 v9, 0
    v_mov_b32 v10, 0
    v_mov_b32 v11, 0
    s_cmp_eq_u32 s24, 0
    s_cbranch_scc0 K2_roleB
    """)
    XR = 12
    ACC = 20
    FP = 40
    for role, tiles in ((0, (7, 6, 1, 0)), (1, (5, 4, 3, 2))):
        if role == 1:
            A.label("K2_roleB")
        nf = max(tiles) + 1
        for q, c in enumerate(tiles):
            A(f"buffer_load_dword v{XR+2*q}, v6, s[8:11], s32 offen offset:{512*c}")
            A(f"buffer_load_dword v{XR+2*q+1}, v6, s[8:11], s32 offen offset:{512*c+64}")
        if role == 0:
            A(f"""
            v_cmp_lt_u32 vcc, 27, v2
            v_mov_b32 v7, {CV_US - 448}
            s_nop 0
            v_cndmask_b32 v7, 0, v7, vcc
            v_add_u32 v7, v7, v3
            v_add_u32 v7, s27, v7
            v_cmp_gt_u32 vcc, 56, v2
            s_and_saveexec_b64 s[34:35], vcc
            ds_write_b128 v7, v[8:11] offset:{CV_UOFF}
            s_mov_b64 exec, s[34:35]
            """)
        else:
            A(f"""
            v_lshrrev_b32 v7, 2, v2
            v_mul_u32_u24 v7, {CV_KS}, v7
            v_and_b32 v36, 3, v2
            v_lshl_add_u32 v7, v36, 4, v7
            v_add_u32 v7, s27, v7
            v_cmp_gt_u32 vcc, 16, v2
            s_and_saveexec_b64 s[34:35], vcc
            ds_write_b128 v7, v[8:11] offset:4096
            s_mov_b64 exec, s[34:35]
            """)
        A(f"""
        v_and_b32 v36, 3, v4
        v_sub_u32 v36, 3, v36
        v_mul_u32_u24 v36, {CV_KS}, v36
        v_lshrrev_b32 v37, 2, v4
        v_sub_u32 v37, v5, v37
        v_lshl_add_u32 v36, v37, 4, v36
        v_add_u32 v36, {4080 - 512*7}, v36
        v_add_u32 v36, s27, v36              ; v36 = F addr
        v_and_b32 v37, 1, v4
        v_sub_u32 v37, 1, v37
        v_mul_u32_u24 v37, {CV_US}, v37
        v_lshrrev_b32 v38, 1, v4
        v_lshl_add_u32 v37, v38, 6, v37
        v_lshl_add_u32 v37, v5, 4, v37
        v_add_u32 v37, {CV_UOFF + 448}, v37
        v_add_u32 v37, s27, v37              ; v37 = G addr
        s_waitcnt vmcnt(0)
        """)
        if role == 1:
            A(f"""
            v_mov_b32 v7, s30
            ds_write_b16 v7, v8
            """)
        for q in range(4):
            A(f"""
            v_lshlrev_b32 v{ACC+4*q}, 16, v{XR+2*q}
            v_and_b32 v{ACC+4*q+1}, 0xffff0000, v{XR+2*q}
            v_lshlrev_b32 v{ACC+4*q+2}, 16, v{XR+2*q+1}
            v_and_b32 v{ACC+4*q+3}, 0xffff0000, v{XR+2*q+1}
            """)
        A("""
        s_waitcnt lgkmcnt(0)
        s_barrier
        """)

        def reads(base):
            out = []
            for a in range(nf):
                out.append(f"ds_read_b128 {v(base+4*a,4)}, v36 offset:{512*(7-a)}")
                out.append(f"ds_read_b128 {v(base+32+4*a,4)}, v37 offset:{512*a}")
            return out

        def mfmas(base):
            out = []
            pairs = [(a, c - a, q) for q, c in enumerate(tiles) for a in range(c + 1)]
            pairs.sort(key=lambda p: (max(p[0], p[1]), p[2]))
            for a, b, q in pairs:
                out.append(f"v_mfma_f32_16x16x32_bf16 {v(ACC+4*q,4)}, {v(base+32+4*b,4)}, {v(base+4*a,4)}, {v(ACC+4*q,4)}")
            return out

        def step(cur, nxt):
            A("v_subrev_u32 v36, 64, v36")
            A("v_subrev_u32 v37, 64, v37")
            rs = reads(nxt)
            ms = mfmas(cur)
            i = 0
            for m in ms:
                A(m)
                if i < len(rs):
                    A(rs[i]); i += 1
            while i < len(rs):
                A(rs[i]); i += 1
            A("s_waitcnt lgkmcnt(0)")

        for r_ in reads(FP):
            A(r_)
        A("s_mov_b32 s36, 4")
        A("s_waitcnt lgkmcnt(0)")
        A.label(f"K2_loop{role}")
        step(FP, FP + 64)
        step(FP + 64, FP)
        A(f"""
        s_sub_u32 s36, s36, 1
        s_cmp_lg_u32 s36, 0
        s_cbranch_scc1 K2_loop{role}
        s_nop 7
        """)
        for q, c in enumerate(tiles):
            A(f"""
            v_cvt_pk_bf16_f32 v{XR+2*q}, v{ACC+4*q}, v{ACC+4*q+1}
            v_cvt_pk_bf16_f32 v{XR+2*q+1}, v{ACC+4*q+2}, v{ACC+4*q+3}
            buffer_store_dword v{XR+2*q}, v6, s[8:11], s33 offen offset:{512*c}
            buffer_store_dword v{XR+2*q+1}, v6, s[8:11], s33 offen offset:{512*c+64}
            """)
        A("s_endpgm")
    A.label("K2_exit")
    A("s_endpgm")
    return kernel_desc("k2_kernel", FP + 128)


G1_W = 32 * 224
G1_STAGE = 2 * G1_W + 8192
G1_SLOTS = 7
G1_STATS = G1_SLOTS * G1_STAGE
K3_LDS = G1_STATS + 4096
K3_GRID = 256


def gen_k3(A):
    kernel_begin(A, "k3_kernel")
    A(f"""
    s_cmp_ge_u32 s2, {K3_GRID}
    s_cbranch_scc1 K3_exit
    s_load_dwordx4 s[16:19], s[0:1], {KA['Wg']}
    s_load_dwordx2 s[20:21], s[0:1], {KA['ws']}
    v_lshrrev_b32 v1, 6, v0
    v_and_b32 v2, 63, v0                 ; lane
    s_and_b32 s24, s2, 7
    v_readfirstlane_b32 s22, v1          ; wave
    s_lshl_b32 s24, s24, 1
    s_bfe_u32 s25, s2, 0x10003
    s_add_u32 s24, s24, s25              ; tblk 0..15
    s_lshr_b32 s25, s2, 4                ; fchunk 0..15
    ; W: lane<56: row = 4w + lane/14, c = lane%14
    v_mul_u32_u24 v3, 0x124a, v2         ; lane*4682
    v_lshrrev_b32 v3, 16, v3             ; lane/14
    v_mul_u32_u24 v4, 14, v3
    v_sub_u32 v4, v2, v4                 ; lane%14
    v_lshl_add_u32 v3, v1, 2, v3         ; row
    v_mul_u32_u24 v3, 3584, v3
    v_lshl_add_u32 v3, v4, 4, v3
    s_mul_i32 s26, s25, 224
    v_add_u32 v3, s26, v3
    v_lshrrev_b32 v5, 4, v2              ; g
    v_lshl_add_u32 v4, v1, 2, v5         ; row
    v_and_b32 v6, 7, v4
    v_lshlrev_b32 v6, 1, v6
    v_and_b32 v7, 15, v2
    v_xor_b32 v6, v6, v7
    v_lshlrev_b32 v4, 12, v4
    v_lshl_add_u32 v4, v6, 4, v4
    s_lshl_b32 s26, s24, 8               ; t0*2
    v_add_u32 v4, s26, v4
    s_waitcnt lgkmcnt(0)
    """)
    srd(A, 4, 16, 0, D * F * 2)
    srd(A, 8, 18, 0, D * F * 2)
    srd(A, 12, 20, WS_HT, D * 4096)
    A(f"""
    s_mul_i32 s27, s22, 896
    s_lshl_b32 s28, s22, 10
    s_add_u32 s28, s28, {2*G1_W}
    s_mov_b32 s29, 0                     ; W soffset (k0*3584)
    s_mov_b32 s30, 0                     ; h soffset (k0*4096)
    s_mov_b32 s31, 0
    s_mov_b32 s34, -1
    s_mov_b32 s35, 0x00ffffff
    """)

    def dma(A):
        A(f"""
        s_add_u32 m0, s31, s28
        s_add_u32 s32, s31, s27
        buffer_load_dwordx4 v4, s[12:15], s30 offen lds
        s_mov_b64 exec, s[34:35]
        s_mov_b32 m0, s32
        s_add_u32 s32, s32, {G1_W}
        buffer_load_dwordx4 v3, s[4:7], s29 offen lds
        s_mov_b32 m0, s32
        s_add_u32 s30, s30, {32*4096:#x}
        buffer_load_dwordx4 v3, s[8:11], s29 offen lds
        s_mov_b64 exec, -1
        s_add_u32 s29, s29, {32*3584:#x}
        s_add_u32 s31, s31, {G1_STAGE}
        s_cmp_eq_u32 s31, {G1_SLOTS*G1_STAGE}
        s_cselect_b32 s31, 0, s31
        """)

    A("s_mov_b32 s36, 7")
    A.label("K3_pro")
    dma(A)
    A(f"""
    s_sub_u32 s36, s36, 1
    s_cmp_lg_u32 s36, 0
    s_cbranch_scc1 K3_pro
    """)
    A(f"""
    v_lshrrev_b32 v6, 2, v2              ; k = 4g + r = lane>>2
    v_and_b32 v7, 3, v2                  ; c
    v_mul_u32_u24 v8, 224, v6
    v_lshl_add_u32 v8, v7, 3, v8
    s_lshr_b32 s23, s22, 2               ; fhalf
    s_lshl_b32 s26, s23, 7
    v_add_u32 v8, s26, v8
    s_and_b32 s26, s22, 3
    s_lshl_b32 s26, s26, 1               ; tp0
    v_and_b32 v9, 7, v6
    v_xor_b32 v9, s26, v9                ; tp0 ^ (k&7)
    v_xor_b32 v10, 1, v9                 ; tp1 ^ (k&7)
    v_lshlrev_b32 v11, 8, v6
    v_lshl_add_u32 v11, v7, 3, v11
    v_add_u32 v11, {2*G1_W}, v11
    v_lshl_add_u32 v9, v9, 5, v11
    v_lshl_add_u32 v10, v10, 5, v11
    s_mov_b32 s33, 0
    s_mov_b32 s37, 0x3f803f80
    s_cmp_eq_u32 s23, 0
    s_cbranch_scc0 K3_pathB
    """)
    ACC = 32
    FP = 96
    ST = 16
    CS = 176
    for path, nft in ((0, 4), (1, 3)):
        if path == 1:
            A.label("K3_pathB")
        for i in range(16 * nft):
            A(f"v_mov_b32 v{ACC+i}, 0")
        if path == 1:
            for i in range(4):
                A(f"v_mov_b32 v{ST+i}, 0")

        def acc(ft, m, tt):
            return ACC + 4 * ((ft * 2 + m) * 2 + tt)

        def reads(base):
            out = []
            for tt in range(2):
                for j in range(2):
                    out.append(f"ds_read_b64_tr_b16 {v(base+4*tt+2*j,2)}, v{13+tt} offset:{j*16*256}")
            for ft in range(nft):
                for m in range(2):
                    for j in range(2):
                        out.append(f"ds_read_b64_tr_b16 {v(base+8+4*(ft*2+m)+2*j,2)}, v12 offset:{m*G1_W + ft*32 + j*16*224}")
            return out

        def addr_setup():
            A(f"""
            v_add_u32 v12, s33, v8
            v_add_u32 v13, s33, v9
            v_add_u32 v14, s33, v10
            s_add_u32 s33, s33, {G1_STAGE}
            s_cmp_eq_u32 s33, {G1_SLOTS*G1_STAGE}
            s_cselect_b32 s33, 0, s33
            """)

        def step(cur, nxt):
            A("s_waitcnt vmcnt(15)")
            A("s_barrier")
            dma(A)
            addr_setup()
            rs = reads(nxt)
            ms = []
            for ft in range(nft):
                for m in range(2):
                    for tt in range(2):
                        ms.append(f"v_mfma_f32_16x16x32_bf16 {v(acc(ft,m,tt),4)}, {v(cur+8+4*(ft*2+m),4)}, {v(cur+4*tt,4)}, {v(acc(ft,m,tt),4)}")
            extra = []
            if path == 1:
                for tt in range(2):
                    for q in range(4):
                        extra.append(f"v_dot2c_f32_bf16 v{ST+tt}, s37, v{cur+4*tt+q}")
                        extra.append(f"v_dot2c_f32_bf16 v{ST+2+tt}, v{cur+4*tt+q}, v{cur+4*tt+q}")
            i = e = 0
            for k, m in enumerate(ms):
                A(m)
                for _ in range(2):
                    if i < len(rs):
                        A(rs[i]); i += 1
                if i >= len(rs):
                    for _ in range(4):
                        if e < len(extra):
                            A(extra[e]); e += 1
            while e < len(extra):
                A(extra[e]); e += 1
            A("s_waitcnt lgkmcnt(0)")

        A("s_waitcnt vmcnt(18)")
        A("s_barrier")
        addr_setup()
        for r_ in reads(FP):
            A(r_)
        A("s_mov_b32 s36, 7")
        A("s_waitcnt lgkmcnt(0)")
        A.label(f"K3_loop{path}")
        step(FP, FP + 40)
        step(FP + 40, FP)
        A(f"""
        s_sub_u32 s36, s36, 1
        s_cmp_lg_u32 s36, 0
        s_cbranch_scc1 K3_loop{path}
        """)
        srd(A, 4, 20, WS_CS, 2 * F * 4)
        A(f"""
        s_mul_i32 s26, s25, 448
        s_lshl_b32 s29, s23, 8
        s_add_u32 s26, s26, s29              ; (f0 + 64*fhalf)*4
        v_lshlrev_b32 v6, 4, v5
        s_add_u32 s29, s26, {F*4}
        """)
        for ft in range(nft):
            A(f"buffer_load_dwordx4 {v(CS+8*ft,4)}, v6, s[4:7], s26 offen offset:{64*ft}")
            A(f"buffer_load_dwordx4 {v(CS+8*ft+4,4)}, v6, s[4:7], s29 offen offset:{64*ft}")
        A(f"""
        s_and_b32 s30, s22, 3
        s_lshl_b32 s30, s30, 9               ; (w&3)*32 t * 16 B
        v_and_b32 v7, 15, v2
        v_lshlrev_b32 v7, 4, v7
        v_add_u32 v7, s30, v7
        v_add_u32 v7, {G1_STATS}, v7
        """)
        if path == 1:
            A(f"""
            v_lshl_add_u32 v11, v5, 2, v7
            ds_write_b32 v11, v{ST}
            ds_write_b32 v11, v{ST+1} offset:256
            ds_write_b32 v11, v{ST+2} offset:2048
            ds_write_b32 v11, v{ST+3} offset:2304
            s_waitcnt lgkmcnt(0)
            """)
        A(f"""
        s_barrier
        ds_read_b128 v[16:19], v7
        ds_read_b128 v[20:23], v7 offset:256
        """)
        if path == 1:
            A(f"""
            ds_read_b128 v[24:27], v7 offset:2048
            ds_read_b128 v[28:31], v7 offset:2304
            """)
        A(f"""
        s_waitcnt lgkmcnt(0)
        v_add_f32 v16, v16, v17
        v_add_f32 v18, v18, v19
        v_add_f32 v20, v20, v21
        v_add_f32 v22, v22, v23
        v_add_f32 v16, v16, v18
        v_add_f32 v20, v20, v22
        v_mul_f32 v16, 0x3b124925, v16       ; mean t0
        v_mul_f32 v20, 0x3b124925, v20       ; mean t1
        v_cvt_pk_bf16_f32 v17, v16, v20
        v_lshlrev_b32 v18, 16, v17
        v_and_b32 v22, 0xffff0000, v17
        """)
        if path == 1:
            A(f"""
            s_cmp_lg_u32 s25, 0
            s_cbranch_scc1 K3_nor2
            v_add_f32 v24, v24, v25
            v_add_f32 v26, v26, v27
            v_add_f32 v28, v28, v29
            v_add_f32 v30, v30, v31
            v_add_f32 v24, v24, v26
            v_add_f32 v28, v28, v30
            v_mul_f32 v24, 0x3b124925, v24
            v_mul_f32 v28, 0x3b124925, v28
            v_fma_f32 v24, -v16, v16, v24
            v_fma_f32 v28, -v20, v20, v28
            v_max_f32 v24, 0, v24
            v_max_f32 v28, 0, v28
            v_cvt_pk_bf16_f32 v25, v24, v28
            v_lshlrev_b32 v24, 16, v25
            v_and_b32 v28, 0xffff0000, v25
            v_add_f32 v24, 0x3727c5ac, v24
            v_add_f32 v28, 0x3727c5ac, v28
            v_cvt_pk_bf16_f32 v25, v24, v28
            v_lshlrev_b32 v24, 16, v25
            v_and_b32 v28, 0xffff0000, v25
            v_sqrt_f32 v24, v24
            v_sqrt_f32 v28, v28
            s_nop 0
            v_cvt_pk_bf16_f32 v25, v24, v28
            v_lshlrev_b32 v24, 16, v25
            v_and_b32 v28, 0xffff0000, v25
            v_mul_f32 v24, v24, v24
            v_mul_f32 v28, v28, v28
            v_rcp_f32 v24, v24
            v_rcp_f32 v28, v28
            """)
            srd(A, 8, 20, WS_R2, L * 4)
            A(f"""
            s_lshl_b32 s26, s24, 9               ; tblk*128*4
            s_and_b32 s29, s22, 3
            s_lshl_b32 s29, s29, 7
            s_add_u32 s26, s26, s29
            v_and_b32 v11, 15, v2
            v_lshlrev_b32 v11, 2, v11
            buffer_store_dword v24, v11, s[8:11], s26 offen
            buffer_store_dword v28, v11, s[8:11], s26 offen offset:64
            """)
            A.label("K3_nor2")
        srd(A, 12, 20, WS_HA, L * F * 2)
        A(f"""
        s_lshl_b32 s26, s24, 3
        s_and_b32 s29, s22, 3
        s_lshl_b32 s29, s29, 1
        s_add_u32 s26, s26, s29              ; ttile0
        s_mul_i32 s26, s26, 57344
        s_mul_i32 s29, s25, 7
        s_lshl_b32 s30, s23, 2
        s_add_u32 s29, s29, s30              ; FT0
        v_lshlrev_b32 v6, 4, v2
        s_waitcnt vmcnt(0)
        """)
        for ft in range(nft):
            A(f"""
            s_add_u32 s30, s29, {ft}
            s_lshr_b32 s31, s30, 1
            s_lshl_b32 s31, s31, 10
            s_and_b32 s30, s30, 1
            s_lshl_b32 s30, s30, 3
            s_add_u32 s30, s30, s31
            s_add_u32 s30, s30, s26
            s_add_u32 s31, s30, 57344
            """)
            for tt in range(2):
                g_, u_ = acc(ft, 0, tt), acc(ft, 1, tt)
                mreg = 18 + 4 * tt
                o = FP + 2 * (ft * 2 + tt)
                for h in range(2):
                    A(f"v_pk_fma_f32 {v(g_+2*h,2)}, {v(CS+8*ft+2*h,2)}, {v(mreg,2)}, {v(g_+2*h,2)} op_sel_hi:[1,0,1] neg_lo:[0,1,0] neg_hi:[0,1,0]")
                    A(f"v_pk_fma_f32 {v(u_+2*h,2)}, {v(CS+8*ft+4+2*h,2)}, {v(mreg,2)}, {v(u_+2*h,2)} op_sel_hi:[1,0,1] neg_lo:[0,1,0] neg_hi:[0,1,0]")
                for q in range(4):
                    A(f"v_max_f32 v{g_+q}, 0, v{g_+q}")
                for h in range(2):
                    A(f"v_pk_mul_f32 {v(g_+2*h,2)}, {v(g_+2*h,2)}, {v(u_+2*h,2)}")
                for h in range(2):
                    A(f"v_cvt_pk_bf16_f32 v{o+h}, v{g_+2*h}, v{g_+2*h+1}")
                A(f"buffer_store_dwordx2 {v(o,2)}, v6, s[12:15], s{30+tt} offen")
        A("s_endpgm")
    A.label("K3_exit")
    A("s_endpgm")
    return kernel_desc("k3_kernel", 208)


G2_STAGE = 16384
G2_SLOTS = 9
G2_EXTRA = G2_SLOTS * G2_STAGE
K4_LDS = G2_EXTRA + 16384
K4_GRID = 224


def gen_k4(A):
    kernel_begin(A, "k4_kernel")
    A(f"""
    s_cmp_ge_u32 s2, {K4_GRID}
    s_cbranch_scc1 K4_exit
    s_load_dwordx4 s[16:19], s[0:1], {KA['Wd']}
    s_load_dwordx2 s[20:21], s[0:1], {KA['ws']}
    v_lshrrev_b32 v1, 6, v0
    v_and_b32 v2, 63, v0                 ; lane
    s_and_b32 s24, s2, 7
    v_readfirstlane_b32 s22, v1          ; wave
    s_lshl_b32 s24, s24, 2
    s_bfe_u32 s25, s2, 0x20003
    s_add_u32 s24, s24, s25              ; tblk 0..31
    s_lshr_b32 s25, s2, 5                ; dblk 0..6
    v_lshrrev_b32 v3, 3, v2
    v_and_b32 v4, 6, v3                  ; ((row>>1)&3)<<1
    v_and_b32 v5, 7, v2
    v_xor_b32 v4, v4, v5
    v_lshl_add_u32 v3, v1, 3, v3         ; row
    v_mul_u32_u24 v6, 896, v3
    v_lshl_add_u32 v6, v4, 4, v6
    s_lshl_b32 s26, s25, 7
    v_add_u32 v6, s26, v6
    v_lshlrev_b32 v7, 12, v3
    v_lshl_add_u32 v7, v4, 4, v7         ; v7
    v_lshlrev_b32 v8, 4, v2
    s_waitcnt lgkmcnt(0)
    """)
    srd(A, 4, 16, 0, D * F * 2)
    srd(A, 12, 20, WS_HT, D * 4096)
    A(f"""
    s_and_b32 s26, s22, 3
    s_lshl_b32 s27, s24, 2
    s_add_u32 s27, s27, s26              ; ttile
    s_mul_i32 s28, s27, 57344
    s_add_u32 s8, s20, s28
    s_addc_u32 s9, s21, 0
    s_add_u32 s8, s8, {WS_HA:#x}
    s_addc_u32 s9, s9, 0
    s_mov_b32 s10, 57344
    s_mov_b32 s11, 0x00020000
    s_lshr_b32 s23, s22, 2               ; kpar
    s_lshl_b32 s28, s22, 10              ; wave*1024
    s_mov_b32 s29, 0
    s_lshl_b32 s30, s23, 10
    s_mov_b32 s31, 0
    ; residual
    s_lshl_b32 s32, s25, 18              ; 64*dblk*4096
    s_lshl_b32 s33, s24, 7
    s_add_u32 s32, s32, s33
    s_add_u32 m0, s28, {G2_EXTRA}
    s_nop 0
    buffer_load_dwordx4 v7, s[12:15], s32 offen lds
    """)

    def dma(A):
        A(f"""
        s_add_u32 m0, s31, s28
        s_add_u32 s32, s31, s28
        buffer_load_dwordx4 v6, s[4:7], s29 offen lds
        s_add_u32 m0, s32, 8192
        s_add_u32 s29, s29, {64*896:#x}
        buffer_load_dwordx4 v8, s[8:11], s30 offen lds
        s_add_u32 s30, s30, 2048
        s_add_u32 s31, s31, {G2_STAGE}
        s_cmp_eq_u32 s31, {G2_SLOTS*G2_STAGE}
        s_cselect_b32 s31, 0, s31
        """)

    A(f"s_mov_b32 s36, {G2_SLOTS-1}")
    A.label("K4_pro")
    dma(A)
    A(f"""
    s_sub_u32 s36, s36, 1
    s_cmp_lg_u32 s36, 0
    s_cbranch_scc1 K4_pro
    """)
    ACC = 16
    FR = 32
    A(f"""
    v_lshrrev_b32 v9, 2, v2              ; 4g + r
    v_and_b32 v10, 3, v2                 ; c
    v_lshlrev_b32 v11, 7, v9
    v_lshl_add_u32 v11, v10, 3, v11      ; k*128 + c*8
    v_bfe_u32 v9, v9, 1, 2               ; (k>>1)&3
    """)
    for T in range(4):
        A(f"""
        v_xor_b32 v10, {T}, v9
        v_lshl_add_u32 v{52+T}, v10, 5, v11
        """)
    A(f"""
    s_lshl_b32 s26, s23, 12
    v_add_u32 v56, s28, v8
    v_add_u32 v56, 8192, v56
    s_mov_b32 s33, 0
    """)
    for i in range(16):
        A(f"v_mov_b32 v{ACC+i}, 0")
    A("s_mov_b32 s36, 28")
    A.label("K4_loop")
    A(f"""
    s_waitcnt vmcnt({2*(G2_SLOTS-2)})
    s_barrier
    """)
    dma(A)
    A(f"""
    s_add_u32 s27, s33, s26
    v_add_u32 v61, s33, v56
    v_add_u32 v57, s27, v52
    v_add_u32 v58, s27, v53
    v_add_u32 v59, s27, v54
    v_add_u32 v60, s27, v55
    ds_read_b128 {v(FR+16,4)}, v61
    """)
    for T in range(4):
        for j in range(2):
            A(f"ds_read_b64_tr_b16 {v(FR+4*T+2*j,2)}, v{57+T} offset:{j*2048}")
    A(f"""
    s_add_u32 s33, s33, {G2_STAGE}
    s_cmp_eq_u32 s33, {G2_SLOTS*G2_STAGE}
    s_cselect_b32 s33, 0, s33
    """)
    for T in range(4):
        A(f"s_waitcnt lgkmcnt({6-2*T})")
        A(f"v_mfma_f32_16x16x32_bf16 {v(ACC+4*T,4)}, {v(FR+4*T,4)}, {v(FR+16,4)}, {v(ACC+4*T,4)}")
    A(f"""
    s_sub_u32 s36, s36, 1
    s_cmp_lg_u32 s36, 0
    s_cbranch_scc1 K4_loop
    """)
    srd(A, 4, 20, WS_R2, L * 4)
    srd(A, 8, 18, 0, L * D * 2)
    A(f"""
    s_and_b32 s26, s22, 3
    s_lshl_b32 s27, s24, 2
    s_add_u32 s27, s27, s26              ; ttile
    s_lshl_b32 s29, s27, 6               ; ttile*16*4
    v_and_b32 v9, 15, v2
    v_lshlrev_b32 v10, 2, v9
    buffer_load_dword v62, v10, s[4:7], s29 offen
    s_waitcnt vmcnt(0)
    s_barrier
    s_lshl_b32 s30, s22, 11
    v_add_u32 v11, s30, v8
    s_xor_b32 s31, s30, 8192             ; partner (w^4)
    v_add_u32 v12, s31, v8
    s_cmp_eq_u32 s23, 0
    s_cbranch_scc1 K4_e0
    """)
    A(f"""
    ds_write_b128 v11, {v(ACC,4)}
    ds_write_b128 v11, {v(ACC+4,4)} offset:1024
    s_nop 1
    """)
    for i in range(8):
        A(f"v_mov_b32 v{ACC+i}, v{ACC+8+i}")
    A("s_branch K4_e1")
    A.label("K4_e0")
    A(f"""
    ds_write_b128 v11, {v(ACC+8,4)}
    ds_write_b128 v11, {v(ACC+12,4)} offset:1024
    """)
    A.label("K4_e1")
    A(f"""
    v_lshrrev_b32 v13, 2, v2
    v_and_b32 v14, 3, v2
    v_lshlrev_b32 v15, 7, v13
    v_lshl_add_u32 v15, v14, 3, v15
    v_bfe_u32 v13, v13, 1, 2
    v_xor_b32 v13, s26, v13
    v_lshl_add_u32 v15, v13, 5, v15
    s_lshl_b32 s30, s23, 12
    s_add_u32 s30, s30, {G2_EXTRA}
    v_add_u32 v15, s30, v15
    ds_read_b64_tr_b16 {v(FR,2)}, v15
    ds_read_b64_tr_b16 {v(FR+2,2)}, v15 offset:2048
    s_waitcnt lgkmcnt(0)
    s_barrier
    ds_read_b128 {v(FR+4,4)}, v12
    ds_read_b128 {v(FR+8,4)}, v12 offset:1024
    v_mul_u32_u24 v10, 896, v9
    v_lshrrev_b32 v13, 4, v2
    v_lshl_add_u32 v10, v13, 3, v10
    s_mul_i32 s29, s27, {16*896}
    s_lshl_b32 s30, s25, 7
    s_add_u32 s29, s29, s30
    s_lshl_b32 s30, s23, 6
    s_add_u32 s29, s29, s30
    s_waitcnt lgkmcnt(0)
    """)
    for T in range(2):
        a = ACC + 4 * T
        for h in range(2):
            A(f"v_pk_add_f32 {v(a+2*h,2)}, {v(a+2*h,2)}, {v(FR+4+4*T+2*h,2)}")
        for h in range(2):
            A(f"v_pk_mul_f32 {v(a+2*h,2)}, {v(a+2*h,2)}, v[62:63] op_sel_hi:[1,0]")
        for h in range(2):
            A(f"""
            v_cvt_pk_bf16_f32 v44, v{a+2*h}, v{a+2*h+1}
            v_lshlrev_b32 v{a+2*h}, 16, v44
            v_and_b32 v{a+2*h+1}, 0xffff0000, v44
            v_lshlrev_b32 v46, 16, v{FR+2*T+h}
            v_and_b32 v47, 0xffff0000, v{FR+2*T+h}
            v_pk_add_f32 {v(a+2*h,2)}, {v(a+2*h,2)}, v[46:47]
            v_cvt_pk_bf16_f32 v{48+2*T+h}, v{a+2*h}, v{a+2*h+1}
            """)
        A(f"buffer_store_dwordx2 {v(48+2*T,2)}, v10, s[8:11], s29 offen offset:{32*T}")
    A.label("K4_exit")
    A("s_endpgm")
    return kernel_desc("k4_kernel", 64)


def main(path):
    ref = open(f"cdna_kernels/{NAME}.s.ref").read().split("\n")
    head = [l for l in ref if l.startswith(";") and "@launch" not in l and "Override launch" not in l and "grid=ceil" not in l]
    A = Asm()
    for l in head:
        A.raw(l)
    A.raw(f"; @launch kernel=k1_kernel grid=({K1_GRID},1,1) block=(256,1,1) lds={K1_LDS}")
    A.raw(f"; @launch kernel=k2_kernel grid=({K2_GRID},1,1) block=(256,1,1) lds={K2_LDS}")
    A.raw(f"; @launch kernel=k3_kernel grid=({K3_GRID},1,1) block=(512,1,1) lds={K3_LDS}")
    A.raw(f"; @launch kernel=k4_kernel grid=({K4_GRID},1,1) block=(512,1,1) lds={K4_LDS}")
    A.raw('.amdgcn_target "amdgcn-amd-amdhsa--gfx950"')
    descs = [gen_k1(A), gen_k2(A), gen_k3(A), gen_k4(A)]
    for d in descs:
        A.raw(d)
    open(path, "w").write(A.text())


if __name__ == "__main__":
    main(sys.argv[1] if len(sys.argv) > 1 else f"cdna_kernels/{NAME}.s")
```

```python
import sys, os

NAME = "sequential_preLN__ssm_conv_s4__glu_gated_reglu__prompt"
L, D, N, F = 2048, 448, 256, 1792

TS = 4352
WS_UT = 0x0001000
WS_XT = 0x0200000
WS_RR = 0x0400000
WS_HT = 0x0600000
WS_CS = 0x0800000
WS_R2 = 0x0810000
WS_HA = 0x1000000
WS_DBG = 0x2000000
WS_SIZE = 0x10000000
HTB = D * 256
HAT = 112 * 1024

KA = dict(x=0, A_re=8, A_im=16, B_re=24, B_im=32, C_re=40, C_im=48, log_dt=56, Dskip=64,
          B_x=72, Wg=80, Wu=88, Wd=96, out=104, dbg=112, ws=120)
STAMP = os.environ.get("STAMP", "0") == "1"
OPT = dict(kv.split("=") for kv in os.environ.get("OPT", "").split(",") if kv)


class Asm:
    def __init__(self):
        self.lines = []
        self.kern = 0

    def __call__(self, s):
        for ln in s.strip("\n").split("\n"):
            ln = ln.strip()
            if ln:
                k = self.kern
                if f"nomfma{k}" in OPT and ln.startswith("v_mfma"): continue
                if f"nodma{k}" in OPT and ln.endswith(" lds"): continue
                if f"nords{k}" in OPT and ln.startswith("ds_read"): continue
                if f"nodot{k}" in OPT and ln.startswith("v_dot2c"): continue
                self.lines.append("    " + ln)

    def label(self, n):
        self.lines.append(n + ":")

    def raw(self, s):
        self.lines.append(s)

    def text(self):
        return "\n".join(self.lines) + "\n"


def v(a, n=1):
    return f"v{a}" if n == 1 else f"v[{a}:{a+n-1}]"


def s(a, n=1):
    return f"s{a}" if n == 1 else f"s[{a}:{a+n-1}]"


def cmul(A, d, x, y, t):
    A(f"v_pk_mul_f32 {v(t,2)}, {v(x,2)}, {v(y,2)} op_sel:[0,0] op_sel_hi:[1,0]")
    A(f"v_pk_fma_f32 {v(d,2)}, {v(x,2)}, {v(y,2)}, {v(t,2)} op_sel:[1,1,0] op_sel_hi:[0,1,1] neg_lo:[1,0,0]")


def srd(A, sd, sbase, off, nbytes):
    if off:
        A(f"s_add_u32 {s(sd)}, {s(sbase)}, {off:#x}")
        A(f"s_addc_u32 {s(sd+1)}, {s(sbase+1)}, 0")
    else:
        A(f"s_mov_b32 {s(sd)}, {s(sbase)}")
        A(f"s_mov_b32 {s(sd+1)}, {s(sbase+1)}")
    A(f"s_mov_b32 {s(sd+2)}, {nbytes:#x}")
    A(f"s_mov_b32 {s(sd+3)}, 0x00020000")


def stamp(A, i):
    if STAMP:
        A(f"s_memtime s[{64+2*i}:{65+2*i}]")
        A("s_waitcnt lgkmcnt(0)")


def stamp_begin(A):
    if STAMP:
        A("s_memrealtime s[92:93]")
        A("s_waitcnt lgkmcnt(0)")
        A("s_mov_b32 s93, s92")
        stamp(A, 0)


def stamp_end(A, kern, n, wsreg=20):
    if not STAMP:
        return
    stamp(A, n - 2)
    A("s_waitcnt vmcnt(0)")
    stamp(A, n - 1)
    A(f"""
    s_memrealtime s[94:95]
    s_waitcnt lgkmcnt(0)
    s_add_u32 s88, s{wsreg}, {WS_DBG + kern*0x100000:#x}
    s_addc_u32 s89, s{wsreg+1}, 0
    s_mov_b32 s90, 0x100000
    s_mov_b32 s91, 0x00020000
    v_lshrrev_b32 v1, 6, v0
    s_lshl_b32 s92, s2, 3
    v_add_u32 v1, s92, v1
    v_lshlrev_b32 v1, 6, v1
    """)
    for i in range(n):
        A(f"v_mov_b32 v2, s{64+2*i}")
        A(f"buffer_store_dword v2, v1, s[88:91], 0 offen offset:{4*i}")
    A("v_mov_b32 v2, s94")
    A("buffer_store_dword v2, v1, s[88:91], 0 offen offset:60")
    A("v_mov_b32 v2, s93")
    A("buffer_store_dword v2, v1, s[88:91], 0 offen offset:56")


def kernel_begin(A, name):
    A.kern = int(name[1])
    A.raw(".text")
    A.raw(f".globl {name}")
    A.raw(".p2align 8")
    A.raw(f".type {name},@function")
    A.label(name)


def kernel_desc(name, vgpr, sgpr=96, accum=None):
    if accum is None:
        accum = (vgpr + 3) // 4 * 4
    return f""".section .rodata,"a"
.p2align 6
.amdhsa_kernel {name}
  .amdhsa_next_free_vgpr {vgpr}
  .amdhsa_next_free_sgpr {sgpr}
  .amdhsa_accum_offset {accum}
  .amdhsa_group_segment_fixed_size 0
  .amdhsa_kernarg_size 128
  .amdhsa_user_sgpr_count 2
  .amdhsa_user_sgpr_kernarg_segment_ptr 1
  .amdhsa_system_sgpr_workgroup_id_x 1
.end_amdhsa_kernel
"""


class Sched:
    def __init__(self):
        self.q = []

    def run(self, items, emit):
        for it in items:
            if it[0] == 'ds':
                if emit: emit(it[1])
                self.q.append(set(it[2]))
            elif it[0] == 'use':
                need = -1
                for i, d in enumerate(self.q):
                    if d & set(it[2]):
                        need = i
                if need >= 0:
                    n = len(self.q) - 1 - need
                    n = min(n, 15)
                    if emit: emit(f"s_waitcnt lgkmcnt({n})")
                    self.q = self.q[len(self.q) - n:] if n else []
                if emit: emit(it[1])
            elif it[0] == 'drain':
                if emit: emit("s_waitcnt lgkmcnt(0)")
                self.q = []
            else:
                if emit: emit(it[1])


def R(a, n):
    return list(range(a, a + n))


K1_NLN, K1_NKG = 64, 448
K1_GRID = K1_NKG + K1_NLN
KG_ROW = 288
KG_WREG = 65 * 256
K1_LDS = 3 * KG_WREG + 64 * KG_ROW
LN_S = 928
KG_TB = {0: 0, 1: 16, 3: 32, 2: 48}


def gen_kgen(A):
    A.label("K1_kgen")
    stamp_begin(A)
    A(f"""
    s_load_dwordx16 s[4:19], s[0:1], {KA['A_re']}
    s_load_dwordx2 s[20:21], s[0:1], {KA['ws']}
    s_sub_u32 s25, s2, {K1_NLN}            ; d
    v_lshrrev_b32 v1, 6, v0
    v_and_b32 v2, 63, v0                 ; lane
    s_lshl_b32 s27, s25, 9
    v_readfirstlane_b32 s22, v1
    v_lshl_add_u32 v3, v0, 1, s27
    s_lshl_b32 s26, s25, 1
    v_mov_b32 v31, s26                   ; 2*d
    v_and_b32 v15, 15, v2                ; j
    v_lshrrev_b32 v16, 4, v2             ; g
    s_mul_i32 s31, s22, {KG_WREG}
    v_mul_u32_u24 v11, {KG_ROW}, v15
    v_lshl_add_u32 v11, v16, 4, v11
    v_add_u32 v11, s31, v11
    v_lshlrev_b32 v17, 4, v16            ; 16*g
    s_mov_b32 m0, s31
    s_waitcnt lgkmcnt(0)
    global_load_ushort v10, v31, s[16:17]
    global_load_ushort v4, v3, s[4:5]
    global_load_ushort v5, v3, s[6:7]
    global_load_ushort v6, v3, s[8:9]
    global_load_ushort v7, v3, s[10:11]
    global_load_ushort v8, v3, s[12:13]
    global_load_ushort v9, v3, s[14:15]
    global_load_ushort v29, v31, s[18:19]
    """)
    pos = lambda l: (l & 7) * 272 + (l >> 3)
    alphas = [[0, 4, 128, 132], [512, 516, 1024, 1536], [256, 384, 2048, 2049]]
    for T in range(3):
        tab = [pos(a) for a in alphas[T]]
        lo = tab[0] | (tab[1] << 16)
        hi = tab[2] | (tab[3] << 16)
        A(f"""
        s_mov_b32 s32, {lo:#x}
        s_mov_b32 s33, {hi:#x}
        v_lshrrev_b64 v[18:19], v17, s[32:33]
        v_and_b32 v18, 0xffff, v18
        v_add_u32 v18, v18, v15
        v_lshl_add_u32 v{12+T}, v18, 2, s31
        """)
    A(f"""
    v_lshlrev_b32 v18, 3, v0
    v_sub_u32 v18, 2047, v18
    s_movk_i32 s34, 1088
    """)
    for e in range(0, 8, 2):
        A(f"""
        v_subrev_u32 v44, {e}, v18
        v_subrev_u32 v45, {e+1}, v18
        v_cvt_f32_u32 v44, v44
        v_cvt_f32_u32 v45, v45
        v_cvt_pk_bf16_f32 v46, v44, v45
        v_lshlrev_b32 v44, 16, v46
        v_and_b32 v45, 0xffff0000, v46
        v_cvt_u32_f32 v44, v44
        v_cvt_u32_f32 v45, v45
        v_and_b32 v46, 7, v44
        v_and_b32 v47, 7, v45
        v_lshrrev_b32 v44, 1, v44
        v_lshrrev_b32 v45, 1, v45
        v_and_b32 v44, -4, v44
        v_and_b32 v45, -4, v45
        v_mad_u32_u24 v{20+e}, v46, s34, v44
        v_mad_u32_u24 v{21+e}, v47, s34, v45
        """)
    srd(A, 40, 20, WS_RR, D * TS)
    A(f"""
    s_mul_i32 s37, s25, {TS}
    v_lshlrev_b32 v3, 4, v0
    v_mov_b32 v30, 0x00003f80
    ds_write_addtid_b32 v30
    """)
    stamp(A, 1)
    ACC = 32
    AR, AI = 44, 45
    BP, CP = 46, 48
    A2, B2 = 50, 51
    T0, T1 = 52, 54
    P = {r: 56 + 2 * (r - 1) for r in range(1, 8)}
    Z8, Q1 = 70, 72
    QA, QB = 74, 76
    BA, BB = 78, 80
    X0, X1 = 82, 84
    E0, E1, E2 = 86, 88, 90
    W0, W1 = 92, 93
    FR = 44
    A(f"""
    s_waitcnt vmcnt(7)
    v_lshlrev_b32 v28, 16, v10
    v_mul_f32 v28, 0x3fb8aa3b, v28
    v_exp_f32 v28, v28
    s_waitcnt vmcnt(5)
    v_lshlrev_b32 v{AR}, 16, v4
    v_cvt_pk_bf16_f32 v28, v28, v28
    v_lshlrev_b32 v{AI}, 16, v5
    v_lshlrev_b32 v28, 16, v28           ; dt
    """)
    stamp(A, 2)
    A(f"""
    v_mul_f32 v{A2}, v28, v{AR}
    v_mul_f32 v{B2}, v28, v{AI}
    v_mul_f32 v{A2}, 0x3fb8aa3b, v{A2}
    v_mul_f32 v{B2}, 0.15915494, v{B2}
    v_mul_f32 v{E1}, 0x41000000, v{A2}
    v_mul_f32 v{E1+1}, 0x41000000, v{B2}
    v_mul_f32 v{E2}, 0x43000000, v{A2}
    v_mul_f32 v{E2+1}, 0x43000000, v{B2}
    v_exp_f32 v{E0}, v{A2}
    v_fract_f32 v{E0+1}, v{B2}
    v_exp_f32 v{E1}, v{E1}
    v_fract_f32 v{E1+1}, v{E1+1}
    v_exp_f32 v{E2}, v{E2}
    v_fract_f32 v{E2+1}, v{E2+1}
    v_cos_f32 v{P[1]}, v{E0+1}
    v_sin_f32 v{P[1]+1}, v{E0+1}
    v_cos_f32 v{Z8}, v{E1+1}
    v_sin_f32 v{Z8+1}, v{E1+1}
    v_cos_f32 v{Q1}, v{E2+1}
    v_sin_f32 v{Q1+1}, v{E2+1}
    v_pk_mul_f32 {v(P[1],2)}, {v(P[1],2)}, {v(E0,2)} op_sel_hi:[1,0]
    v_pk_mul_f32 {v(Z8,2)}, {v(Z8,2)}, {v(E1,2)} op_sel_hi:[1,0]
    v_pk_mul_f32 {v(Q1,2)}, {v(Q1,2)}, {v(E2,2)} op_sel_hi:[1,0]
    """)
    rowof = {}
    for T in range(3):
        for g in range(4):
            for r in range(4):
                beta = [r, 128 * r, 2 * r][T]
                e = alphas[T][g] + beta
                if e <= 2048:
                    rowof[e] = KG_TB[T] + 4 * g + r
    wsel = [0]

    def emitA(e, reg):
        w = W0 + wsel[0]; wsel[0] ^= 1
        A(f"v_cvt_pk_bf16_f32 v{w}, v{reg}, v{reg+1}")
        A(f"ds_write_addtid_b32 v{w} offset:{rowof[e]*KG_ROW}")

    mulA = lambda d, x, y: cmul(A, d, x, y, T0)
    emitA(1, P[1])
    mulA(P[2], P[1], P[1]); emitA(2, P[2])
    mulA(P[3], P[2], P[1]); emitA(3, P[3])
    mulA(P[4], P[2], P[2]); emitA(4, P[4])
    mulA(P[5], P[4], P[1]); emitA(5, P[5])
    mulA(P[6], P[4], P[2]); emitA(6, P[6])
    mulA(P[7], P[4], P[3]); emitA(7, P[7])
    cur = Q1
    for i in range(1, 17):
        if i > 1:
            nxt = QA if cur != QA else QB
            mulA(nxt, cur, Q1)
            cur = nxt
        emitA(128 * i, cur)
        extra = {1: range(1, 8), 2: (2, 4, 6), 3: (2, 4, 6), 4: (4,), 5: (4,), 6: (4,), 7: (4,)}.get(i, ())
        for r in extra:
            mulA(X0, cur, P[r])
            emitA(128 * i + r, X0)
    A(f"""
    s_waitcnt vmcnt(0)
    v_lshlrev_b32 v{BP}, 16, v6
    v_lshlrev_b32 v{BP+1}, 16, v7
    v_lshlrev_b32 v{CP}, 16, v8
    v_lshlrev_b32 v{CP+1}, 16, v9
    v_lshlrev_b32 v29, 16, v29
    v_cmp_eq_u32 vcc, 0, v0
    """)
    cmul(A, BA, CP, BP, T0)
    A(f"""
    v_cndmask_b32 v29, 0, v29, vcc
    v_pk_mul_f32 {v(BA,2)}, {v(BA,2)}, v[28:29] op_sel_hi:[1,0]
    """)
    curb = BA
    for j in range(16):
        if j > 0:
            nxt = BB if curb == BA else BA
            cmul(A, nxt, curb, Z8, T1)
            curb = nxt
        w = W0 + wsel[0]; wsel[0] ^= 1
        A(f"v_cvt_pk_bf16_f32 v{w}, v{curb}, -v{curb+1}")
        A(f"ds_write_addtid_b32 v{w} offset:{(KG_TB[3]+j)*KG_ROW}")
    A("s_waitcnt lgkmcnt(0)")
    stamp(A, 3)
    items = []
    for ks in range(4):
        for q, T in enumerate((3, 0, 1, 2)):
            b = FR + 16 * ks + 4 * q
            items.append(('ds', f"ds_read_b128 {v(b,4)}, v11 offset:{KG_TB[T]*KG_ROW + ks*64}", R(b, 4)))
    for ks in range(4):
        for T in range(3):
            a, b = FR + 16 * ks + 4 + 4 * T, FR + 16 * ks
            c = "0" if ks == 0 else v(ACC + 4 * T, 4)
            items.append(('use', f"v_mfma_f32_16x16x32_bf16 {v(ACC+4*T,4)}, {v(a,4)}, {v(b,4)}, {c}", R(a, 4) + R(b, 4)))
    Sched().run(items, A)
    A("s_nop 5")
    A(f"v_add_f32 v{ACC}, v{ACC}, v29")
    A("s_nop 0")
    for T in range(3):
        for r in range(4):
            beta = [r, 128 * r, 2 * r][T]
            A(f"ds_write_b32 v{12+T}, v{ACC+4*T+r} offset:{4*pos(beta)}")
    A(f"""
    s_waitcnt lgkmcnt(0)
    s_barrier
    """)
    stamp(A, 4)
    items = []
    for e in range(8):
        b = FR + 4 * e
        items.append(('ds', f"ds_read2st64_b32 {v(b,2)}, v{20+e} offset0:0 offset1:65", R(b, 2)))
        items.append(('ds', f"ds_read2st64_b32 {v(b+2,2)}, v{20+e} offset0:130 offset1:195", R(b + 2, 2)))
    for e in range(8):
        b = FR + 4 * e
        items.append(('use', f"v_pk_add_f32 {v(b,2)}, {v(b,2)}, {v(b+2,2)}", R(b, 4)))
        items.append(('op', f"v_add_f32 v{b}, v{b}, v{b+1}"))
        if e % 2 == 1:
            items.append(('op', f"v_cvt_pk_bf16_f32 v{32+e//2}, v{b-4}, v{b}"))
    Sched().run(items, A)
    A(f"buffer_store_dwordx4 v[32:35], v3, s[40:43], s37 offen")
    stamp_end(A, 0, 7)
    A("s_endpgm")


def reduce8(A, r):
    A(f"""
    s_nop 1
    v_add_f32_dpp v{r}, v{r}, v{r} quad_perm:[1,0,3,2] row_mask:0xf bank_mask:0xf
    s_nop 1
    v_add_f32_dpp v{r}, v{r}, v{r} quad_perm:[2,3,0,1] row_mask:0xf bank_mask:0xf
    s_nop 1
    v_add_f32_dpp v{r}, v{r}, v{r} row_half_mirror row_mask:0xf bank_mask:0xf
    """)


def gen_ln1(A):
    A.label("K1_ln1")
    stamp_begin(A)
    X = 8
    U = 36
    TB = 64
    T2 = 92
    A(f"""
    s_load_dwordx2 s[4:5], s[0:1], {KA['x']}
    s_load_dwordx2 s[20:21], s[0:1], {KA['ws']}
    s_mul_i32 s6, s2, {32*896}
    v_lshrrev_b32 v1, 3, v0              ; row
    v_and_b32 v2, 7, v0                  ; c8
    v_mul_u32_u24 v3, 896, v1
    v_lshl_add_u32 v3, v2, 4, v3
    v_mul_u32_u24 v4, {LN_S}, v1
    v_lshl_add_u32 v4, v2, 4, v4
    s_waitcnt lgkmcnt(0)
    s_add_u32 s4, s4, s6
    s_addc_u32 s5, s5, 0
    """)
    for j in range(7):
        A(f"global_load_dwordx4 {v(X+4*j,4)}, v3, s[4:5] offset:{128*j}")
    A(f"""
    v_and_b32 v5, 63, v0                 ; lane
    v_lshrrev_b32 v6, 6, v0              ; wave
    v_lshrrev_b32 v7, 4, v5              ; g
    v_bfe_u32 v100, v5, 2, 2             ; r
    v_lshl_add_u32 v100, v7, 3, v100     ; row = 8g + r
    v_mul_u32_u24 v100, {LN_S}, v100
    v_and_b32 v101, 3, v5
    v_lshl_add_u32 v100, v101, 3, v100
    v_lshl_add_u32 v100, v6, 5, v100
    v_and_b32 v101, 15, v5
    v_lshl_add_u32 v101, v6, 4, v101     ; 16w + j
    v_mul_u32_u24 v101, {TS}, v101
    v_lshl_add_u32 v101, v7, 4, v101
    s_mov_b32 s7, 0x3f803f80
    v_mov_b32 v102, 0
    v_mov_b32 v103, 0
    v_mov_b32 v104, 0
    v_mov_b32 v105, 0
    """)
    srd(A, 8, 20, 0, WS_RR)
    A(f"""
    s_lshl_b32 s12, s2, 6                ; t0*2
    s_add_u32 s13, s12, {WS_UT:#x}
    s_add_u32 s12, s12, {WS_XT:#x}
    """)
    for j in range(7):
        A(f"s_waitcnt vmcnt({6-j})")
        A(f"ds_write_b128 v4, {v(X+4*j,4)} offset:{128*j}")
        for q in range(4):
            A(f"v_dot2c_f32_bf16 v{102+(q&1)}, s7, v{X+4*j+q}")
    stamp(A, 1)
    A("s_waitcnt lgkmcnt(0)")
    A("s_barrier")

    def trreads(arr):
        for k in range(7):
            b = TB + 4 * k
            A(f"ds_read_b64_tr_b16 {v(b,2)}, v100 offset:{128*k + arr*32*LN_S}")
            A(f"ds_read_b64_tr_b16 {v(b+2,2)}, v100 offset:{128*k + arr*32*LN_S + 4*LN_S}")

    def trstore(arr, k):
        A(f"buffer_store_dwordx4 {v(TB+4*k,4)}, v101, s[8:11], s{12+arr} offen")
        if k < 6:
            A(f"s_add_u32 s{12+arr}, s{12+arr}, {64*TS:#x}")

    trreads(0)
    A("v_add_f32 v102, v102, v103")
    reduce8(A, 102)
    A(f"""
    v_mul_f32 v102, 0x3b124925, v102
    v_cvt_pk_bf16_f32 v106, v102, v102
    v_lshlrev_b32 v106, 16, v106         ; m_bf
    v_sub_f32 v103, v102, v106
    s_waitcnt lgkmcnt(0)
    """)
    for i in range(28):
        t = T2 + 2 * (i & 1)
        A(f"""
        v_lshlrev_b32 v{t}, 16, v{X+i}
        v_and_b32 v{t+1}, 0xffff0000, v{X+i}
        v_pk_add_f32 {v(t,2)}, {v(t,2)}, v[106:107] op_sel_hi:[1,0] neg_lo:[0,1] neg_hi:[0,1]
        v_pk_fma_f32 v[104:105], {v(t,2)}, {v(t,2)}, v[104:105]
        v_cvt_pk_bf16_f32 v{U+i}, v{t}, v{t+1}
        """)
        if i % 4 == 3:
            trstore(0, i // 4)
    A("v_add_f32 v104, v104, v105")
    reduce8(A, 104)
    A(f"""
    v_mul_f32 v104, 0x3b124925, v104
    v_fma_f32 v104, -v103, v103, v104    ; var
    v_max_f32 v104, 0, v104
    v_cvt_pk_bf16_f32 v104, v104, v104
    v_lshlrev_b32 v104, 16, v104
    v_add_f32 v104, 0x3727c5ac, v104     ; + 1e-5
    v_cvt_pk_bf16_f32 v104, v104, v104
    v_lshlrev_b32 v104, 16, v104
    v_sqrt_f32 v104, v104
    s_nop 0
    v_cvt_pk_bf16_f32 v104, v104, v104
    v_lshlrev_b32 v104, 16, v104
    v_rcp_f32 v106, v104
    s_nop 0
    """)
    for i in range(28):
        t = T2 + 2 * (i & 1)
        A(f"""
        v_lshlrev_b32 v{t}, 16, v{U+i}
        v_and_b32 v{t+1}, 0xffff0000, v{U+i}
        v_pk_mul_f32 {v(t,2)}, {v(t,2)}, v[106:107] op_sel_hi:[1,0]
        v_cvt_pk_bf16_f32 v{U+i}, v{t}, v{t+1}
        """)
        if i % 4 == 3:
            j = i // 4
            A(f"ds_write_b128 v4, {v(U+4*j,4)} offset:{128*j + 32*LN_S}")
    A("""
    s_waitcnt lgkmcnt(0)
    s_barrier
    """)
    stamp(A, 2)
    TBs = TB
    for k in range(7):
        b = X + 4 * k
        A(f"ds_read_b64_tr_b16 {v(b,2)}, v100 offset:{128*k + 32*LN_S}")
        A(f"ds_read_b64_tr_b16 {v(b+2,2)}, v100 offset:{128*k + 32*LN_S + 4*LN_S}")
    for k in range(7):
        A(f"s_waitcnt lgkmcnt({12-2*k})")
        A(f"buffer_store_dwordx4 {v(X+4*k,4)}, v101, s[8:11], s13 offen")
        if k < 6:
            A(f"s_add_u32 s13, s13, {64*TS:#x}")
    stamp_end(A, 0, 5)
    A("s_endpgm")


def gen_k1(A):
    kernel_begin(A, "k1_kernel")
    A(f"""
    s_cmp_ge_u32 s2, {K1_GRID}
    s_cbranch_scc1 K1_exit
    """)
    if "nocpf" not in OPT:
        A(f"""
        s_getpc_b64 s[60:61]
        """)
        A.label("K1_pc")
        A(f"""
        v_lshlrev_b32 v1, 6, v0
        v_add_u32 v2, 16384, v1
        v_min_u32 v2, CODE_END-K1_pc-4, v2
        global_load_dword v110, v1, s[60:61]
        global_load_dword v111, v2, s[60:61]
        """)
    A(f"""
    s_cmp_lt_u32 s2, {K1_NLN}
    s_cbranch_scc1 K1_ln1
    """)
    gen_kgen(A)
    gen_ln1(A)
    A.label("K1_exit")
    A("s_endpgm")
    return kernel_desc("k1_kernel", 112)


CV_KS = 4160
CV_US = 4576
CV_UOFF = 4 * CV_KS
CV_D = CV_UOFF + 2 * CV_US
K2_LDS = 2 * CV_D + 64
K2_NCV, K2_NCS = 224, 56
K2_GRID = K2_NCV + K2_NCS


def gen_colsum(A):
    A.label("K2_colsum")
    stamp_begin(A)
    X = 8
    S = 64
    A(f"""
    s_sub_u32 s3, s2, {K2_NCV}             ; 0..55
    s_load_dwordx4 s[16:19], s[0:1], {KA['Wg']}
    s_load_dwordx2 s[20:21], s[0:1], {KA['ws']}
    s_load_dwordx2 s[22:23], s[0:1], {KA['Wd']}
    s_cmp_ge_u32 s3, 28
    s_cselect_b32 s7, 28, 0
    s_sub_u32 s7, s3, s7
    s_lshl_b32 s7, s7, 7
    v_lshrrev_b32 v1, 3, v0              ; r32
    v_and_b32 v2, 7, v0
    v_mul_u32_u24 v3, 3584, v1
    v_lshl_add_u32 v3, v2, 4, v3
    v_add_u32 v3, s7, v3
    s_waitcnt lgkmcnt(0)
    s_cmp_ge_u32 s3, 28
    s_cselect_b32 s4, s18, s16
    s_cselect_b32 s5, s19, s17
    """)
    srd(A, 8, 4, 0, D * F * 2)
    A("s_mov_b32 s12, 0")
    for j in range(14):
        A(f"buffer_load_dwordx4 {v(X+4*j,4)}, v3, s[8:11], s12 offen")
        if j < 13:
            A(f"s_add_u32 s12, s12, {32*3584:#x}")
    srd(A, 24, 22, 0, D * F * 2)
    A(f"""
    s_mul_i32 s12, s3, 28672
    v_lshlrev_b32 v4, 7, v0
    v_cmp_gt_u32 vcc, 224, v0
    s_and_saveexec_b64 s[28:29], vcc
    buffer_load_dword v74, v4, s[24:27], s12 offen
    s_mov_b64 exec, s[28:29]
    """)
    for i in range(8):
        A(f"v_mov_b32 v{S+i}, 0")
    for j in range(14):
        A(f"s_waitcnt vmcnt({14-j})")
        for q in range(4):
            A(f"""
            v_lshlrev_b32 v72, 16, v{X+4*j+q}
            v_and_b32 v73, 0xffff0000, v{X+4*j+q}
            v_pk_add_f32 {v(S+2*q,2)}, {v(S+2*q,2)}, v[72:73]
            """)
    A(f"""
    v_mul_u32_u24 v4, 272, v1
    v_lshl_add_u32 v4, v2, 5, v4
    ds_write_b128 v4, {v(S,4)}
    ds_write_b128 v4, {v(S+4,4)} offset:16
    s_waitcnt lgkmcnt(0)
    s_barrier
    v_and_b32 v5, 63, v0
    v_lshrrev_b32 v6, 6, v0
    v_mul_u32_u24 v7, {8*272}, v6
    v_lshl_add_u32 v7, v5, 2, v7
    """)
    for i in range(8):
        A(f"ds_read_b32 v{X+i}, v7 offset:{272*i}")
    A("s_waitcnt lgkmcnt(0)")
    for i in range(1, 8):
        A(f"v_add_f32 v{X}, v{X}, v{X+i}")
    A(f"""
    v_lshlrev_b32 v7, 2, v0
    ds_write_b32 v7, v{X} offset:{32*272}
    s_waitcnt lgkmcnt(0)
    s_barrier
    v_lshlrev_b32 v7, 2, v5
    ds_read_b32 v{X}, v7 offset:{32*272}
    ds_read_b32 v{X+1}, v7 offset:{32*272+256}
    ds_read_b32 v{X+2}, v7 offset:{32*272+512}
    ds_read_b32 v{X+3}, v7 offset:{32*272+768}
    """)
    srd(A, 8, 20, WS_CS, 2 * F * 4)
    A(f"""
    s_lshl_b32 s12, s3, 8
    s_waitcnt lgkmcnt(0)
    v_add_f32 v{X}, v{X}, v{X+1}
    v_add_f32 v{X+2}, v{X+2}, v{X+3}
    v_add_f32 v{X}, v{X}, v{X+2}
    buffer_store_dword v{X}, v7, s[8:11], s12 offen
    """)
    stamp_end(A, 1, 3)
    A("s_endpgm")


def gen_k2(A):
    kernel_begin(A, "k2_kernel")
    A(f"""
    s_cmp_ge_u32 s2, {K2_GRID}
    s_cbranch_scc1 K2_exit
    s_cmp_ge_u32 s2, {K2_NCV}
    s_cbranch_scc1 K2_colsum
    """)
    stamp_begin(A)
    A(f"""
    s_load_dwordx2 s[20:21], s[0:1], {KA['ws']}
    s_load_dwordx4 s[40:43], s[0:1], {KA['Wg']}
    v_lshrrev_b32 v1, 6, v0
    v_and_b32 v2, 63, v0                 ; lane
    s_lshl_b32 s25, s2, 1
    v_readfirstlane_b32 s22, v1          ; wave
    v_lshlrev_b32 v3, 4, v2              ; lane*16
    v_and_b32 v4, 15, v2                 ; i (or n)
    v_lshrrev_b32 v5, 4, v2              ; g
    s_lshr_b32 s23, s22, 1               ; dsel
    s_and_b32 s24, s22, 1                ; role
    s_add_u32 s25, s25, s23              ; d
    s_mul_i32 s26, s25, {TS}             ; d*TS
    s_mul_i32 s27, s23, {CV_D}
    s_add_u32 s27, s27, 64
    s_lshl_b32 s28, s24, 3
    s_mul_i32 s29, s24, {2*CV_KS}
    s_add_u32 s29, s29, s27
    s_mul_i32 s30, s24, {CV_US}
    s_add_u32 s30, s30, s27
    s_add_u32 s30, s30, {CV_UOFF+448}
    s_lshl_b32 s31, s24, 1
    s_sub_u32 s31, s26, s31
    s_add_u32 s31, s31, {WS_UT:#x}
    s_add_u32 s32, s26, {WS_XT:#x}
    s_add_u32 s26, s26, {WS_RR:#x}
    s_mov_b32 s6, 4096
    s_mov_b32 s7, 0x00020000
    s_mov_b32 s10, {WS_CS:#x}
    s_mov_b32 s11, 0x00020000
    s_mov_b32 m0, s30
    v_lshlrev_b32 v6, 7, v5
    v_lshl_add_u32 v6, v4, 2, v6         ; x offset: 128g + 4i
    s_waitcnt lgkmcnt(0)
    s_mov_b32 s8, s20
    s_mov_b32 s9, s21
    s_add_u32 s4, s20, s26
    s_addc_u32 s5, s21, 0
    """)
    for i in range(4):
        A(f"buffer_load_dwordx4 v3, s[8:11], s31 offen offset:{1024*i} lds")
    A("s_mov_b32 m0, s29")
    A("s_nop 0")
    for i in range(4):
        A(f"buffer_load_dwordx4 v3, s[4:7], s28 offen offset:{1024*i} lds")
    A(f"""
    s_add_u32 m0, s29, {CV_KS}
    s_add_u32 s28, s28, 4
    """)
    for i in range(4):
        A(f"buffer_load_dwordx4 v3, s[4:7], s28 offen offset:{1024*i} lds")
    A(f"""
    v_mov_b32 v8, 0
    v_mov_b32 v9, 0
    v_mov_b32 v10, 0
    v_mov_b32 v11, 0
    v_and_b32 v36, 3, v4
    v_sub_u32 v36, 3, v36
    v_mul_u32_u24 v36, {CV_KS}, v36
    v_lshrrev_b32 v37, 2, v4
    v_sub_u32 v37, v5, v37
    v_lshl_add_u32 v36, v37, 4, v36
    v_add_u32 v36, {4080 - 512*7}, v36
    v_add_u32 v36, s27, v36              ; v36 = F addr
    v_and_b32 v37, 1, v4
    v_sub_u32 v37, 1, v37
    v_mul_u32_u24 v37, {CV_US}, v37
    v_lshrrev_b32 v38, 1, v4
    v_lshl_add_u32 v37, v38, 6, v37
    v_lshl_add_u32 v37, v5, 4, v37
    v_add_u32 v37, {CV_UOFF + 448}, v37
    v_add_u32 v37, s27, v37              ; v37 = G addr
    v_lshrrev_b32 v38, 1, v5
    v_mul_u32_u24 v38, {HTB}, v38
    v_and_b32 v39, 1, v5
    v_lshl_add_u32 v38, v39, 7, v38
    v_lshl_add_u32 v38, v4, 2, v38       ; v38
    s_lshl_b32 s33, s25, 8
    s_add_u32 s33, s33, {WS_HT:#x}         ; HT + d*256
    ; L2 warm-up of the gate/up weights slice used by this XCD in the next kernel
    v_min_u32 v39, 223, v0
    v_mul_u32_u24 v1, 0x124a, v39
    v_lshrrev_b32 v1, 16, v1
    v_mul_u32_u24 v7, {3584-14*128}, v1
    v_lshl_add_u32 v1, v39, 7, v7        ; row*3584 + (tid%14)*128
    s_lshr_b32 s44, s2, 3
    s_mul_i32 s44, s44, {16*3584}
    s_bfe_u32 s45, s2, 0x10002
    s_mul_i32 s45, s45, 1792
    s_add_u32 s44, s44, s45
    v_add_u32 v1, s44, v1
    s_cmp_eq_u32 s24, 0
    s_cbranch_scc0 K2_roleB
    """)
    XR = 12
    ACC = 20
    FP = 40
    for role, tiles in ((0, (7, 6, 1, 0)), (1, (5, 4, 3, 2))):
        if role == 1:
            A.label("K2_roleB")
        nf = max(tiles) + 1
        for q, c in enumerate(tiles):
            A(f"buffer_load_dword v{XR+2*q}, v6, s[8:11], s32 offen offset:{512*c}")
            A(f"buffer_load_dword v{XR+2*q+1}, v6, s[8:11], s32 offen offset:{512*c+64}")
        if role == 0:
            A(f"""
            v_cmp_lt_u32 vcc, 27, v2
            v_mov_b32 v7, {CV_US - 448}
            s_nop 0
            v_cndmask_b32 v7, 0, v7, vcc
            v_add_u32 v7, v7, v3
            v_add_u32 v7, s27, v7
            v_cmp_gt_u32 vcc, 56, v2
            s_and_saveexec_b64 s[34:35], vcc
            ds_write_b128 v7, v[8:11] offset:{CV_UOFF}
            s_mov_b64 exec, s[34:35]
            """)
        else:
            A(f"""
            v_lshrrev_b32 v7, 2, v2
            v_mul_u32_u24 v7, {CV_KS}, v7
            v_and_b32 v39, 3, v2
            v_lshl_add_u32 v7, v39, 4, v7
            v_add_u32 v7, s27, v7
            v_cmp_gt_u32 vcc, 16, v2
            s_and_saveexec_b64 s[34:35], vcc
            ds_write_b128 v7, v[8:11] offset:4096
            s_mov_b64 exec, s[34:35]
            v_mov_b32 v7, s30
            """)
        stamp(A, 1)
        A("s_waitcnt vmcnt(8)")
        stamp(A, 2)
        if role == 1:
            A("ds_write_b16 v7, v8")
        A("""
        s_waitcnt lgkmcnt(0)
        s_barrier
        """)
        stamp(A, 3)

        def reads(base):
            out = []
            for a in range(nf):
                out.append(('ds', f"ds_read_b128 {v(base+4*a,4)}, v36 offset:{512*(7-a)}", R(base + 4 * a, 4)))
                out.append(('ds', f"ds_read_b128 {v(base+32+4*a,4)}, v37 offset:{512*a}", R(base + 32 + 4 * a, 4)))
            return out

        def mfmas(base):
            out = []
            pairs = [(a, c - a, q) for q, c in enumerate(tiles) for a in range(c + 1)]
            pairs.sort(key=lambda p: (max(p[0], p[1]), p[2]))
            for a, b, q in pairs:
                out.append(('use', f"v_mfma_f32_16x16x32_bf16 {v(ACC+4*q,4)}, {v(base+32+4*b,4)}, {v(base+4*a,4)}, {v(ACC+4*q,4)}",
                            R(base + 32 + 4 * b, 4) + R(base + 4 * a, 4)))
            return out

        def step(cur, nxt):
            it = [('op', "v_subrev_u32 v36, 64, v36"), ('op', "v_subrev_u32 v37, 64, v37")]
            rs = reads(nxt)
            ms = mfmas(cur)
            i = 0
            for m in ms:
                it.append(m)
                if i < len(rs):
                    it.append(rs[i]); i += 1
            it += rs[i:]
            return it

        S = Sched()
        S.run(reads(FP), A)
        A("s_waitcnt vmcnt(0)")
        if "nopf" not in OPT:
            A("""
            global_load_dword v8, v1, s[40:41]
            global_load_dword v9, v1, s[42:43]
            """)
            if "pf128" not in OPT:
                A("""
                global_load_dword v10, v1, s[40:41] offset:64
                global_load_dword v11, v1, s[42:43] offset:64
                """)
        for q in range(4):
            A(f"""
            v_lshlrev_b32 v{ACC+4*q}, 16, v{XR+2*q}
            v_and_b32 v{ACC+4*q+1}, 0xffff0000, v{XR+2*q}
            v_lshlrev_b32 v{ACC+4*q+2}, 16, v{XR+2*q+1}
            v_and_b32 v{ACC+4*q+3}, 0xffff0000, v{XR+2*q+1}
            """)
        A("s_mov_b32 s36, 4")
        body = step(FP, FP + 64) + step(FP + 64, FP)
        A.label(f"K2_loop{role}")
        S.run(body, A)
        A(f"""
        s_sub_u32 s36, s36, 1
        s_cmp_lg_u32 s36, 0
        s_cbranch_scc1 K2_loop{role}
        s_nop 7
        """)
        stamp(A, 4)
        for q, c in enumerate(tiles):
            A(f"""
            s_add_u32 s34, s33, {2*c*HTB:#x}
            v_cvt_pk_bf16_f32 v{XR+2*q}, v{ACC+4*q}, v{ACC+4*q+1}
            v_cvt_pk_bf16_f32 v{XR+2*q+1}, v{ACC+4*q+2}, v{ACC+4*q+3}
            buffer_store_dword v{XR+2*q}, v38, s[8:11], s34 offen
            buffer_store_dword v{XR+2*q+1}, v38, s[8:11], s34 offen offset:64
            """)
        stamp_end(A, 1, 7)
        A("s_endpgm")
    gen_colsum(A)
    A.label("K2_exit")
    A("s_endpgm")
    return kernel_desc("k2_kernel", FP + 128)


G1_STAGE = 24576
G1_SLOTS = 6
G1_X = G1_SLOTS * G1_STAGE
K3_LDS = G1_X + 2048
K3_GRID = 224
G1_P = int(OPT.get("g1p", 3))


def gen_k3(A):
    kernel_begin(A, "k3_kernel")
    A(f"""
    s_cmp_ge_u32 s2, {K3_GRID}
    s_cbranch_scc1 K3_exit
    """)
    stamp_begin(A)
    A(f"""
    s_load_dwordx4 s[16:19], s[0:1], {KA['Wg']}
    s_load_dwordx2 s[20:21], s[0:1], {KA['ws']}
    s_load_dwordx2 s[48:49], s[0:1], {KA['Wd']}
    v_lshrrev_b32 v1, 6, v0
    v_and_b32 v2, 63, v0                 ; lane
    s_and_b32 s24, s2, 3
    v_readfirstlane_b32 s22, v1          ; wave
    s_lshl_b32 s24, s24, 2
    s_bfe_u32 s25, s2, 0x20003
    s_add_u32 s24, s24, s25              ; tblk = 4*(j&3) + (q&3)
    s_bfe_u32 s25, s2, 0x10002
    s_mul_i32 s25, s25, 7
    s_lshr_b32 s26, s2, 5
    s_add_u32 s25, s25, s26              ; fblk = 7*(j>>2) + (q>>2)
    v_bfe_u32 v3, v2, 2, 2               ; r
    v_lshrrev_b32 v4, 5, v2              ; h
    v_lshl_add_u32 v5, v4, 2, v3
    v_lshlrev_b32 v5, 8, v5
    v_bfe_u32 v6, v2, 4, 1
    v_lshl_add_u32 v5, v6, 5, v5
    v_and_b32 v6, 3, v2
    v_lshl_add_u32 v5, v6, 3, v5
    s_and_b32 s23, s22, 3                ; w & 3
    v_xor_b32 v6, s23, v3
    v_lshl_add_u32 v8, v6, 6, v5
    s_mov_b32 s33, 0
    s_cmp_ge_u32 s22, 4
    s_cbranch_scc1 K3_loader
    """)
    ACC = 24
    FP = 152
    acc = lambda m, tt: ACC + 16 * (m * 4 + tt)
    for tt in range(4):
        A(f"""
        v_xor_b32 v6, {tt}, v3
        v_lshl_add_u32 v{9+tt}, v6, 6, v5
        """)
    if "nopf" not in OPT:
        A(f"""
        s_and_b32 s26, s2, 3
        s_mul_i32 s26, s26, {4*HTB}
        s_lshr_b32 s27, s2, 3
        s_lshl_b32 s27, s27, 14
        s_add_u32 s26, s26, s27
        s_add_u32 s26, s26, {WS_HT:#x}
        v_lshl_add_u32 v18, v0, 6, s26
        s_waitcnt lgkmcnt(0)
        global_load_dword v19, v18, s[20:21]
        """)
    for i in range(128):
        A(f"v_mov_b32 v{ACC+i}, 0")

    def fa(base, kk, m): return base + 24 * kk + 4 * m
    def fb(base, kk, tt): return base + 24 * kk + 8 + 4 * tt

    def reads(base):
        out = []
        for kk in range(2):
            order = [('b', 0), ('a', 0), ('a', 1), ('b', 1), ('b', 2), ('b', 3)]
            for kind, i in order:
                for j in range(2):
                    if kind == 'a':
                        d = fa(base, kk, i) + 2 * j
                        out.append(('ds', f"ds_read_b64_tr_b16 {v(d,2)}, v13 offset:{8192*(i+1) + 4096*kk + 2048*j}", R(d, 2)))
                    else:
                        d = fb(base, kk, i) + 2 * j
                        out.append(('ds', f"ds_read_b64_tr_b16 {v(d,2)}, v{14+i} offset:{4096*kk + 2048*j}", R(d, 2)))
        return out

    def addr_setup():
        return [('op', t) for t in f"""v_add_u32 v13, s33, v8
            v_add_u32 v14, s33, v9
            v_add_u32 v15, s33, v10
            v_add_u32 v16, s33, v11
            v_add_u32 v17, s33, v12
            s_add_u32 s33, s33, {G1_STAGE}
            s_cmp_eq_u32 s33, {G1_SLOTS*G1_STAGE}
            s_cselect_b32 s33, 0, s33""".split("\n")]

    def step(cur, nxt):
        ms = []
        for kk in range(2):
            for tt in range(4):
                for m in range(2):
                    a, b = fa(cur, kk, m), fb(cur, kk, tt)
                    ms.append(('use', f"v_mfma_f32_32x32x16_bf16 {v(acc(m,tt),16)}, {v(a,4)}, {v(b,4)}, {v(acc(m,tt),16)}", R(a, 4) + R(b, 4)))
        rs = reads(nxt)
        it = [ms[0], ms[1], ('drain',), ('op', "s_barrier")] + addr_setup()
        i = 0
        for m in ms[2:]:
            it.append(m)
            for _ in range(2):
                if i < len(rs):
                    it.append(rs[i]); i += 1
        it += rs[i:]
        return it

    A("s_waitcnt lgkmcnt(0)")
    stamp(A, 1)
    A("s_barrier")
    stamp(A, 2)
    S = Sched()
    S.run(addr_setup() + reads(FP), A)
    A("s_mov_b32 s36, 7")
    A.label("K3_loop")
    S.run(step(FP, FP + 48) + step(FP + 48, FP), A)
    A(f"""
    s_sub_u32 s36, s36, 1
    s_cmp_lg_u32 s36, 0
    s_cbranch_scc1 K3_loop
    """)
    stamp(A, 3)
    CS = FP
    M = FP + 32
    O = FP + 40
    A(f"""
    s_waitcnt lgkmcnt(0)
    s_barrier
    s_lshl_b32 s26, s23, 7
    v_lshl_add_u32 v6, v4, 4, s26        ; (32w + 4h)*4
    v_add_u32 v6, {G1_X}, v6
    v_and_b32 v7, 31, v2
    v_lshlrev_b32 v7, 2, v7
    v_add_u32 v7, {G1_X+1024}, v7
    """)
    for tt in range(4):
        A(f"ds_read_b32 v{M+2*tt}, v7 offset:{128*tt}")
    for q in range(4):
        for m in range(2):
            A(f"ds_read_b128 {v(CS+16*m+4*q,4)}, v6 offset:{512*m + 32*q}")
    srd(A, 12, 20, WS_HA, L * F * 2)
    A(f"""
    s_lshl_b32 s26, s24, 2
    s_mul_i32 s26, s26, {HAT}
    s_lshl_b32 s29, s25, 3
    s_lshl_b32 s30, s23, 1
    s_add_u32 s29, s29, s30              ; S16
    s_lshl_b32 s29, s29, 10
    s_add_u32 s26, s26, s29
    v_lshlrev_b32 v6, 4, v2
    s_waitcnt lgkmcnt(0)
    """)
    stamp(A, 4)
    for tt in range(4):
        for q in range(4):
            g_, u_ = acc(0, tt) + 4 * q, acc(1, tt) + 4 * q
            o = O + 8 * (tt & 1) + 2 * q
            for h in range(2):
                A(f"v_pk_fma_f32 {v(g_+2*h,2)}, {v(CS+4*q+2*h,2)}, {v(M+2*tt,2)}, {v(g_+2*h,2)} op_sel_hi:[1,0,1] neg_lo:[0,1,0] neg_hi:[0,1,0]")
                A(f"v_pk_fma_f32 {v(u_+2*h,2)}, {v(CS+16+4*q+2*h,2)}, {v(M+2*tt,2)}, {v(u_+2*h,2)} op_sel_hi:[1,0,1] neg_lo:[0,1,0] neg_hi:[0,1,0]")
            for i in range(4):
                A(f"v_max_f32 v{g_+i}, 0, v{g_+i}")
            for h in range(2):
                A(f"v_pk_mul_f32 {v(g_+2*h,2)}, {v(g_+2*h,2)}, {v(u_+2*h,2)}")
            for h in range(2):
                A(f"v_cvt_pk_bf16_f32 v{o+h}, v{g_+2*h}, v{g_+2*h+1}")
            if q & 1:
                A(f"buffer_store_dwordx4 {v(o-2,4)}, v6, s[12:15], s26 offen offset:{1024*(q>>1)}")
        if tt < 3:
            A(f"s_add_u32 s26, s26, {HAT}")
    stamp_end(A, 2, 7)
    A("s_endpgm")
    A.label("K3_loader")
    if "prio3" in OPT: A(f"s_setprio {OPT['prio3']}")
    A(f"""
    v_lshrrev_b32 v9, 4, v2
    v_lshlrev_b32 v10, 2, v9
    v_and_b32 v11, 15, v2
    v_xor_b32 v10, v10, v11
    s_lshl_b32 s26, s23, 3
    v_add_u32 v9, s26, v9
    v_lshlrev_b32 v11, 8, v9
    v_lshl_add_u32 v11, v10, 4, v11
    v_mul_u32_u24 v12, 3584, v9
    v_lshl_add_u32 v12, v10, 4, v12
    s_lshl_b32 s26, s25, 8
    v_add_u32 v12, s26, v12
    v_add_u32 v13, {4*3584-1024}, v12
    v_and_b32 v14, 31, v2
    v_lshlrev_b32 v14, 4, v14
    v_mul_u32_u24 v15, {F*4}, v4
    v_add_u32 v14, v14, v15
    s_lshl_b32 s27, s23, 11
    s_mov_b32 s29, 0                     ; W soffset
    s_mul_i32 s30, s24, {HTB}            ; h soffset
    s_mov_b32 s31, 0
    s_lshl_b32 s26, s25, 9               ; fblk*128*4
    s_mov_b32 m0, {G1_X}
    s_mov_b32 s37, 0x3f803f80
    v_mov_b32 v44, 0
    v_mov_b32 v45, 0
    v_mov_b32 v46, 0
    v_mov_b32 v47, 0
    s_waitcnt lgkmcnt(0)
    """)
    srd(A, 12, 20, WS_HT, 16 * HTB)
    srd(A, 4, 16, 0, D * F * 2)
    srd(A, 8, 18, 0, D * F * 2)
    srd(A, 40, 20, WS_CS, 2 * F * 4)

    def dma():
        A(f"""
        s_add_u32 m0, s31, s27
        s_add_u32 s32, s31, s27
        buffer_load_dwordx4 v11, s[12:15], s30 offen lds
        buffer_load_dwordx4 v11, s[12:15], s30 offen offset:1024 lds
        s_add_u32 m0, s32, 8192
        s_add_u32 s30, s30, 8192
        buffer_load_dwordx4 v12, s[4:7], s29 offen lds
        buffer_load_dwordx4 v13, s[4:7], s29 offen offset:1024 lds
        s_add_u32 m0, s32, 16384
        s_add_u32 s31, s31, {G1_STAGE}
        buffer_load_dwordx4 v12, s[8:11], s29 offen lds
        buffer_load_dwordx4 v13, s[8:11], s29 offen offset:1024 lds
        s_add_u32 s29, s29, {32*3584:#x}
        s_cmp_eq_u32 s31, {G1_SLOTS*G1_STAGE}
        s_cselect_b32 s31, 0, s31
        """)

    def stats_read():
        A(f"""
        v_add_u32 v16, s33, v8
        s_add_u32 s33, s33, {G1_STAGE}
        s_cmp_eq_u32 s33, {G1_SLOTS*G1_STAGE}
        s_cselect_b32 s33, 0, s33
        ds_read_b64_tr_b16 v[24:25], v16
        ds_read_b64_tr_b16 v[26:27], v16 offset:2048
        ds_read_b64_tr_b16 v[28:29], v16 offset:4096
        ds_read_b64_tr_b16 v[30:31], v16 offset:6144
        """)

    def stats_acc():
        A("s_waitcnt lgkmcnt(0)")
        for i in range(8):
            t_ = 32 + 2 * (i & 1)
            A(f"""
            v_lshlrev_b32 v{t_}, 16, v{24+i}
            v_and_b32 v{t_+1}, 0xffff0000, v{24+i}
            v_add_f32 v44, v44, v{t_}
            v_add_f32 v45, v45, v{t_+1}
            v_fmac_f32 v46, v{t_}, v{t_}
            v_fmac_f32 v47, v{t_+1}, v{t_+1}
            """)

    P = G1_P
    A(f"s_mov_b32 s36, {P}")
    A.label("K3_lpro")
    dma()
    A(f"""
    s_sub_u32 s36, s36, 1
    s_cmp_lg_u32 s36, 0
    s_cbranch_scc1 K3_lpro
    s_mov_b32 m0, {G1_X}
    s_nop 0
    buffer_load_dwordx4 v14, s[40:43], s26 offen lds
    """)
    stamp(A, 1)
    A(f"s_waitcnt vmcnt({6*(P-1)+1})")
    stamp(A, 2)
    A("s_barrier")
    stats_read()
    dma()
    stats_acc()
    A(f"s_waitcnt vmcnt({6*(P-1)+1 if P > 1 else 0})")
    A(f"s_mov_b32 s36, {14-P-1}")
    A.label("K3_lloop")
    A("s_barrier")
    stats_read()
    dma()
    stats_acc()
    A(f"""
    s_waitcnt vmcnt({6*(P-1)})
    s_sub_u32 s36, s36, 1
    s_cmp_lg_u32 s36, 0
    s_cbranch_scc1 K3_lloop
    """)
    npf = 0
    for b in range(14 - P, 14):
        A("s_barrier")
        stats_read()
        if b == 14 - P and "nopf" not in OPT:
            npf = 4
            srd(A, 4, 48, 0, D * F * 2)
            A(f"""
            s_lshr_b32 s29, s2, 3
            s_lshl_b32 s29, s29, 14
            v_subrev_u32 v17, 256, v0
            v_lshlrev_b32 v17, 6, v17
            """)
            for i in range(4):
                A(f"buffer_load_dword v{50+i}, v17, s[4:7], s29 offen")
                A(f"s_add_u32 s29, s29, {7168*64:#x}")
        stats_acc()
        rem = 13 - (b + 1)
        if rem >= 0:
            A(f"s_waitcnt vmcnt({6*rem+npf})")
    stamp(A, 3)
    A(f"""
    s_barrier
    v_add_f32 v40, v44, v45
    v_add_f32 v41, v46, v47
    v_mov_b32 v42, v40
    v_mov_b32 v43, v41
    s_nop 1
    v_permlane32_swap_b32 v40, v42
    v_permlane32_swap_b32 v41, v43
    v_add_f32 v40, v40, v42
    v_add_f32 v41, v41, v43
    v_mul_f32 v40, 0x3b124925, v40       ; mean
    v_cvt_pk_bf16_f32 v42, v40, v40
    v_lshlrev_b32 v42, 16, v42
    v_and_b32 v7, 31, v2
    v_lshlrev_b32 v7, 2, v7
    s_lshl_b32 s26, s23, 7
    v_add_u32 v6, s26, v7
    v_add_u32 v6, {G1_X+1024}, v6
    ds_write_b32 v6, v42
    s_waitcnt lgkmcnt(0)
    s_barrier
    s_cmp_lg_u32 s25, 0
    s_cbranch_scc1 K3_ldone
    v_mul_f32 v41, 0x3b124925, v41
    v_fma_f32 v41, -v40, v40, v41
    v_max_f32 v41, 0, v41
    v_cvt_pk_bf16_f32 v41, v41, v41
    v_lshlrev_b32 v41, 16, v41
    v_add_f32 v41, 0x3727c5ac, v41
    v_cvt_pk_bf16_f32 v41, v41, v41
    v_lshlrev_b32 v41, 16, v41
    v_sqrt_f32 v41, v41
    s_nop 0
    v_cvt_pk_bf16_f32 v41, v41, v41
    v_lshlrev_b32 v41, 16, v41
    v_mul_f32 v41, v41, v41
    v_rcp_f32 v41, v41
    """)
    srd(A, 8, 20, WS_R2, L * 4)
    A(f"""
    s_lshl_b32 s29, s24, 9
    s_add_u32 s26, s26, s29
    buffer_store_dword v41, v7, s[8:11], s26 offen
    """)
    A.label("K3_ldone")
    stamp(A, 4)
    stamp_end(A, 2, 7)
    A.label("K3_exit")
    A("s_endpgm")
    return kernel_desc("k3_kernel", 248)


G2_STAGE = 32768
G2_SLOTS = 4
G2_X = G2_SLOTS * G2_STAGE
K4_LDS = G2_X + 8192 + 256
K4_GRID = 224


def gen_k4(A):
    kernel_begin(A, "k4_kernel")
    A(f"""
    s_cmp_ge_u32 s2, {K4_GRID}
    s_cbranch_scc1 K4_exit
    """)
    stamp_begin(A)
    A(f"""
    s_load_dwordx4 s[16:19], s[0:1], {KA['Wd']}
    s_load_dwordx2 s[20:21], s[0:1], {KA['ws']}
    v_lshrrev_b32 v1, 6, v0
    v_and_b32 v2, 63, v0                 ; lane
    s_and_b32 s24, s2, 7
    v_readfirstlane_b32 s22, v1          ; wave
    s_lshl_b32 s24, s24, 2
    s_bfe_u32 s25, s2, 0x20003
    s_add_u32 s24, s24, s25              ; tblk64 0..31
    s_lshr_b32 s25, s2, 5                ; dblk 0..6
    v_lshlrev_b32 v8, 4, v2              ; lane*16
    s_and_b32 s23, s22, 3
    s_and_b32 s26, s23, 1                ; tt
    s_lshr_b32 s27, s23, 1
    s_cmp_ge_u32 s22, 4
    s_cbranch_scc1 K4_loader
    """)
    ACC = 16
    FR = 32
    A(f"""
    v_bfe_u32 v3, v2, 2, 2               ; r
    v_lshrrev_b32 v4, 5, v2              ; h
    v_lshl_add_u32 v5, v4, 2, v3
    v_lshlrev_b32 v5, 7, v5
    v_bfe_u32 v6, v2, 4, 1
    v_lshl_add_u32 v5, v6, 5, v5
    v_and_b32 v6, 3, v2
    v_lshl_add_u32 v5, v6, 3, v5
    v_lshrrev_b32 v3, 1, v3
    v_xor_b32 v6, s27, v3
    v_lshl_add_u32 v9, v6, 6, v5
    v_xor_b32 v6, s26, v3
    v_lshl_add_u32 v12, v6, 6, v5
    s_lshl_b32 s28, s27, 12
    s_add_u32 s28, s28, {G2_X}
    v_add_u32 v12, s28, v12
    s_lshl_b32 s28, s26, 13
    s_add_u32 s28, s28, 16384
    v_add_u32 v10, s28, v8               ; v10 = B addr
    s_mov_b32 s33, 0
    """)
    if "nopf" not in OPT:
        A(f"""
        s_lshr_b32 s28, s2, 3
        s_lshl_b32 s28, s28, 8
        v_add_u32 v6, s28, v0                ; idx
        v_and_b32 v7, 7, v6
        v_mul_u32_u24 v7, {HAT}, v7
        v_lshrrev_b32 v6, 3, v6
        v_lshl_add_u32 v6, v6, 6, v7
        s_and_b32 s28, s2, 7
        s_mul_i32 s28, s28, {8*HAT}
        s_add_u32 s28, s28, {WS_HA:#x}
        v_add_u32 v6, s28, v6
        v_add_u32 v7, {HAT//2}, v6
        s_waitcnt lgkmcnt(0)
        global_load_dword v101, v6, s[20:21]
        global_load_dword v102, v7, s[20:21]
        """)
    for i in range(16):
        A(f"v_mov_b32 v{ACC+i}, 0")
    A("s_mov_b32 s36, 14")
    A("s_waitcnt lgkmcnt(0)")
    stamp(A, 1)
    A.label("K4_loop")
    A(f"""
    s_barrier
    v_add_u32 v13, s33, v9
    v_add_u32 v14, s33, v10
    s_add_u32 s33, s33, {G2_STAGE}
    s_and_b32 s33, s33, {G2_SLOTS*G2_STAGE-1:#x}
    """)
    items = []
    rd = []
    for k in range(8):
        b = FR + 8 * k
        rd.append([('ds', f"ds_read_b128 {v(b+4,4)}, v14 offset:{1024*k}", R(b + 4, 4)),
                   ('ds', f"ds_read_b64_tr_b16 {v(b,2)}, v13 offset:{2048*k}", R(b, 2)),
                   ('ds', f"ds_read_b64_tr_b16 {v(b+2,2)}, v13 offset:{2048*k+1024}", R(b + 2, 2))])
    for k in range(4):
        items += rd[k]
    for k in range(8):
        b = FR + 8 * k
        items.append(('use', f"v_mfma_f32_32x32x16_bf16 {v(ACC,16)}, {v(b,4)}, {v(b+4,4)}, {v(ACC,16)}", R(b, 8)))
        if k + 4 < 8:
            items += rd[k + 4]
    Sched().run(items, A)
    A(f"""
    s_sub_u32 s36, s36, 1
    s_cmp_lg_u32 s36, 0
    s_cbranch_scc1 K4_loop
    """)
    stamp(A, 2)
    srd(A, 8, 18, 0, L * D * 2)
    A(f"""
    v_and_b32 v6, 31, v2
    s_lshl_b32 s28, s26, 7
    v_lshl_add_u32 v7, v6, 2, s28
    v_add_u32 v7, {G2_X+8192}, v7
    ds_read_b32 v96, v7
    """)
    for q in range(4):
        A(f"ds_read_b64_tr_b16 {v(FR+2*q,2)}, v12 offset:{1024*q}")
    A(f"""
    v_mul_u32_u24 v6, 896, v6
    v_lshl_add_u32 v6, v4, 4, v6
    s_lshl_b32 s28, s24, 1
    s_add_u32 s28, s28, s26              ; ttile32
    s_mul_i32 s29, s28, {32*896}
    s_lshl_b32 s30, s25, 7
    s_add_u32 s29, s29, s30
    s_lshl_b32 s30, s27, 6
    s_add_u32 s29, s29, s30
    s_waitcnt lgkmcnt(0)
    """)
    O = FR + 8
    for q in range(4):
        for h in range(2):
            a = ACC + 4 * q + 2 * h
            A(f"""
            v_pk_mul_f32 {v(a,2)}, {v(a,2)}, v[96:97] op_sel_hi:[1,0]
            v_lshlrev_b32 v98, 16, v{FR+2*q+h}
            v_and_b32 v99, 0xffff0000, v{FR+2*q+h}
            v_cvt_pk_bf16_f32 v100, v{a}, v{a+1}
            v_lshlrev_b32 v{a}, 16, v100
            v_and_b32 v{a+1}, 0xffff0000, v100
            v_pk_add_f32 {v(a,2)}, {v(a,2)}, v[98:99]
            v_cvt_pk_bf16_f32 v{O+2*q+h}, v{a}, v{a+1}
            """)
        if q & 1:
            o = O + 2 * (q - 1)
            A(f"""
            s_nop 1
            v_permlane32_swap_b32 v{o}, v{o+2}
            v_permlane32_swap_b32 v{o+1}, v{o+3}
            buffer_store_dwordx4 {v(o,4)}, v6, s[8:11], s29 offen offset:{32*(q>>1)}
            """)
    stamp_end(A, 3, 5)
    A("s_endpgm")
    A.label("K4_loader")
    A(f"""
    v_lshrrev_b32 v3, 3, v2
    v_bfe_u32 v4, v2, 4, 1
    v_lshlrev_b32 v4, 2, v4
    v_and_b32 v5, 7, v2
    v_xor_b32 v4, v4, v5
    s_lshl_b32 s28, s23, 5
    v_add_u32 v5, s28, v3
    v_mul_u32_u24 v9, 896, v5
    v_lshl_add_u32 v9, v4, 4, v9
    s_lshl_b32 s28, s25, 7
    v_add_u32 v9, s28, v9
    v_add_u32 v10, {7168-1024}, v9
    v_add_u32 v11, {2*(7168-1024)}, v9
    v_add_u32 v12, {3*(7168-1024)}, v9
    s_lshl_b32 s28, s23, 4
    v_add_u32 v5, s28, v3
    v_lshlrev_b32 v13, 8, v5
    v_lshl_add_u32 v13, v4, 4, v13
    v_add_u32 v14, 1024, v13
    v_lshlrev_b32 v15, 2, v2
    s_lshr_b32 s28, s24, 1
    s_mul_i32 s34, s28, {HTB}
    s_and_b32 s28, s24, 1
    s_lshl_b32 s28, s28, 7
    s_add_u32 s34, s34, s28
    s_lshl_b32 s28, s25, 14              ; 64*dblk*256
    s_add_u32 s34, s34, s28
    s_lshl_b32 s35, s24, 8               ; r2 soffset
    s_lshl_b32 s28, s24, 1
    s_add_u32 s28, s28, s26
    s_mul_i32 s30, s28, {HAT}
    s_lshl_b32 s28, s27, 12
    s_add_u32 s30, s30, s28
    s_lshl_b32 s37, s23, 12
    s_lshl_b32 s38, s26, 13
    s_add_u32 s38, s38, s28
    s_add_u32 s38, s38, 16384
    s_mov_b32 s29, 0
    s_mov_b32 s31, 0
    s_waitcnt lgkmcnt(0)
    """)
    srd(A, 4, 16, 0, D * F * 2)
    srd(A, 8, 20, WS_HA, L * F * 2)
    srd(A, 12, 20, WS_HT, 16 * HTB)
    srd(A, 40, 20, WS_R2, L * 4)

    def dma():
        A(f"""
        s_add_u32 m0, s31, s38
        s_nop 0
        buffer_load_dwordx4 v8, s[8:11], s30 offen lds
        buffer_load_dwordx4 v8, s[8:11], s30 offen offset:1024 lds
        buffer_load_dwordx4 v8, s[8:11], s30 offen offset:2048 lds
        buffer_load_dwordx4 v8, s[8:11], s30 offen offset:3072 lds
        s_add_u32 m0, s31, s37
        s_add_u32 s30, s30, 8192
        buffer_load_dwordx4 v9, s[4:7], s29 offen lds
        buffer_load_dwordx4 v10, s[4:7], s29 offen offset:1024 lds
        buffer_load_dwordx4 v11, s[4:7], s29 offen offset:2048 lds
        buffer_load_dwordx4 v12, s[4:7], s29 offen offset:3072 lds
        s_add_u32 s29, s29, {128*896:#x}
        s_add_u32 s31, s31, {G2_STAGE}
        s_and_b32 s31, s31, {G2_SLOTS*G2_STAGE-1:#x}
        """)

    A("s_mov_b32 s36, 3")
    A.label("K4_lpro")
    dma()
    A(f"""
    s_sub_u32 s36, s36, 1
    s_cmp_lg_u32 s36, 0
    s_cbranch_scc1 K4_lpro
    """)
    stamp(A, 1)
    A(f"""
    s_mov_b32 s36, 11
    s_waitcnt vmcnt(16)
    """)
    A.label("K4_lloop")
    A("s_barrier")
    dma()
    A(f"""
    s_waitcnt vmcnt(16)
    s_sub_u32 s36, s36, 1
    s_cmp_lg_u32 s36, 0
    s_cbranch_scc1 K4_lloop
    s_barrier                            ; barrier 11
    s_lshl_b32 s28, s23, 11
    s_add_u32 m0, s28, {G2_X}
    s_nop 0
    buffer_load_dwordx4 v13, s[12:15], s34 offen lds
    buffer_load_dwordx4 v14, s[12:15], s34 offen offset:1024 lds
    s_mov_b32 m0, {G2_X+8192}
    s_nop 0
    buffer_load_dword v15, s[40:43], s35 offen lds
    s_waitcnt vmcnt(11)
    s_barrier                            ; barrier 12
    s_waitcnt vmcnt(0)
    s_barrier                            ; barrier 13
    """)
    stamp(A, 2)
    stamp_end(A, 3, 5)
    A.label("K4_exit")
    A("s_endpgm")
    A.label("CODE_END")
    return kernel_desc("k4_kernel", 104)


def main(path):
    ref = open(f"cdna_kernels/{NAME}.s.ref").read().split("\n")
    head = [l for l in ref if l.startswith(";") and "@launch" not in l and "Override launch" not in l and "grid=ceil" not in l]
    A = Asm()
    for l in head:
        A.raw(l)
    A.raw(f"; @launch kernel=k1_kernel grid=({K1_GRID},1,1) block=(256,1,1) lds={K1_LDS}")
    A.raw(f"; @launch kernel=k2_kernel grid=({K2_GRID},1,1) block=(256,1,1) lds={K2_LDS}")
    A.raw(f"; @launch kernel=k3_kernel grid=({K3_GRID},1,1) block=(512,1,1) lds={K3_LDS}")
    A.raw(f"; @launch kernel=k4_kernel grid=({K4_GRID},1,1) block=(512,1,1) lds={K4_LDS}")
    A.raw('.amdgcn_target "amdgcn-amd-amdhsa--gfx950"')
    descs = [gen_k1(A), gen_k2(A), gen_k3(A), gen_k4(A)]
    for d in descs:
        A.raw(d)
    open(path, "w").write(A.text())


if __name__ == "__main__":
    main(sys.argv[1] if len(sys.argv) > 1 else f"cdna_kernels/{NAME}.s")
```

```python
import sys, os

NAME = "sequential_preLN__ssm_conv_s4__glu_gated_reglu__prompt"
KNAME = NAME + "_kernel"
L, D, N, F = 2048, 448, 256, 1792

WS_EPOCH = 0x0000000
WS_CS = 0x0010000
WS_R2 = 0x0020000
WS_MEAN = 0x0030000
NREP = 4
REPS = 64 * 128 + 128
WS_F1 = 0x0040000
WS_F2 = 0x0050000
WS_F3 = 0x0060000
WS_F4 = 0x0070000
WS_XU = 0x0800000
WS_HT = 0x0100000
WS_HA = 0x1000000
WS_DBG = 0x2000000
WS_SIZE = 0x10000000
WS_USED = 0x1800000
HTB = D * 256
HAT = 112 * 1024

KA = dict(x=0, A_re=8, A_im=16, B_re=24, B_im=32, C_re=40, C_im=48, log_dt=56, Dskip=64,
          B_x=72, Wg=80, Wu=88, Wd=96, out=104, dbg=112, ws=120)
STAMP = os.environ.get("STAMP", "0") == "1"
OPT = dict(kv.split("=") for kv in os.environ.get("OPT", "").split(",") if kv)
NSTAMP = 16


class Asm:
    def __init__(self):
        self.lines = []

    def __call__(self, s):
        for ln in s.strip("\n").split("\n"):
            ln = ln.strip()
            if ln:
                self.lines.append("    " + ln)

    def label(self, n):
        self.lines.append(n + ":")

    def raw(self, s):
        self.lines.append(s)

    def text(self):
        return "\n".join(self.lines) + "\n"


def v(a, n=1):
    return f"v{a}" if n == 1 else f"v[{a}:{a+n-1}]"


def s(a, n=1):
    return f"s{a}" if n == 1 else f"s[{a}:{a+n-1}]"


def R(a, n):
    return list(range(a, a + n))


def cmul(A, d, x, y, t):
    A(f"v_pk_mul_f32 {v(t,2)}, {v(x,2)}, {v(y,2)} op_sel:[0,0] op_sel_hi:[1,0]")
    A(f"v_pk_fma_f32 {v(d,2)}, {v(x,2)}, {v(y,2)}, {v(t,2)} op_sel:[1,1,0] op_sel_hi:[0,1,1] neg_lo:[1,0,0]")


def srd(A, sd, sbase, off, nbytes):
    if off:
        A(f"s_add_u32 {s(sd)}, {s(sbase)}, {off:#x}")
        A(f"s_addc_u32 {s(sd+1)}, {s(sbase+1)}, 0")
    else:
        A(f"s_mov_b32 {s(sd)}, {s(sbase)}")
        A(f"s_mov_b32 {s(sd+1)}, {s(sbase+1)}")
    A(f"s_mov_b32 {s(sd+2)}, {nbytes:#x}")
    A(f"s_mov_b32 {s(sd+3)}, 0x00020000")


def stamp(A, i):
    if STAMP:
        A("s_memtime s[68:69]")
        A("s_waitcnt lgkmcnt(0)")
        A(f"s_mov_b32 s{72+i}, s68")


def stamp_begin(A):
    if STAMP:
        for i in range(NSTAMP):
            A(f"s_mov_b32 s{72+i}, 0")
        A("s_memrealtime s[68:69]")
        A("s_waitcnt lgkmcnt(0)")
        A("s_mov_b32 s70, s68")
        stamp(A, 0)


def stamp_end(A):
    if not STAMP:
        return
    stamp(A, NSTAMP - 2)
    A("s_waitcnt vmcnt(0)")
    stamp(A, NSTAMP - 1)
    A(f"""
    s_memrealtime s[68:69]
    s_waitcnt lgkmcnt(0)
    s_add_u32 s88, s20, {WS_DBG:#x}
    s_addc_u32 s89, s21, 0
    s_mov_b32 s90, 0x100000
    s_mov_b32 s91, 0x00020000
    v_lshrrev_b32 v1, 6, v0
    s_lshl_b32 s92, s2, 3
    v_add_u32 v1, s92, v1
    v_lshlrev_b32 v1, 7, v1
    """)
    for i in range(NSTAMP):
        A(f"v_mov_b32 v2, s{72+i}")
        A(f"buffer_store_dword v2, v1, s[88:91], 0 offen offset:{4*i}")
    A("v_mov_b32 v2, s68")
    A("buffer_store_dword v2, v1, s[88:91], 0 offen offset:124")
    A("v_mov_b32 v2, s70")
    A("buffer_store_dword v2, v1, s[88:91], 0 offen offset:120")


class Sched:
    def __init__(self):
        self.q = []

    def run(self, items, emit):
        for it in items:
            if it[0] == 'ds':
                emit(it[1])
                self.q.append(set(it[2]))
            elif it[0] == 'use':
                need = -1
                for i, d in enumerate(self.q):
                    if d & set(it[2]):
                        need = i
                if need >= 0:
                    n = min(len(self.q) - 1 - need, 15)
                    emit(f"s_waitcnt lgkmcnt({n})")
                    self.q = self.q[len(self.q) - n:] if n else []
                emit(it[1])
            elif it[0] == 'drain':
                emit("s_waitcnt lgkmcnt(0)")
                self.q = []
            else:
                emit(it[1])


class VM:
    def __init__(self, A):
        self.A = A
        self.q = []

    def op(self, text, tag):
        self.A(text)
        self.q.append(tag)
        assert len(self.q) <= 63, "too many outstanding vmem ops"

    def wait(self, *tags, extra=""):
        need = -1
        for i, t in enumerate(self.q):
            if t in tags:
                need = i
        if need >= 0:
            n = len(self.q) - 1 - need
            self.A(f"s_waitcnt vmcnt({n}) {extra}")
            self.q = self.q[len(self.q) - n:] if n else []
        elif extra:
            self.A(f"s_waitcnt {extra}")

    def drain(self, extra=""):
        self.A(f"s_waitcnt vmcnt(0) {extra}")
        self.q = []


def poll(A, name, load, okcode, cnt=36, sleep=1):
    A(f"s_mov_b32 s{cnt}, 0x40000")
    A.label(f"{name}_poll")
    A(load)
    A("s_waitcnt vmcnt(0)")
    A(okcode)
    A(f"""
    s_cbranch_scc1 {name}_got
    s_sub_u32 s{cnt}, s{cnt}, 1
    s_cmp_eq_u32 s{cnt}, 0
    s_cbranch_scc1 {name}_got
    s_sleep {sleep}
    s_branch {name}_poll
    """)
    A.label(f"{name}_got")


def flag_set(A, region, idx_sgpr, nline, nrep, after):
    A(f"""
    s_and_b32 s28, {idx_sgpr}, {nline-1}
    s_lshl_b32 s28, s28, 7
    s_lshr_b32 s32, {idx_sgpr}, {nline.bit_length()-1}
    s_lshl_b32 s32, s32, 2
    s_add_u32 s28, s28, s32
    s_add_u32 s28, s28, {region:#x}
    v_mul_u32_u24 v1, {REPS}, v2
    v_mov_b32 v3, s42
    s_mov_b64 exec, {(1<<nrep)-1}
    buffer_store_dword v3, v1, s[60:63], s28 offen sc1
    s_mov_b64 exec, -1
    """)


def q4_ok(r):
    return (f"v_xor_b32 v{r}, s42, v{r}\nv_xor_b32 v{r+1}, s42, v{r+1}\nv_xor_b32 v{r+2}, s42, v{r+2}\nv_xor_b32 v{r+3}, s42, v{r+3}\n"
            f"v_or3_b32 v{r}, v{r}, v{r+1}, v{r+2}\nv_or_b32 v{r}, v{r}, v{r+3}\nv_cmp_eq_u32 vcc, 0, v{r}\ns_nop 3\ns_cmp_eq_u64 vcc, exec")


def reduce64(A, regs, tmp):
    for ctl in ("quad_perm:[1,0,3,2]", "quad_perm:[2,3,0,1]", "row_half_mirror", "row_mirror"):
        A("s_nop 0")
        for r in regs:
            A(f"v_add_f32_dpp v{r}, v{r}, v{r} {ctl} row_mask:0xf bank_mask:0xf")
    for sw in ("v_permlane16_swap_b32", "v_permlane32_swap_b32"):
        for i, r in enumerate(regs):
            A(f"v_mov_b32 v{tmp+i}, v{r}")
        A("s_nop 1")
        for i, r in enumerate(regs):
            A(f"{sw} v{r}, v{tmp+i}")
        for i, r in enumerate(regs):
            A(f"v_add_f32 v{r}, v{r}, v{tmp+i}")


def reduce8(A, r):
    A(f"""
    s_nop 1
    v_add_f32_dpp v{r}, v{r}, v{r} quad_perm:[1,0,3,2] row_mask:0xf bank_mask:0xf
    s_nop 1
    v_add_f32_dpp v{r}, v{r}, v{r} quad_perm:[2,3,0,1] row_mask:0xf bank_mask:0xf
    s_nop 1
    v_add_f32_dpp v{r}, v{r}, v{r} row_half_mirror row_mask:0xf bank_mask:0xf
    """)


def var_to_s(A, r):
    A(f"""
    v_max_f32 v{r}, 0, v{r}
    v_cvt_pk_bf16_f32 v{r}, v{r}, v{r}
    v_lshlrev_b32 v{r}, 16, v{r}
    v_add_f32 v{r}, 0x3727c5ac, v{r}
    v_cvt_pk_bf16_f32 v{r}, v{r}, v{r}
    v_lshlrev_b32 v{r}, 16, v{r}
    v_sqrt_f32 v{r}, v{r}
    s_nop 0
    v_cvt_pk_bf16_f32 v{r}, v{r}, v{r}
    v_lshlrev_b32 v{r}, 16, v{r}
    """)


NAUX, NMAIN = 32, 224
GRID = 256
KG_ROW = 1056
KG_CH = 57 * KG_ROW
KG_TB = {0: 0, 1: 16, 3: 32, 2: 48}
KL_S = 8704
KPOS = lambda l: (l & 7) * 272 + (l >> 3)
KALPHA = [[0, 4, 128, 132], [512, 516, 1024, 1536], [256, 384, 2048, 2049]]
CV_BASE = 98304 + 64
CV_KS = 4160
CV_US = 4576
CV_UOFF = 4 * CV_KS
CV_XOFF = CV_UOFF + 2 * CV_US
CV_D = CV_XOFF + 4096
G1_STAGE = 24576
G1_SLOTS = 6
G1_X = G1_SLOTS * G1_STAGE
P4_SLOT = [0, 3, 4, 5, 6, 7, 8, 1, 2, 0, 3, 4, 5, 6]
P4_X = 149504
WD_EARLY = int(OPT.get("wde", 32))
LDS = 158208
assert CV_BASE + 2 * CV_D <= LDS and P4_X + 8192 + 256 <= LDS


def bf16_round_int(l):
    if l <= 256:
        return l
    sh = l.bit_length() - 8
    q, r = l >> sh, l & ((1 << sh) - 1)
    half = 1 << (sh - 1)
    if r > half or (r == half and (q & 1)):
        q += 1
    return q << sh


def kg_table(A):
    A.raw(".p2align 6")
    A.raw(".type KG_TABLE,@object")
    A.label("KG_TABLE")
    rows = []
    for tid in range(512):
        w, lane = tid >> 6, tid & 63
        ch, o = tid >> 8, tid & 255
        j, g = lane & 15, lane >> 4
        vals = [ch * 4 * KL_S + 4 * KPOS(bf16_round_int(2047 - 8 * o - e)) for e in range(8)]
        vals += [w * KL_S + 4 * (KPOS(KALPHA[T][g]) + j) for T in range(3)]
        vals += [ch * KG_CH + (w & 3) * 256 + j * KG_ROW + g * 16]
        rows.append(vals)
    for part in range(3):
        for tid in range(512):
            A.raw(".long " + ", ".join(str(x) for x in rows[tid][4 * part:4 * part + 4]))
    A.raw(".size KG_TABLE, 24576")


P0_LDS = 131072


def gen_p0_loads(A):
    A(f"""
    s_lshl_b32 s26, s2, 3
    s_add_u32 s26, s26, s22              ; row
    s_mul_i32 s26, s26, 896
    v_lshl_add_u32 v1, v2, 4, s26
    v_mov_b32 v96, 0
    v_mov_b32 v97, 0
    v_mov_b32 v98, 0
    v_mov_b32 v99, 0
    s_mov_b32 s32, -1
    s_mov_b32 s33, 0x00ffffff
    s_mov_b64 exec, s[32:33]
    global_load_dwordx4 v[96:99], v1, s[44:45]
    s_mov_b64 exec, -1
    buffer_load_dword v100, off, s[60:63], 0 sc1
    """)


def gen_p0(A, younger):
    X, U, I = 96, 104, 108
    A(f"""
    s_mov_b32 s26, 0x3f803f80
    v_mov_b32 v101, 0
    v_mov_b32 v102, 0
    s_mul_i32 s27, s22, 1792
    s_add_u32 s27, s27, {P0_LDS}
    v_lshl_add_u32 v116, v2, 5, s27
    v_bfe_u32 v117, v2, 2, 2             ; r
    v_mul_u32_u24 v117, 1792, v117
    v_and_b32 v118, 3, v2
    v_lshl_add_u32 v117, v118, 3, v117
    v_lshrrev_b32 v118, 4, v2            ; g
    v_lshl_add_u32 v117, v118, 5, v117
    s_lshl_b32 s27, s22, 7
    s_add_u32 s27, s27, {P0_LDS}
    v_add_u32 v117, s27, v117
    v_lshrrev_b32 v118, 2, v2
    v_lshlrev_b32 v118, 14, v118
    v_and_b32 v119, 3, v2
    v_lshl_add_u32 v118, v119, 4, v118
    s_lshl_b32 s34, s22, 18              ; unit*16*16384
    s_lshl_b32 s35, s2, 6
    s_add_u32 s34, s34, s35
    s_add_u32 s34, s34, {WS_XU:#x}
    s_add_u32 s35, s34, {8<<18:#x}
    s_waitcnt vmcnt({younger})
    v_readfirstlane_b32 s41, v100        ; epoch
    """)
    for i in range(4):
        A(f"v_dot2c_f32_bf16 v101, s26, v{X+i}")
        A(f"v_dot2c_f32_bf16 v102, v{X+i}, v{X+i}")
    A("""
    s_mul_i32 s42, s41, 0x9e3779b1
    s_add_u32 s42, s42, 0x7f4a7c15
    s_nop 1
    """)
    reduce64(A, [101, 102], 120)
    A(f"""
    v_mul_f32 v101, 0x3b124925, v101     ; mean
    v_mul_f32 v102, 0x3b124925, v102
    v_fma_f32 v102, -v101, v101, v102
    v_cvt_pk_bf16_f32 v120, v101, v101
    v_lshlrev_b32 v120, 16, v120         ; m_bf
    """)
    var_to_s(A, 102)
    A(f"""
    v_rcp_f32 v121, v102
    s_mov_b32 s26, 0x05040100
    s_mov_b32 s27, 0x07060302
    """)
    for i in range(4):
        t_ = 122 + 2 * (i & 1)
        A(f"""
        v_lshlrev_b32 v{t_}, 16, v{X+i}
        v_and_b32 v{t_+1}, 0xffff0000, v{X+i}
        v_pk_add_f32 {v(t_,2)}, {v(t_,2)}, v[120:121] op_sel_hi:[1,0] neg_lo:[0,1] neg_hi:[0,1]
        v_cvt_pk_bf16_f32 v{U+i}, v{t_}, v{t_+1}
        v_lshlrev_b32 v{t_}, 16, v{U+i}
        v_and_b32 v{t_+1}, 0xffff0000, v{U+i}
        v_pk_mul_f32 {v(t_,2)}, {v(t_,2)}, v[120:121] op_sel:[0,1] op_sel_hi:[1,1]
        v_cvt_pk_bf16_f32 v{U+i}, v{t_}, v{t_+1}
        v_perm_b32 v{I+2*i}, v{U+i}, v{X+i}, s26
        v_perm_b32 v{I+2*i+1}, v{U+i}, v{X+i}, s27
        """)
    A(f"""
    s_mov_b64 exec, s[32:33]
    ds_write_b128 v116, {v(I,4)}
    ds_write_b128 v116, {v(I+4,4)} offset:16
    s_mov_b64 exec, -1
    s_waitcnt lgkmcnt(0)
    s_barrier                            ; Bp
    ds_read_b64_tr_b16 v[96:97], v117
    ds_read_b64_tr_b16 v[98:99], v117 offset:{4*1792}
    ds_read_b64_tr_b16 v[100:101], v117 offset:1024
    ds_read_b64_tr_b16 v[102:103], v117 offset:{4*1792+1024}
    s_waitcnt lgkmcnt(2)
    buffer_store_dwordx4 v[96:99], v118, s[60:63], s34 offen sc1
    s_cmp_ge_u32 s22, 6
    s_waitcnt lgkmcnt(0)
    s_cbranch_scc1 P0_skip{younger}
    buffer_store_dwordx4 v[100:103], v118, s[60:63], s35 offen sc1
    """)
    A.label(f"P0_skip{younger}")


def gen_f1_publish(A, name, also_f2=False, younger=0):
    A(f"""
    s_waitcnt vmcnt({younger})
    s_barrier                            ; Bq
    s_cmp_lg_u32 s22, 0
    s_cbranch_scc1 {name}
    """)
    flag_set(A, WS_F1, "s2", 64, NREP, None)
    if also_f2:
        flag_set(A, WS_F2, "s2", 64, NREP, None)
    A.label(name)


def gen_aux(A):
    A.label("AUX")
    X = 8
    gen_p0(A, 0)
    stamp(A, 1)
    gen_f1_publish(A, "AUX_f1", True)
    stamp(A, 2)
    S = 64
    A(f"""
    v_min_u32 v7, 447, v0
    v_mul_u32_u24 v1, 0x124a, v7
    v_lshrrev_b32 v1, 16, v1             ; rg
    v_mul_u32_u24 v2, 14, v1
    v_sub_u32 v2, v7, v2                 ; chunk
    v_mul_u32_u24 v3, 3584, v1
    v_lshl_add_u32 v3, v2, 4, v3
    s_and_b32 s26, s2, 15
    s_mul_i32 s12, s26, 224
    s_cmp_ge_u32 s2, 16
    s_cselect_b32 s4, s50, s48
    s_cselect_b32 s5, s51, s49
    """)
    srd(A, 8, 4, 0, D * F * 2)
    for j in range(14):
        A(f"buffer_load_dwordx4 {v(X+4*j,4)}, v3, s[8:11], s12 offen")
        if j < 13:
            A(f"s_add_u32 s12, s12, {32*3584:#x}")
    for i in range(8):
        A(f"v_mov_b32 v{S+i}, 0")
    for j in range(14):
        A(f"s_waitcnt vmcnt({13-j})")
        for q in range(4):
            A(f"""
            v_lshlrev_b32 v72, 16, v{X+4*j+q}
            v_and_b32 v73, 0xffff0000, v{X+4*j+q}
            v_pk_add_f32 {v(S+2*q,2)}, {v(S+2*q,2)}, v[72:73]
            """)
    A(f"""
    v_mul_u32_u24 v4, 464, v1
    v_lshl_add_u32 v4, v2, 5, v4
    ds_write_b128 v4, {v(S,4)}
    ds_write_b128 v4, {v(S+4,4)} offset:16
    v_and_b32 v5, 127, v0
    v_min_u32 v5, 111, v5                ; column
    v_lshrrev_b32 v6, 7, v0              ; part 0..3
    v_mul_u32_u24 v7, {8*464}, v6
    v_lshl_add_u32 v7, v5, 2, v7
    s_waitcnt lgkmcnt(0)
    s_barrier
    """)
    for i in range(8):
        A(f"ds_read_b32 v{X+i}, v7 offset:{464*i}")
    A("s_waitcnt lgkmcnt(0)")
    for st in (4, 2, 1):
        for i in range(st):
            A(f"v_add_f32 v{X+i}, v{X+i}, v{X+i+st}")
    A(f"""
    v_lshlrev_b32 v7, 9, v6
    v_lshl_add_u32 v7, v5, 2, v7
    ds_write_b32 v7, v{X} offset:16384
    v_lshlrev_b32 v7, 2, v5
    s_waitcnt lgkmcnt(0)
    s_barrier
    ds_read_b32 v{X}, v7 offset:16384
    ds_read_b32 v{X+1}, v7 offset:{16384+512}
    ds_read_b32 v{X+2}, v7 offset:{16384+1024}
    ds_read_b32 v{X+3}, v7 offset:{16384+1536}
    s_mul_i32 s12, s2, 448
    s_add_u32 s12, s12, {WS_CS:#x}
    s_waitcnt lgkmcnt(0)
    v_add_f32 v{X}, v{X}, v{X+1}
    v_add_f32 v{X+2}, v{X+2}, v{X+3}
    v_add_f32 v{X}, v{X}, v{X+2}
    v_cmp_gt_u32 vcc, 112, v0
    s_and_saveexec_b64 s[32:33], vcc
    s_cbranch_execz AUX_c
    buffer_store_dword v{X}, v7, s[60:63], s12 offen sc1
    """)
    A.label("AUX_c")
    A("s_mov_b64 exec, s[32:33]")
    stamp(A, 3)
    A(f"""
    v_and_b32 v2, 63, v0
    v_lshlrev_b32 v5, 7, v2
    s_and_b32 s28, s2, {NREP-1}
    s_mul_i32 s28, s28, {REPS}
    s_add_u32 s28, s28, {WS_F2:#x}
    s_cmp_lg_u32 s22, 0
    s_cbranch_scc1 AUX_w
    """)
    poll(A, "AUX_p2", "buffer_load_dwordx4 v[8:11], v5, s[60:63], s28 offen sc1", q4_ok(8), sleep=8)
    A(f"""
    s_cmp_lg_u32 s2, 0
    s_cbranch_scc1 AUX_w
    s_add_u32 s26, s41, 1
    v_mov_b32 v8, s26
    s_mov_b64 exec, 1
    buffer_store_dword v8, off, s[60:63], 0 sc1
    s_mov_b64 exec, -1
    """)
    A.label("AUX_w")
    A("""
    s_waitcnt vmcnt(0)
    s_barrier
    """)
    stamp(A, 4)
    S1, S2 = 40, 48
    A(f"""
    v_lshrrev_b32 v1, 3, v0              ; dgrp 0..63
    v_and_b32 v2, 7, v0
    v_lshlrev_b32 v3, 8, v1
    v_lshl_add_u32 v3, v2, 4, v3
    s_lshr_b32 s24, s2, 1
    s_mul_i32 s24, s24, {HTB}
    s_and_b32 s25, s2, 1
    s_lshl_b32 s25, s25, 7
    s_add_u32 s24, s24, s25
    s_add_u32 s24, s24, {WS_HT:#x}
    """)
    for i in range(7):
        A(f"buffer_load_dwordx4 {v(X+4*i,4)}, v3, s[60:63], s24 offen sc1")
        if i < 6:
            A(f"s_add_u32 s24, s24, 16384")
    for i in range(16):
        A(f"v_mov_b32 v{S1+i}, 0")
    for i in range(7):
        A(f"s_waitcnt vmcnt({6-i})")
        for q in range(4):
            A(f"""
            v_lshlrev_b32 v56, 16, v{X+4*i+q}
            v_and_b32 v57, 0xffff0000, v{X+4*i+q}
            v_pk_add_f32 {v(S1+2*q,2)}, {v(S1+2*q,2)}, v[56:57]
            v_pk_fma_f32 {v(S2+2*q,2)}, v[56:57], v[56:57], {v(S2+2*q,2)}
            """)
    A(f"""
    v_mul_u32_u24 v4, 528, v1
    v_lshl_add_u32 v4, v2, 5, v4
    ds_write_b128 v4, {v(S1,4)}
    ds_write_b128 v4, {v(S1+4,4)} offset:16
    ds_write_b128 v4, {v(S2,4)} offset:256
    ds_write_b128 v4, {v(S2+4,4)} offset:272
    v_and_b32 v5, 127, v0
    v_lshrrev_b32 v6, 7, v0
    v_mul_u32_u24 v7, {16*528}, v6
    v_lshl_add_u32 v7, v5, 2, v7
    s_waitcnt lgkmcnt(0)
    s_barrier
    """)
    for i in range(16):
        A(f"ds_read_b32 v{X+i}, v7 offset:{528*i}")
    A("s_waitcnt lgkmcnt(0)")
    for st in (8, 4, 2, 1):
        for i in range(st):
            A(f"v_add_f32 v{X+i}, v{X+i}, v{X+i+st}")
    A(f"""
    v_lshlrev_b32 v7, 2, v0
    ds_write_b32 v7, v{X} offset:{64*528}
    s_waitcnt lgkmcnt(0)
    s_barrier
    s_cmp_lg_u32 s22, 0
    s_cbranch_scc1 AUX_done
    """)
    for i in range(4):
        A(f"ds_read_b32 v{X+i}, v7 offset:{64*528 + 512*i}")
        A(f"ds_read_b32 v{X+4+i}, v7 offset:{64*528 + 512*i + 256}")
    A(f"""
    s_lshl_b32 s26, s2, 8
    s_add_u32 s27, s26, {WS_MEAN:#x}
    s_add_u32 s26, s26, {WS_R2:#x}
    s_waitcnt lgkmcnt(0)
    v_add_f32 v{X}, v{X}, v{X+1}
    v_add_f32 v{X+2}, v{X+2}, v{X+3}
    v_add_f32 v{X+4}, v{X+4}, v{X+5}
    v_add_f32 v{X+6}, v{X+6}, v{X+7}
    v_add_f32 v40, v{X}, v{X+2}
    v_add_f32 v41, v{X+4}, v{X+6}
    v_mul_f32 v40, 0x3b124925, v40       ; mean
    v_cvt_pk_bf16_f32 v42, v40, v40
    v_lshlrev_b32 v42, 16, v42
    buffer_store_dword v42, v7, s[60:63], s27 offen sc1
    v_mul_f32 v41, 0x3b124925, v41
    v_fma_f32 v41, -v40, v40, v41
    """)
    var_to_s(A, 41)
    A(f"""
    v_mul_f32 v41, v41, v41
    v_rcp_f32 v41, v41
    v_and_b32 v2, 63, v0
    buffer_store_dword v41, v7, s[60:63], s26 offen sc1
    s_waitcnt vmcnt(0)
    """)
    flag_set(A, WS_F3, "s2", 8, NREP, None)
    A.label("AUX_done")
    stamp_end(A)
    A("s_endpgm")


def gen_phase1(A):
    XU = 112
    A(f"""
    s_sub_u32 s3, s2, {NAUX}
    s_and_b32 s26, s3, 7
    s_mul_i32 s26, s26, 28
    s_lshr_b32 s27, s3, 3
    s_add_u32 s43, s26, s27              ; dpair
    s_lshl_b32 s27, s43, 10
    v_lshl_add_u32 v3, v0, 1, s27
    s_lshr_b32 s28, s22, 2               ; channel
    s_lshl_b32 s26, s43, 1
    s_add_u32 s26, s26, s28
    s_lshl_b32 s26, s26, 1
    v_mov_b32 v31, s26                   ; 2*d
    s_mul_i32 s31, s28, {KG_CH}
    s_lshl_b32 s26, s23, 8
    s_add_u32 m0, s31, s26
    global_load_ushort v10, v31, s[16:17]
    global_load_ushort v4, v3, s[4:5]
    global_load_ushort v5, v3, s[6:7]
    global_load_ushort v6, v3, s[8:9]
    global_load_ushort v7, v3, s[10:11]
    global_load_ushort v8, v3, s[12:13]
    global_load_ushort v9, v3, s[14:15]
    global_load_ushort v29, v31, s[18:19]
    s_lshl_b32 s26, s3, 3
    s_add_u32 s26, s26, s22
    s_mul_i32 s27, s26, 0xaaab
    s_lshr_b32 s27, s27, 17              ; wi / 3
    s_mul_i32 s32, s27, 3
    s_sub_u32 s26, s26, s32              ; wi % 3
    s_mul_i32 s32, s27, 0xaaab
    s_lshr_b32 s32, s32, 17
    s_mul_i32 s33, s32, 3
    s_sub_u32 s27, s27, s33              ; matrix = (wi/3) % 3
    s_min_u32 s32, s32, 195
    s_lshl_b32 s32, s32, 13
    v_lshl_add_u32 v16, v2, 7, s32
    s_cmp_eq_u32 s27, 0
    s_cselect_b32 s34, s48, s50
    s_cselect_b32 s35, s49, s51
    s_cmp_eq_u32 s27, 2
    s_cselect_b32 s34, s52, s34
    s_cselect_b32 s35, s53, s35
    s_cmp_eq_u32 s26, 0
    s_cselect_b64 exec, -1, 1
    {"global_load_dword v128, v16, s[34:35]" if "nopf0" not in OPT else "global_load_dword v128, v31, s[34:35]"}
    s_mov_b64 exec, -1
    s_mov_b32 s32, -1
    s_mov_b32 s33, 0x00ffffff
    v_mov_b32 v30, 0x00003f80
    ds_write_addtid_b32 v30
    ; tile ids for later phases
    s_and_b32 s24, s3, 3
    s_lshl_b32 s24, s24, 2
    s_bfe_u32 s25, s3, 0x20003
    s_add_u32 s24, s24, s25              ; tblk
    s_bfe_u32 s46, s3, 0x10002
    s_mul_i32 s25, s46, 7
    s_lshr_b32 s47, s3, 5                ; dblk
    s_add_u32 s25, s25, s47              ; fblk
    """)
    gen_p0(A, 9)
    A(f"""
    s_add_u32 s58, s58, KG_TABLE-PC0
    s_addc_u32 s59, s59, 0
    v_lshlrev_b32 v18, 4, v0
    v_add_u32 v19, 8192, v18
    v_add_u32 v17, 16384, v18
    global_load_dwordx4 v[12:15], v17, s[58:59]
    global_load_dwordx4 v[20:23], v18, s[58:59]
    global_load_dwordx4 v[24:27], v19, s[58:59]
    """)
    NY = 3
    stamp(A, 1)
    ACC = 32
    AR, AI = 44, 45
    BP, CP = 46, 48
    A2, B2 = 50, 51
    T0, T1 = 52, 54
    P = {r: 56 + 2 * (r - 1) for r in range(1, 8)}
    Z8, Q1 = 70, 72
    QA, QB = 74, 76
    BA, BB = 78, 80
    X0 = 82
    E0, E1, E2 = 86, 88, 90
    W0 = 92
    FR = 44
    A(f"""
    s_waitcnt vmcnt({7+NY})
    v_lshlrev_b32 v28, 16, v10
    v_mul_f32 v28, 0x3fb8aa3b, v28
    v_exp_f32 v28, v28
    v_lshlrev_b32 v{AR}, 16, v4
    v_cvt_pk_bf16_f32 v28, v28, v28
    v_lshlrev_b32 v{AI}, 16, v5
    v_lshlrev_b32 v28, 16, v28           ; dt
    """)
    A(f"""
    v_mul_f32 v{A2}, v28, v{AR}
    v_mul_f32 v{B2}, v28, v{AI}
    v_mul_f32 v{A2}, 0x3fb8aa3b, v{A2}
    v_mul_f32 v{B2}, 0.15915494, v{B2}
    v_mul_f32 v{E1}, 0x41000000, v{A2}
    v_mul_f32 v{E1+1}, 0x41000000, v{B2}
    v_mul_f32 v{E2}, 0x43000000, v{A2}
    v_mul_f32 v{E2+1}, 0x43000000, v{B2}
    v_exp_f32 v{E0}, v{A2}
    v_fract_f32 v{E0+1}, v{B2}
    v_exp_f32 v{E1}, v{E1}
    v_fract_f32 v{E1+1}, v{E1+1}
    v_exp_f32 v{E2}, v{E2}
    v_fract_f32 v{E2+1}, v{E2+1}
    v_cos_f32 v{P[1]}, v{E0+1}
    v_sin_f32 v{P[1]+1}, v{E0+1}
    v_cos_f32 v{Z8}, v{E1+1}
    v_sin_f32 v{Z8+1}, v{E1+1}
    v_cos_f32 v{Q1}, v{E2+1}
    v_sin_f32 v{Q1+1}, v{E2+1}
    v_pk_mul_f32 {v(P[1],2)}, {v(P[1],2)}, {v(E0,2)} op_sel_hi:[1,0]
    v_pk_mul_f32 {v(Z8,2)}, {v(Z8,2)}, {v(E1,2)} op_sel_hi:[1,0]
    v_pk_mul_f32 {v(Q1,2)}, {v(Q1,2)}, {v(E2,2)} op_sel_hi:[1,0]
    """)
    rowof = {}
    for T in range(3):
        for g in range(4):
            for r in range(4):
                e = KALPHA[T][g] + [r, 128 * r, 2 * r][T]
                if e <= 2048:
                    rowof[e] = KG_TB[T] + 4 * g + r
    wsel = [0]

    def emit(row, reg, neg=""):
        w = W0 + wsel[0]; wsel[0] ^= 1
        A(f"v_cvt_pk_bf16_f32 v{w}, v{reg}, {neg}v{reg+1}")
        A(f"ds_write_addtid_b32 v{w} offset:{row*KG_ROW}")

    emitA = lambda e, reg: emit(rowof[e], reg)
    mulA = lambda d, x, y: cmul(A, d, x, y, T0)
    emitA(1, P[1])
    mulA(P[2], P[1], P[1]); emitA(2, P[2])
    mulA(P[3], P[2], P[1]); emitA(3, P[3])
    mulA(P[4], P[2], P[2]); emitA(4, P[4])
    mulA(P[5], P[4], P[1]); emitA(5, P[5])
    mulA(P[6], P[4], P[2]); emitA(6, P[6])
    mulA(P[7], P[4], P[3]); emitA(7, P[7])
    cur = Q1
    for i in range(1, 17):
        if i > 1:
            nxt = QA if cur != QA else QB
            mulA(nxt, cur, Q1)
            cur = nxt
        if i == int(OPT.get("f1at", 3)):
            gen_f1_publish(A, "P1_f1", younger=0)
            A(f"""
            s_cmp_lt_u32 s22, 4
            s_cbranch_scc1 P1_nowd
            v_min_u32 v16, 55, v2
            s_lshr_b32 s26, s3, 3                ; q
            s_lshl_b32 s27, s26, 2
            s_add_u32 s27, s27, s23              ; 4q + w
            s_mul_i32 s28, s27, {112*128}
            v_lshl_add_u32 v17, v16, 7, s28
            v_mul_u32_u24 v18, 0x124a, v16
            v_lshrrev_b32 v18, 16, v18
            v_mul_u32_u24 v18, {3584-14*128}, v18
            v_lshl_add_u32 v18, v16, 7, v18
            s_mul_i32 s28, s27, {4*3584}
            s_mul_i32 s32, s46, 1792
            s_add_u32 s28, s28, s32
            v_add_u32 v18, s28, v18
            v_add_u32 v19, {56*128}, v17
            """)
            if "pf1" in OPT:
                A("""
                global_load_dword v128, v18, s[48:49]
                global_load_dword v129, v18, s[50:51]
                global_load_dword v130, v17, s[52:53]
                global_load_dword v131, v19, s[52:53]
                """)
            A.label("P1_nowd")
            stamp(A, 2)
        emitA(128 * i, cur)
        for r in {1: range(1, 8), 2: (2, 4, 6), 3: (2, 4, 6), 4: (4,), 5: (4,), 6: (4,), 7: (4,)}.get(i, ()):
            mulA(X0, cur, P[r])
            emitA(128 * i + r, X0)
    A(f"""
    s_lshr_b32 s28, s22, 2
    v_lshlrev_b32 v{BP}, 16, v6
    v_lshlrev_b32 v{BP+1}, 16, v7
    v_lshlrev_b32 v{CP}, 16, v8
    v_lshlrev_b32 v{CP+1}, 16, v9
    v_lshlrev_b32 v29, 16, v29
    v_and_b32 v4, 255, v0
    v_cmp_eq_u32 vcc, 0, v4
    """)
    cmul(A, BA, CP, BP, T0)
    A(f"""
    v_cndmask_b32 v29, 0, v29, vcc
    v_pk_mul_f32 {v(BA,2)}, {v(BA,2)}, v[28:29] op_sel_hi:[1,0]
    """)
    curb = BA
    for j in range(16):
        if j > 0:
            nxt = BB if curb == BA else BA
            cmul(A, nxt, curb, Z8, T1)
            curb = nxt
        emit(KG_TB[3] + j, curb, "-")
    A(f"""
    v_lshlrev_b32 v5, 7, v2
    s_and_b32 s40, s2, {NREP-1}
    s_mul_i32 s40, s40, {REPS}
    s_add_u32 s31, s40, {WS_F1:#x}
    s_waitcnt lgkmcnt(0)
    """)
    stamp(A, 3)
    items = []
    for ks in range(4):
        for q, T in enumerate((3, 0, 1, 2)):
            b = FR + 16 * ks + 4 * q
            items.append(('ds', f"ds_read_b128 {v(b,4)}, v15 offset:{KG_TB[T]*KG_ROW + ks*64}", R(b, 4)))
    for ks in range(4):
        for T in range(3):
            a, b = FR + 16 * ks + 4 + 4 * T, FR + 16 * ks
            c = "0" if ks == 0 else v(ACC + 4 * T, 4)
            items.append(('use', f"v_mfma_f32_16x16x32_bf16 {v(ACC+4*T,4)}, {v(a,4)}, {v(b,4)}, {c}", R(a, 4) + R(b, 4)))
    Sched().run(items, A)
    A(f"""
    s_barrier                            ; Ba
    s_nop 3
    v_add_f32 v{ACC}, v{ACC}, v29
    s_nop 0
    """)
    for T in range(3):
        for r in range(4):
            beta = [r, 128 * r, 2 * r][T]
            A(f"ds_write_b32 v{12+T}, v{ACC+4*T+r} offset:{4*KPOS(beta)}")
    A(f"""
    v_mov_b32 v8, 0
    v_mov_b32 v9, 0
    v_mov_b32 v10, 0
    v_mov_b32 v11, 0
    s_mul_i32 s29, s28, {CV_D}
    s_add_u32 s29, s29, {CV_BASE}
    s_mul_i32 s26, s23, {CV_KS}
    s_add_u32 s26, s26, s29
    s_add_u32 s26, s26, 4080
    s_mul_i32 s27, s23, {CV_US}
    s_add_u32 s27, s27, s29
    s_add_u32 s27, s27, {CV_UOFF - 5*16}
    v_mov_b32 v7, s27
    v_mov_b32 v16, s26
    v_cmp_gt_u32 vcc, 5, v2
    s_cmp_lt_u32 s23, 2
    s_cselect_b32 s30, 34, 5
    v_cndmask_b32 v7, v7, v16, vcc
    v_lshl_add_u32 v7, v2, 4, v7
    v_cmp_gt_u32 vcc, s30, v2
    s_and_saveexec_b64 s[32:33], vcc
    ds_write_b128 v7, v[8:11]
    s_mov_b64 exec, s[32:33]
    v_lshlrev_b32 v16, 5, v0
    s_lshl_b32 s30, s43, 14
    s_add_u32 s30, s30, {WS_XU:#x}
    s_waitcnt lgkmcnt(0)
    s_barrier                            ; Bb
    """)
    items = []
    for e in range(8):
        b = FR + 4 * e
        items.append(('ds', f"ds_read2st64_b32 {v(b,2)}, v{20+e} offset0:0 offset1:34", R(b, 2)))
        items.append(('ds', f"ds_read2st64_b32 {v(b+2,2)}, v{20+e} offset0:68 offset1:102", R(b + 2, 2)))
    items.append(('op', "v_lshl_add_u32 v7, v4, 4, s29"))
    for e in range(8):
        b = FR + 4 * e
        items.append(('use', f"v_pk_add_f32 {v(b,2)}, {v(b,2)}, {v(b+2,2)}", R(b, 4)))
        items.append(('op', f"v_add_f32 v{b}, v{b}, v{b+1}"))
        if e % 2 == 1:
            items.append(('op', f"v_cvt_pk_bf16_f32 v{32+e//2}, v{b-4}, v{b}"))
    Sched().run(items, A)
    A(f"""
    v_mov_b32 v36, v33
    v_mov_b32 v37, v34
    ds_write_b128 v7, v[32:35]
    ds_write_b64 v7, v[32:33] offset:{2*CV_KS - 8}
    ds_write_b64 v7, v[34:35] offset:{2*CV_KS}
    ds_write_b32 v7, v32 offset:{CV_KS - 4}
    ds_write_b64 v7, v[36:37] offset:{CV_KS}
    ds_write_b32 v7, v35 offset:{CV_KS + 8}
    ds_write_b32 v7, v32 offset:{3*CV_KS - 12}
    ds_write_b64 v7, v[36:37] offset:{3*CV_KS - 8}
    ds_write_b32 v7, v35 offset:{3*CV_KS}
    """)


def gen_xu(A):
    XU = 112
    U0 = CV_UOFF + 448
    A(f"""
    v_and_b32 v7, 1, v0
    v_mul_u32_u24 v7, {CV_D}, v7
    v_lshrrev_b32 v16, 1, v0
    v_lshl_add_u32 v7, v16, 4, v7
    v_add_u32 v7, {CV_BASE}, v7
    v_lshlrev_b32 v16, 5, v0
    s_add_u32 s26, s30, 8192
    s_cmp_lg_u32 s22, 3
    s_cbranch_scc1 P1_f_got
    """)
    poll(A, "P1_f", "buffer_load_dwordx4 v[8:11], v5, s[60:63], s31 offen sc1", q4_ok(8), sleep=2)
    A(f"""
    s_barrier                            ; Bf
    """)
    stamp(A, 4)
    A(f"""
    buffer_load_dwordx4 {v(XU+4,4)}, v16, s[60:63], s30 offen offset:16 sc1
    buffer_load_dwordx4 {v(XU+12,4)}, v16, s[60:63], s26 offen offset:16 sc1
    buffer_load_dwordx4 {v(XU,4)}, v16, s[60:63], s30 offen sc1
    buffer_load_dwordx4 {v(XU+8,4)}, v16, s[60:63], s26 offen sc1
    """)
    for hf in range(2):
        u = XU + 4 + 8 * hf
        o = U0 + 2048 * hf
        A(f"""
        s_waitcnt vmcnt({3-hf})
        ds_write_b128 v7, {v(u,4)} offset:{o}
        v_alignbit_b32 v{44+4*hf}, v{u+1}, v{u}, 16
        v_alignbit_b32 v{46+4*hf}, v{u+2}, v{u+1}, 16
        v_alignbit_b32 v{47+4*hf}, v{u+3}, v{u+2}, 16
        ds_write_b16 v7, v{u} offset:{o + CV_US + 2}
        ds_write_b32 v7, v{44+4*hf} offset:{o + CV_US + 4}
        ds_write_b64 v7, {v(46+4*hf,2)} offset:{o + CV_US + 8}
        ds_write_b16_d16_hi v7, v{u+3} offset:{o + CV_US + 16}
        """)
    A(f"""
    s_waitcnt vmcnt(1)
    ds_write_b128 v7, {v(XU,4)} offset:{CV_XOFF}
    s_waitcnt vmcnt(0)
    ds_write_b128 v7, {v(XU+8,4)} offset:{CV_XOFF+2048}
    """)
    stamp(A, 5)


def gen_conv(A):
    XR, ACC, FP = 12, 20, 40
    A(f"""
    v_and_b32 v4, 15, v2                 ; i / n
    v_lshrrev_b32 v5, 4, v2              ; g
    s_lshr_b32 s28, s22, 1               ; dsel
    s_and_b32 s30, s22, 1                ; role
    s_mul_i32 s27, s28, {CV_D}
    s_add_u32 s27, s27, {CV_BASE}
    v_and_b32 v36, 3, v4
    v_sub_u32 v36, 3, v36
    v_mul_u32_u24 v36, {CV_KS}, v36
    v_lshrrev_b32 v37, 2, v4
    v_sub_u32 v37, v5, v37
    v_lshl_add_u32 v36, v37, 4, v36
    v_add_u32 v36, {4080 - 512*7}, v36
    v_add_u32 v36, s27, v36              ; F addr
    v_and_b32 v37, 1, v4
    v_sub_u32 v37, 1, v37
    v_mul_u32_u24 v37, {CV_US}, v37
    v_lshrrev_b32 v38, 1, v4
    v_lshl_add_u32 v37, v38, 6, v37
    v_lshl_add_u32 v37, v5, 4, v37
    v_add_u32 v37, {CV_UOFF + 448}, v37
    v_add_u32 v37, s27, v37              ; G addr
    v_lshlrev_b32 v6, 7, v5
    v_lshl_add_u32 v6, v4, 2, v6
    s_add_u32 s26, s27, {CV_XOFF}
    v_add_u32 v6, s26, v6
    v_lshl_add_u32 v7, v2, 4, s26
    v_mul_u32_u24 v38, {HTB}, v5
    v_lshl_add_u32 v38, v4, 4, v38
    s_lshl_b32 s33, s43, 1
    s_add_u32 s33, s33, s28
    s_lshl_b32 s33, s33, 8
    s_add_u32 s33, s33, {WS_HT:#x}         ; HT + d*256
    s_waitcnt lgkmcnt(0)
    s_barrier                            ; Bc
    """)
    stamp(A, 6)
    A("""
    s_cmp_eq_u32 s30, 0
    s_cbranch_scc0 CV_roleB
    """)
    for role, tiles in ((0, (7, 6, 1, 0)), (1, (5, 4, 3, 2))):
        if role == 1:
            A.label("CV_roleB")
        nf = max(tiles) + 1

        def reads(base):
            out = []
            for a in range(nf):
                out.append(('ds', f"ds_read_b128 {v(base+4*a,4)}, v36 offset:{512*(7-a)}", R(base + 4 * a, 4)))
                out.append(('ds', f"ds_read_b128 {v(base+32+4*a,4)}, v37 offset:{512*a}", R(base + 32 + 4 * a, 4)))
            return out

        def mfmas(base):
            pairs = [(a, c - a, q) for q, c in enumerate(tiles) for a in range(c + 1)]
            pairs.sort(key=lambda p: (max(p[0], p[1]), p[2]))
            return [('use', f"v_mfma_f32_16x16x32_bf16 {v(ACC+4*q,4)}, {v(base+32+4*b,4)}, {v(base+4*a,4)}, {v(ACC+4*q,4)}",
                     R(base + 32 + 4 * b, 4) + R(base + 4 * a, 4)) for a, b, q in pairs]

        def step(cur, nxt):
            it = [('op', "v_subrev_u32 v36, 64, v36"), ('op', "v_subrev_u32 v37, 64, v37")]
            rs = reads(nxt)
            i = 0
            for m in mfmas(cur):
                it.append(m)
                if i < len(rs):
                    it.append(rs[i]); i += 1
            return it + rs[i:]

        for q, c in enumerate(tiles):
            A(f"ds_read2_b32 {v(XR+2*q,2)}, v6 offset0:{0} offset1:16" if c == 0 else
              f"ds_read_b32 v{XR+2*q}, v6 offset:{512*c}\nds_read_b32 v{XR+2*q+1}, v6 offset:{512*c+64}")
        A("s_waitcnt lgkmcnt(0)")
        S = Sched()
        S.run(reads(FP), A)
        for q in range(4):
            A(f"""
            v_lshlrev_b32 v{ACC+4*q}, 16, v{XR+2*q}
            v_and_b32 v{ACC+4*q+1}, 0xffff0000, v{XR+2*q}
            v_lshlrev_b32 v{ACC+4*q+2}, 16, v{XR+2*q+1}
            v_and_b32 v{ACC+4*q+3}, 0xffff0000, v{XR+2*q+1}
            """)
        A("s_mov_b32 s36, 4")
        A.label(f"CV_loop{role}")
        S.run(step(FP, FP + 64) + step(FP + 64, FP), A)
        A(f"""
        s_sub_u32 s36, s36, 1
        s_cmp_lg_u32 s36, 0
        s_cbranch_scc1 CV_loop{role}
        s_nop 6
        """)
        for q, c in enumerate(tiles):
            A(f"""
            v_cvt_pk_bf16_f32 v{XR+2*q}, v{ACC+4*q}, v{ACC+4*q+1}
            v_cvt_pk_bf16_f32 v{XR+2*q+1}, v{ACC+4*q+2}, v{ACC+4*q+3}
            ds_write_b32 v6, v{XR+2*q} offset:{512*c}
            ds_write_b32 v6, v{XR+2*q+1} offset:{512*c+64}
            """)
        A(f"""
        s_add_u32 s34, s33, {2*tiles[1]*HTB:#x}
        s_add_u32 s35, s33, {2*tiles[3]*HTB:#x}
        s_waitcnt lgkmcnt(0)
        ds_read_b128 v[20:23], v7 offset:{512*tiles[1]}
        ds_read_b128 v[24:27], v7 offset:{512*tiles[3]}
        """)
        if role == 0:
            A("s_branch CV_out")
    A.label("CV_out")
    A(f"""
    s_waitcnt lgkmcnt(1)
    buffer_store_dwordx4 v[20:23], v38, s[60:63], s34 offen sc1
    s_waitcnt lgkmcnt(0)
    buffer_store_dwordx4 v[24:27], v38, s[60:63], s35 offen sc1
    """)
    stamp(A, 7)


def gen_consumer(A):
    gen_xu(A)
    gen_conv(A)
    ACC = 24
    FP = 152
    acc = lambda m, tt: ACC + 16 * (m * 4 + tt)
    A(f"""
    v_lshrrev_b32 v4, 5, v2              ; h
    v_bfe_u32 v3, v2, 2, 2               ; r
    v_lshl_add_u32 v5, v4, 2, v3
    v_lshlrev_b32 v5, 8, v5
    v_bfe_u32 v6, v2, 4, 1
    v_lshl_add_u32 v5, v6, 5, v5
    v_and_b32 v6, 3, v2
    v_lshl_add_u32 v5, v6, 3, v5
    v_xor_b32 v6, s23, v3
    v_lshl_add_u32 v8, v6, 6, v5
    s_mov_b32 s33, 0
    """)
    for tt in range(4):
        A(f"""
        v_xor_b32 v6, {tt}, v3
        v_lshl_add_u32 v{9+tt}, v6, 6, v5
        """)
    A(f"""
    v_lshlrev_b32 v18, 7, v2
    v_mov_b32 v19, v3
    s_waitcnt vmcnt(0)
    s_barrier                            ; BH
    s_cmp_lg_u32 s22, 0
    s_cbranch_scc1 C_nf2
    """)
    flag_set(A, WS_F2, "s2", 64, NREP, None)
    A("s_nop 1")
    A("v_mov_b32 v3, v19")
    A.label("C_nf2")
    stamp(A, 8)
    for i in range(128):
        A(f"v_mov_b32 v{ACC+i}, 0")
    A(f"""
    s_add_u32 s28, s40, {WS_F2:#x}
    s_cmp_lg_u32 s22, 0
    s_cbranch_scc1 C_f2_got
    """)
    poll(A, "C_f2", f"buffer_load_dwordx4 {v(FP,4)}, v18, s[60:63], s28 offen sc1", q4_ok(FP))
    A("s_barrier                            ; BS")
    stamp(A, 9)

    def fa(base, kk, m): return base + 24 * kk + 4 * m
    def fb(base, kk, tt): return base + 24 * kk + 8 + 4 * tt

    def reads(base):
        out = []
        for kk in range(2):
            for kind, i in [('b', 0), ('a', 0), ('a', 1), ('b', 1), ('b', 2), ('b', 3)]:
                for j in range(2):
                    if kind == 'a':
                        d = fa(base, kk, i) + 2 * j
                        out.append(('ds', f"ds_read_b64_tr_b16 {v(d,2)}, v13 offset:{8192*(i+1) + 4096*kk + 2048*j}", R(d, 2)))
                    else:
                        d = fb(base, kk, i) + 2 * j
                        out.append(('ds', f"ds_read_b64_tr_b16 {v(d,2)}, v{14+i} offset:{4096*kk + 2048*j}", R(d, 2)))
        return out

    def addr_setup():
        return [('op', t) for t in f"""v_add_u32 v13, s33, v8
            v_add_u32 v14, s33, v9
            v_add_u32 v15, s33, v10
            v_add_u32 v16, s33, v11
            v_add_u32 v17, s33, v12
            s_add_u32 s33, s33, {G1_STAGE}
            s_cmp_eq_u32 s33, {G1_SLOTS*G1_STAGE}
            s_cselect_b32 s33, 0, s33""".split("\n")]

    def step(cur, nxt, bar):
        ms = []
        for kk in range(2):
            for tt in range(4):
                for m in range(2):
                    a, b = fa(cur, kk, m), fb(cur, kk, tt)
                    ms.append(('use', f"v_mfma_f32_32x32x16_bf16 {v(acc(m,tt),16)}, {v(a,4)}, {v(b,4)}, {v(acc(m,tt),16)}", R(a, 4) + R(b, 4)))
        rs = reads(nxt)
        ad = addr_setup()
        it = [ms[0]] + ad[:4] + [ms[1]] + ad[4:]
        if bar:
            it += [ms[2], ('drain',), ('op', "s_barrier")]
            rest = ms[3:]
        else:
            rest = ms[2:]
        i = 0
        for m in rest:
            it.append(m)
            for _ in range(2):
                if i < len(rs):
                    it.append(rs[i]); i += 1
        return it + rs[i:]

    S = Sched()
    S.run(addr_setup(), A)
    A("s_barrier                            ; B0")
    stamp(A, 10)
    S.run(reads(FP), A)
    A("s_mov_b32 s36, 7")
    A.label("C_loop3")
    S.run(step(FP, FP + 48, True) + step(FP + 48, FP, False), A)
    A(f"""
    s_sub_u32 s36, s36, 1
    s_cmp_lg_u32 s36, 0
    s_cbranch_scc1 C_loop3
    """)
    stamp(A, 11)
    CS, M, O = FP, FP + 32, FP + 40
    A(f"""
    s_lshl_b32 s26, s23, 7
    v_lshl_add_u32 v6, v4, 4, s26
    v_add_u32 v6, {G1_X}, v6
    v_and_b32 v7, 31, v2
    v_lshlrev_b32 v7, 2, v7
    v_add_u32 v7, {G1_X+1024}, v7
    s_waitcnt lgkmcnt(0)
    """)
    for tt in range(4):
        A(f"ds_read_b32 v{M+2*tt}, v7 offset:{128*tt}")
    for q in range(4):
        for m in range(2):
            A(f"ds_read_b128 {v(CS+16*m+4*q,4)}, v6 offset:{512*m + 32*q}")
    A(f"""
    s_lshl_b32 s26, s24, 2
    s_mul_i32 s26, s26, {HAT}
    s_lshl_b32 s29, s25, 3
    s_lshl_b32 s30, s23, 1
    s_add_u32 s29, s29, s30
    s_lshl_b32 s29, s29, 10
    s_add_u32 s26, s26, s29
    s_add_u32 s26, s26, {WS_HA:#x}
    v_lshlrev_b32 v6, 4, v2
    s_waitcnt lgkmcnt(0)
    s_barrier
    """)
    for tt in range(4):
        for q in range(4):
            g_, u_ = acc(0, tt) + 4 * q, acc(1, tt) + 4 * q
            o = O + 8 * (tt & 1) + 2 * q
            for h in range(2):
                A(f"v_pk_fma_f32 {v(g_+2*h,2)}, {v(CS+4*q+2*h,2)}, {v(M+2*tt,2)}, {v(g_+2*h,2)} op_sel_hi:[1,0,1] neg_lo:[0,1,0] neg_hi:[0,1,0]")
                A(f"v_pk_fma_f32 {v(u_+2*h,2)}, {v(CS+16+4*q+2*h,2)}, {v(M+2*tt,2)}, {v(u_+2*h,2)} op_sel_hi:[1,0,1] neg_lo:[0,1,0] neg_hi:[0,1,0]")
            for i in range(4):
                A(f"v_max_f32 v{g_+i}, 0, v{g_+i}")
            for h in range(2):
                A(f"v_pk_mul_f32 {v(g_+2*h,2)}, {v(g_+2*h,2)}, {v(u_+2*h,2)}")
            for h in range(2):
                A(f"v_cvt_pk_bf16_f32 v{o+h}, v{g_+2*h}, v{g_+2*h+1}")
            if q & 1:
                A(f"buffer_store_dwordx4 {v(o-2,4)}, v6, s[60:63], s26 offen offset:{1024*(q>>1)} sc1")
        if tt < 3:
            A(f"s_add_u32 s26, s26, {HAT}")
    ACC4, AF, BF, NB = 16, 80, 160, 6
    A(f"""
    v_lshl_add_u32 v5, v4, 2, v3
    v_lshlrev_b32 v5, 7, v5
    v_bfe_u32 v7, v2, 4, 1
    v_lshl_add_u32 v5, v7, 5, v5
    v_and_b32 v7, 3, v2
    v_lshl_add_u32 v5, v7, 3, v5
    v_lshrrev_b32 v3, 1, v3
    s_lshl_b32 s28, s23, 12
    v_lshl_add_u32 v8, v3, 6, v5
    v_add_u32 v8, s28, v8
    v_xor_b32 v9, 64, v8
    v_add_u32 v10, 0x10000, v8
    v_add_u32 v11, 0x10000, v9
    v_add_u32 v12, 0x20000, v8
    v_add_u32 v13, 0x20000, v9
    s_and_b32 s26, s23, 1
    s_lshr_b32 s27, s23, 1
    v_xor_b32 v7, s26, v3
    v_lshl_add_u32 v14, v7, 6, v5
    s_lshl_b32 s28, s27, 12
    s_add_u32 s28, s28, {P4_X}
    v_add_u32 v14, s28, v14
    s_lshl_b32 s28, s24, 1
    s_add_u32 s28, s28, s46
    s_lshl_b32 s28, s28, 1
    s_mul_i32 s30, s28, {HAT}
    s_lshl_b32 s28, s23, 11
    s_add_u32 s30, s30, s28
    s_add_u32 s30, s30, {WS_HA:#x}
    s_add_u32 s31, s30, {HAT}
    s_lshl_b32 s34, s24, 9
    s_add_u32 s34, s34, {WS_F4:#x}
    s_and_b32 s28, s25, 3
    s_lshl_b32 s28, s28, 7
    s_lshr_b32 s32, s25, 2
    s_lshl_b32 s32, s32, 2
    s_add_u32 s28, s28, s32
    s_add_u32 s28, s28, s34
    v_mov_b32 v7, s42
    v_mul_u32_u24 v1, {2*128+12}, v2
    s_cmp_lt_u32 s25, 2
    s_cselect_b32 s32, 3, 1
    s_mov_b32 s33, 0
    v_and_b32 v15, 3, v2
    v_lshlrev_b32 v15, 7, v15
    """)
    for i in range(64):
        A(f"v_mov_b32 v{ACC4+i}, 0")
    A(f"""
    s_waitcnt vmcnt(0)
    s_barrier                            ; BX
    s_cmp_lg_u32 s23, 0
    s_cbranch_scc1 C_nf4
    s_mov_b64 exec, s[32:33]
    buffer_store_dword v7, v1, s[60:63], s28 offen sc1
    s_mov_b64 exec, -1
    """)
    A.label("C_nf4")
    stamp(A, 12)

    def ardsl(st, base):
        sl = st % 9
        out = []
        for kk in range(2):
            for dt in range(2):
                for j in range(2):
                    off = sl * 16384 + 2048 * kk + 1024 * j
                    reg = 8 + dt + 2 * (off >> 16)
                    d = base + 8 * kk + 4 * dt + 2 * j
                    out.append(('ds', f"ds_read_b64_tr_b16 {v(d,2)}, v{reg} offset:{off & 0xffff}", R(d, 2)))
        return out

    S = Sched()
    for st in range(5):
        S.run(ardsl(st, AF + 16 * st), A)
    A(f"""
    s_waitcnt lgkmcnt(0)
    s_barrier                            ; BY
    s_cmp_lg_u32 s23, 0
    s_cbranch_scc1 C_f4_got
    """)
    S = Sched()
    poll(A, "C_f4", f"buffer_load_dwordx4 {v(BF,4)}, v15, s[60:63], s34 offen sc1", q4_ok(BF))

    def bload(st):
        b = BF + 16 * (st % NB)
        for kk in range(2):
            for tt in range(2):
                A(f"buffer_load_dwordx4 {v(b+8*kk+4*tt,4)}, v6, s[60:63], s{30+tt} offen offset:{1024*kk} sc1")
        A("s_add_u32 s30, s30, 8192")
        A("s_add_u32 s31, s31, 8192")

    A("s_barrier                            ; BZ")
    stamp(A, 13)
    for st in range(NB):
        bload(st)
    issued = NB
    for st in range(14):
        a = AF + 16 * (st % 5)
        b = BF + 16 * (st % NB)
        items = []
        for kk in range(2):
            items.append(('op', f"s_waitcnt vmcnt({4*(issued-1-st) + (2 if kk == 0 else 0)})"))
            for dt in range(2):
                for tt in range(2):
                    c = ACC4 + 16 * (2 * dt + tt)
                    items.append(('use', f"v_mfma_f32_32x32x16_bf16 {v(c,16)}, {v(a+8*kk+4*dt,4)}, {v(b+8*kk+4*tt,4)}, {v(c,16)}", R(a + 8 * kk + 4 * dt, 4)))
        S.run(items, A)
        if issued < 14:
            bload(issued); issued += 1
        if st + 5 < 14:
            S.run(ardsl(st + 5, a), A)
        if st == 9:
            A("s_waitcnt lgkmcnt(0)")
            S.q = []
            A("s_barrier                            ; BR")
    A("s_nop 7")
    for w in range(4):
        if w < 3:
            A(f"s_cmp_lg_u32 s23, {w}")
            A(f"s_cbranch_scc1 C_x{w+1}")
        for i in range(1, 4):
            dst = (w + i) & 3
            for q in range(4):
                A(f"ds_write_b128 v6, {v(ACC4+16*dst+4*q,4)} offset:{dst*12288 + (i-1)*4096 + q*1024}")
        if w:
            for r in range(16):
                A(f"v_mov_b32 v{ACC4+r}, v{ACC4+16*w+r}")
        if w < 3:
            A("s_branch C_xd")
            A.label(f"C_x{w+1}")
    A.label("C_xd")
    srd(A, 8, 54, 0, L * D * 2)
    FR = 160
    A(f"""
    s_mul_i32 s28, s23, 12288
    v_add_u32 v5, s28, v6
    v_and_b32 v6, 31, v2
    s_lshl_b32 s28, s26, 7
    v_lshl_add_u32 v7, v6, 2, s28
    v_add_u32 v7, {P4_X+8192}, v7
    ds_read_b32 v196, v7
    """)
    for q in range(4):
        A(f"ds_read_b64_tr_b16 {v(FR+2*q,2)}, v14 offset:{1024*q}")
    A(f"""
    v_mul_u32_u24 v6, 896, v6
    v_lshl_add_u32 v6, v4, 4, v6
    s_lshl_b32 s28, s24, 1
    s_add_u32 s28, s28, s46
    s_lshl_b32 s28, s28, 1
    s_add_u32 s28, s28, s26
    s_mul_i32 s29, s28, {32*896}
    s_lshl_b32 s30, s47, 7
    s_add_u32 s29, s29, s30
    s_lshl_b32 s30, s27, 6
    s_add_u32 s29, s29, s30
    s_waitcnt lgkmcnt(0)
    s_barrier                            ; BE
    """)
    PR = 80
    items = []
    for q in range(4):
        for i in range(3):
            d = PR + 16 * i + 4 * q
            items.append(('ds', f"ds_read_b128 {v(d,4)}, v5 offset:{i*4096 + q*1024}", R(d, 4)))
    O = FR + 8
    for q in range(4):
        for h in range(2):
            a = ACC4 + 4 * q + 2 * h
            p0, p1, p2 = (PR + 16 * i + 4 * q + 2 * h for i in range(3))
            items.append(('use', f"v_pk_add_f32 {v(p0,2)}, {v(p0,2)}, {v(p1,2)}", R(p0, 2) + R(p1, 2)))
            items.append(('use', f"v_pk_add_f32 {v(a,2)}, {v(a,2)}, {v(p2,2)}", R(p2, 2)))
            for ln in f"""v_lshlrev_b32 v198, 16, v{FR+2*q+h}
            v_pk_add_f32 {v(a,2)}, {v(a,2)}, {v(p0,2)}
            v_and_b32 v199, 0xffff0000, v{FR+2*q+h}
            v_pk_mul_f32 {v(a,2)}, {v(a,2)}, v[196:197] op_sel_hi:[1,0]
            v_cvt_pk_bf16_f32 v200, v{a}, v{a+1}
            v_lshlrev_b32 v{a}, 16, v200
            v_and_b32 v{a+1}, 0xffff0000, v200
            v_pk_add_f32 {v(a,2)}, {v(a,2)}, v[198:199]
            v_cvt_pk_bf16_f32 v{O+2*q+h}, v{a}, v{a+1}""".split("\n"):
                items.append(('op', ln))
        if q & 1:
            o = O + 2 * (q - 1)
            for ln in f"""s_nop 1
            v_permlane32_swap_b32 v{o}, v{o+2}
            v_permlane32_swap_b32 v{o+1}, v{o+3}
            buffer_store_dwordx4 {v(o,4)}, v6, s[8:11], s29 offen offset:{32*(q>>1)}""".split("\n"):
                items.append(('op', ln))
    Sched().run(items, A)
    stamp_end(A)
    A("s_endpgm")


def gen_loader(A):
    A.label("LOADER")
    WD = 32
    A(f"""
    v_lshrrev_b32 v4, 5, v2              ; h
    v_lshrrev_b32 v9, 4, v2
    v_lshlrev_b32 v10, 2, v9
    v_and_b32 v11, 15, v2
    v_xor_b32 v10, v10, v11
    s_lshl_b32 s26, s23, 3
    v_add_u32 v9, s26, v9
    v_lshlrev_b32 v11, 8, v9
    v_lshl_add_u32 v11, v10, 4, v11
    v_mul_u32_u24 v12, 3584, v9
    v_lshl_add_u32 v12, v10, 4, v12
    s_lshl_b32 s26, s25, 8
    v_add_u32 v12, s26, v12
    v_add_u32 v13, {4*3584-1024}, v12
    s_lshl_b32 s27, s23, 11              ; q*2048
    s_mov_b32 s29, 0                     ; W soffset
    s_mul_i32 s30, s24, {HTB}
    s_add_u32 s30, s30, {WS_HT:#x}         ; h soffset
    v_and_b32 v14, 31, v2
    v_lshlrev_b32 v14, 4, v14
    v_mul_u32_u24 v15, {F*4}, v4
    v_add_u32 v14, v14, v15
    v_lshrrev_b32 v3, 3, v2
    v_and_b32 v5, 7, v2
    s_lshl_b32 s28, s23, 5
    v_add_u32 v6, s28, v3
    v_mul_u32_u24 v16, 896, v6
    v_lshl_add_u32 v16, v5, 4, v16
    s_lshl_b32 s28, s47, 7
    v_add_u32 v16, s28, v16
    v_bfe_u32 v7, v2, 4, 1
    v_lshlrev_b32 v7, 2, v7
    v_xor_b32 v7, v7, v5
    v_lshlrev_b32 v24, 7, v6
    v_lshl_add_u32 v24, v7, 4, v24
    v_add_u32 v25, 0x10000, v24
    v_add_u32 v26, 0x20000, v24
    s_lshl_b32 s28, s23, 4
    v_add_u32 v6, s28, v3
    v_lshlrev_b32 v18, 8, v6
    v_lshl_add_u32 v18, v7, 4, v18
    v_add_u32 v19, 1024, v18
    v_lshlrev_b32 v20, 2, v2
    v_and_b32 v21, 7, v2
    v_lshlrev_b32 v21, 7, v21
    s_add_u32 s38, s40, {WS_F3:#x}
    s_mov_b32 s35, 0
    """)
    srd(A, 4, 48, 0, D * F * 2)
    srd(A, 8, 50, 0, D * F * 2)
    srd(A, 12, 52, 0, D * F * 2)
    V = VM(A)
    V.q = ["pf"] * 4

    def wdma(st):
        base = (st % G1_SLOTS) * G1_STAGE
        A(f"s_add_u32 m0, s27, {base+8192}")
        A("s_nop 0")
        V.op("buffer_load_dwordx4 v12, s[4:7], s29 offen lds", ("s", st))
        V.op("buffer_load_dwordx4 v13, s[4:7], s29 offen offset:1024 lds", ("s", st))
        A(f"s_add_u32 m0, s27, {base+16384}")
        A("s_nop 0")
        V.op("buffer_load_dwordx4 v12, s[8:11], s29 offen lds", ("s", st))
        V.op("buffer_load_dwordx4 v13, s[8:11], s29 offen offset:1024 lds", ("s", st))
        A(f"s_add_u32 s29, s29, {32*3584:#x}")

    def hdma(st):
        base = (st % G1_SLOTS) * G1_STAGE
        A(f"s_add_u32 m0, s27, {base}")
        A("s_nop 0")
        V.op("buffer_load_dwordx4 v11, s[60:63], s30 offen sc1 lds", ("s", st))
        V.op("buffer_load_dwordx4 v11, s[60:63], s30 offen offset:1024 sc1 lds", ("s", st))
        A("s_add_u32 s30, s30, 8192")

    wdn = [0]

    def wdload(n):
        for _ in range(n):
            i = wdn[0]
            A(f"s_mov_b32 s35, {(i >> 2) * 128 * 896 + (i & 3) * 7168:#x}")
            V.op(f"buffer_load_dwordx4 {v(WD+4*i,4)}, v16, s[12:15], s35 offen", ("w", i // 4))
            wdn[0] += 1

    def wdwrite(st):
        off = (st % 9) * 16384
        for i in range(4):
            A(f"ds_write_b128 v{24 + (off >> 16)}, {v(WD+16*st+4*i,4)} offset:{(off & 0xffff) + 1024*i}")

    A("s_waitcnt lgkmcnt(0)")
    A("s_barrier                            ; Bf")
    stamp(A, 4)
    A("s_barrier                            ; Bc")
    stamp(A, 6)
    for st in range(4):
        wdma(st)
    wdload(int(OPT.get("n0", 0)))
    stamp(A, 7)
    A("s_barrier                            ; BH")
    stamp(A, 8)
    wdma(4); wdma(5)
    wdload(int(OPT.get("n1", 0)))
    A("s_barrier                            ; BS")
    stamp(A, 9)
    A(f"s_setprio {OPT.get('prio3', 1)}")
    for st in range(6):
        hdma(st)
    V.wait(("s", 0))
    A("s_barrier                            ; B0")
    stamp(A, 10)
    WSCH = [int(x) for x in OPT.get("wsch", "6.8.3.3.3.8.12.13").split(".")]
    wdload(min(WSCH[0], 56 - wdn[0]))
    V.wait(("s", 1), ("s", 2))
    nxt = 6
    for b in range(1, 8):
        A(f"s_barrier                            ; B{b}")
        while nxt < 14 and nxt <= 2 * b + 4:
            hdma(nxt); wdma(nxt); nxt += 1
        if b == 5:
            V.op("buffer_load_dwordx4 v[28:31], v21, s[60:63], s38 offen sc1", "f3")
        if b == 6:
            V.wait("f3")
            A(q4_ok(28))
            A("s_cbranch_scc1 L_f3_got")
            poll(A, "L_f3", "buffer_load_dwordx4 v[28:31], v21, s[60:63], s38 offen sc1", q4_ok(28))
            A(f"""
            s_lshl_b32 s26, s25, 9
            s_add_u32 s26, s26, {WS_CS:#x}
            s_mov_b32 m0, {G1_X}
            s_lshl_b32 s28, s24, 9
            """)
            V.op("buffer_load_dwordx4 v14, s[60:63], s26 offen sc1 lds", "x")
            A(f"""
            s_and_b32 s26, s23, 1
            s_lshl_b32 s26, s26, 8
            s_add_u32 s28, s28, s26
            s_add_u32 s28, s28, {WS_MEAN:#x}
            s_add_u32 m0, s26, {G1_X+1024}
            s_lshl_b32 s31, s24, 1
            """)
            V.op("buffer_load_dword v20, s[60:63], s28 offen sc1 lds", "x")
            A(f"""
            s_add_u32 s31, s31, s46
            s_lshl_b32 s31, s31, 8
            s_add_u32 s31, s31, {WS_R2:#x}
            s_mov_b32 m0, {P4_X+8192}
            s_mul_i32 s34, s24, {HTB}
            """)
            V.op("buffer_load_dword v20, s[60:63], s31 offen sc1 lds", "x")
            A(f"""
            s_lshl_b32 s28, s46, 7
            s_add_u32 s34, s34, s28
            s_lshl_b32 s28, s47, 14
            s_add_u32 s34, s34, s28
            s_add_u32 s34, s34, {WS_HT:#x}
            s_add_u32 m0, s27, {P4_X}
            s_nop 0
            """)
            V.op("buffer_load_dwordx4 v18, s[60:63], s34 offen sc1 lds", "x")
            V.op("buffer_load_dwordx4 v19, s[60:63], s34 offen offset:1024 sc1 lds", "x")
        wdload(min(WSCH[b], 56 - wdn[0]))
        if b < 6:
            V.wait(("s", 2 * b + 1), ("s", 2 * b + 2))
        if b == 6:
            V.wait("x")
    stamp(A, 11)
    A("s_setprio 0")
    A("s_barrier                            ; B8")
    assert wdn[0] == 56
    for st in range(9):
        V.wait(("w", st))
        wdwrite(st)
    V.drain("lgkmcnt(0)")
    A("s_barrier                            ; BX")
    stamp(A, 12)
    A("s_barrier                            ; BY")
    for st in range(9, 14):
        wdwrite(st)
    A("s_waitcnt lgkmcnt(0)")
    A("s_barrier                            ; BZ")
    stamp(A, 13)
    if "nopf" not in OPT:
        A(f"""
        v_subrev_u32 v3, 256, v0
        s_lshl_b32 s28, s47, 8
        v_add_u32 v3, s28, v3                ; 0..1791
        v_and_b32 v5, 1, v3
        v_mul_u32_u24 v5, {HAT}, v5
        v_lshrrev_b32 v3, 1, v3
        v_lshl_add_u32 v3, v3, 7, v5
        s_lshl_b32 s28, s24, 1
        s_add_u32 s28, s28, s46
        s_mul_i32 s28, s28, {2*HAT}
        s_add_u32 s28, s28, {WS_HA:#x}
        buffer_load_dword v5, v3, s[60:63], s28 offen sc1
        """)
    A("s_barrier                            ; BR")
    A("s_barrier                            ; BE")
    stamp_end(A)
    A("s_endpgm")


def main(path):
    ref = open(f"cdna_kernels/{NAME}.s.ref").read().split("\n")
    head = [l for l in ref if l.startswith(";") and "@launch" not in l]
    A = Asm()
    for l in head:
        A.raw(l)
    A.raw(f"; @launch grid=({GRID},1,1) block=(512,1,1) lds={LDS}")
    A.raw('.amdgcn_target "amdgcn-amd-amdhsa--gfx950"')
    A.raw(".text")
    A.raw(f".globl {KNAME}")
    A.raw(".p2align 8")
    A.raw(f".type {KNAME},@function")
    A.label(KNAME)
    A(f"""
    s_cmp_ge_u32 s2, {GRID}
    s_cbranch_scc1 EXIT
    s_load_dwordx16 s[4:19], s[0:1], {KA['A_re']}
    s_load_dwordx2 s[44:45], s[0:1], {KA['x']}
    s_load_dwordx8 s[48:55], s[0:1], {KA['Wg']}
    s_load_dwordx4 s[64:67], s[0:1], {KA['dbg']}
    s_getpc_b64 s[58:59]
    """)
    A.label("PC0")
    A(f"""
    v_lshlrev_b32 v1, 6, v0
    v_min_u32 v1, CODE_END-PC0-4, v1
    global_load_dword v127, v1, s[58:59]
    v_lshrrev_b32 v1, 6, v0
    v_and_b32 v2, 63, v0                 ; lane
    s_nop 0
    v_readfirstlane_b32 s22, v1          ; wave
    """)
    stamp_begin(A)
    A(f"""
    s_waitcnt lgkmcnt(0)
    s_and_b32 s23, s22, 3
    s_mov_b32 s20, s66
    s_mov_b32 s21, s67
    s_mov_b32 s60, s66
    s_mov_b32 s61, s67
    s_mov_b32 s62, {WS_USED:#x}
    s_mov_b32 s63, 0x00020000
    """)
    gen_p0_loads(A)
    A(f"""
    s_cmp_lt_u32 s2, {NAUX}
    s_cbranch_scc1 AUX
    """)
    gen_phase1(A)
    A("""
    s_cmp_ge_u32 s22, 4
    s_cbranch_scc1 LOADER
    """)
    gen_consumer(A)
    gen_loader(A)
    gen_aux(A)
    A.label("EXIT")
    A("s_endpgm")
    A.label("CODE_END")
    kg_table(A)
    A.raw(f""".section .rodata,"a"
.p2align 6
.amdhsa_kernel {KNAME}
  .amdhsa_next_free_vgpr 256
  .amdhsa_next_free_sgpr 96
  .amdhsa_accum_offset 256
  .amdhsa_group_segment_fixed_size 0
  .amdhsa_kernarg_size 128
  .amdhsa_user_sgpr_count 2
  .amdhsa_user_sgpr_kernarg_segment_ptr 1
  .amdhsa_system_sgpr_workgroup_id_x 1
.end_amdhsa_kernel
""")
    open(path, "w").write(A.text())


if __name__ == "__main__":
    main(sys.argv[1] if len(sys.argv) > 1 else f"km.s")
```

```python
import sys, os

NAME = "sequential_preLN__ssm_conv_s4__glu_gated_reglu__prompt"
KNAME = NAME + "_kernel"
L, D, N, F = 2048, 448, 256, 1792

WS_EPOCH = 0x0000000
WS_CS = 0x0010000
WS_R2 = 0x0020000
WS_MEAN = 0x0030000
NREP = 4
REPS = 64 * 128 + 128
WS_F1 = 0x0040000
WS_F2 = 0x0050000
WS_F3 = 0x0060000
WS_F4 = 0x0070000
WS_XU = 0x0800000
WS_HT = 0x0100000
WS_HA = 0x1000000
WS_DBG = 0x2000000
WS_SIZE = 0x10000000
WS_USED = 0x1800000
HTB = D * 256
HAT = 112 * 1024

KA = dict(x=0, A_re=8, A_im=16, B_re=24, B_im=32, C_re=40, C_im=48, log_dt=56, Dskip=64,
          B_x=72, Wg=80, Wu=88, Wd=96, out=104, dbg=112, ws=120)
STAMP = os.environ.get("STAMP", "0") == "1"
OPT = dict(kv.split("=") for kv in os.environ.get("OPT", "").split(",") if kv)
NSTAMP = 16


class Asm:
    def __init__(self):
        self.lines = []

    def __call__(self, s):
        for ln in s.strip("\n").split("\n"):
            ln = ln.strip()
            if ln:
                self.lines.append("    " + ln)

    def label(self, n):
        self.lines.append(n + ":")

    def raw(self, s):
        self.lines.append(s)

    def text(self):
        return "\n".join(self.lines) + "\n"


def v(a, n=1):
    return f"v{a}" if n == 1 else f"v[{a}:{a+n-1}]"


def s(a, n=1):
    return f"s{a}" if n == 1 else f"s[{a}:{a+n-1}]"


def R(a, n):
    return list(range(a, a + n))


def cmul(A, d, x, y, t):
    A(f"v_pk_mul_f32 {v(t,2)}, {v(x,2)}, {v(y,2)} op_sel:[0,0] op_sel_hi:[1,0]")
    A(f"v_pk_fma_f32 {v(d,2)}, {v(x,2)}, {v(y,2)}, {v(t,2)} op_sel:[1,1,0] op_sel_hi:[0,1,1] neg_lo:[1,0,0]")


def srd(A, sd, sbase, off, nbytes):
    if off:
        A(f"s_add_u32 {s(sd)}, {s(sbase)}, {off:#x}")
        A(f"s_addc_u32 {s(sd+1)}, {s(sbase+1)}, 0")
    else:
        A(f"s_mov_b32 {s(sd)}, {s(sbase)}")
        A(f"s_mov_b32 {s(sd+1)}, {s(sbase+1)}")
    A(f"s_mov_b32 {s(sd+2)}, {nbytes:#x}")
    A(f"s_mov_b32 {s(sd+3)}, 0x00020000")


def stamp(A, i):
    if STAMP:
        A("s_memtime s[68:69]")
        A("s_waitcnt lgkmcnt(0)")
        A(f"s_mov_b32 s{72+i}, s68")


def stamp_begin(A):
    if STAMP:
        for i in range(NSTAMP):
            A(f"s_mov_b32 s{72+i}, 0")
        A("s_memrealtime s[68:69]")
        A("s_waitcnt lgkmcnt(0)")
        A("s_mov_b32 s70, s68")
        stamp(A, 0)


def stamp_end(A):
    if not STAMP:
        return
    stamp(A, NSTAMP - 2)
    A("s_waitcnt vmcnt(0)")
    stamp(A, NSTAMP - 1)
    A(f"""
    s_memrealtime s[68:69]
    s_waitcnt lgkmcnt(0)
    s_add_u32 s88, s20, {WS_DBG:#x}
    s_addc_u32 s89, s21, 0
    s_mov_b32 s90, 0x100000
    s_mov_b32 s91, 0x00020000
    v_lshrrev_b32 v1, 6, v0
    s_lshl_b32 s92, s2, 3
    v_add_u32 v1, s92, v1
    v_lshlrev_b32 v1, 7, v1
    """)
    for i in range(NSTAMP):
        A(f"v_mov_b32 v2, s{72+i}")
        A(f"buffer_store_dword v2, v1, s[88:91], 0 offen offset:{4*i}")
    if "dbg" in OPT:
        n = len(A.lines)
        A(f"""
        s_cmp_lg_u32 s2, {OPT['dbg']}
        s_cbranch_scc1 DBG{n}
        s_cmp_lg_u32 s22, 0
        s_cbranch_scc1 DBG{n}
        s_mov_b32 s92, s64
        s_mov_b32 s93, s65
        s_mov_b32 s94, 256
        s_mov_b32 s95, 0x00020000
        s_sub_u32 s69, s68, s70
        v_mov_b32 v2, s69
        buffer_store_dword v2, off, s[92:95], 0
        """)
        for i in range(1, NSTAMP):
            A(f"s_sub_u32 s69, s{72+i}, s72")
            A(f"v_mov_b32 v2, s69")
            A(f"buffer_store_dword v2, off, s[92:95], 0 offset:{4*i}")
        A.label(f"DBG{n}")
    A("v_mov_b32 v2, s68")
    A("buffer_store_dword v2, v1, s[88:91], 0 offen offset:124")
    A("v_mov_b32 v2, s70")
    A("buffer_store_dword v2, v1, s[88:91], 0 offen offset:120")


class Sched:
    def __init__(self):
        self.q = []

    def run(self, items, emit):
        for it in items:
            if it[0] == 'ds':
                emit(it[1])
                self.q.append(set(it[2]))
            elif it[0] == 'use':
                need = -1
                for i, d in enumerate(self.q):
                    if d & set(it[2]):
                        need = i
                if need >= 0:
                    n = min(len(self.q) - 1 - need, 15)
                    emit(f"s_waitcnt lgkmcnt({n})")
                    self.q = self.q[len(self.q) - n:] if n else []
                emit(it[1])
            elif it[0] == 'drain':
                emit("s_waitcnt lgkmcnt(0)")
                self.q = []
            else:
                emit(it[1])


class VM:
    def __init__(self, A):
        self.A = A
        self.q = []

    def op(self, text, tag):
        self.A(text)
        self.q.append(tag)
        assert len(self.q) <= 63, "too many outstanding vmem ops"

    def wait(self, *tags, extra=""):
        need = -1
        for i, t in enumerate(self.q):
            if t in tags:
                need = i
        if need >= 0:
            n = len(self.q) - 1 - need
            self.A(f"s_waitcnt vmcnt({n}) {extra}")
            self.q = self.q[len(self.q) - n:] if n else []
        elif extra:
            self.A(f"s_waitcnt {extra}")

    def drain(self, extra=""):
        self.A(f"s_waitcnt vmcnt(0) {extra}")
        self.q = []


def poll(A, name, load, okcode, cnt=36, sleep=1):
    A(f"s_mov_b32 s{cnt}, 0x40000")
    A.label(f"{name}_poll")
    A(load)
    A("s_waitcnt vmcnt(0)")
    A(okcode)
    A(f"""
    s_cbranch_scc1 {name}_got
    s_sub_u32 s{cnt}, s{cnt}, 1
    s_cmp_eq_u32 s{cnt}, 0
    s_cbranch_scc1 {name}_got
    s_sleep {sleep}
    s_branch {name}_poll
    """)
    A.label(f"{name}_got")


def flag_set(A, region, idx_sgpr, nline, nrep, after):
    A(f"""
    s_and_b32 s28, {idx_sgpr}, {nline-1}
    s_lshl_b32 s28, s28, 7
    s_lshr_b32 s32, {idx_sgpr}, {nline.bit_length()-1}
    s_lshl_b32 s32, s32, 2
    s_add_u32 s28, s28, s32
    s_add_u32 s28, s28, {region:#x}
    v_mul_u32_u24 v1, {REPS}, v2
    v_mov_b32 v3, s42
    s_mov_b64 exec, {(1<<nrep)-1}
    buffer_store_dword v3, v1, s[60:63], s28 offen sc1
    s_mov_b64 exec, -1
    """)


def q4_ok(r):
    return (f"v_xor_b32 v{r}, s42, v{r}\nv_xor_b32 v{r+1}, s42, v{r+1}\nv_xor_b32 v{r+2}, s42, v{r+2}\nv_xor_b32 v{r+3}, s42, v{r+3}\n"
            f"v_or3_b32 v{r}, v{r}, v{r+1}, v{r+2}\nv_or_b32 v{r}, v{r}, v{r+3}\nv_cmp_eq_u32 vcc, 0, v{r}\ns_nop 3\ns_cmp_eq_u64 vcc, exec")


def reduce64(A, regs, tmp):
    for ctl in ("quad_perm:[1,0,3,2]", "quad_perm:[2,3,0,1]", "row_half_mirror", "row_mirror"):
        A("s_nop 0")
        for r in regs:
            A(f"v_add_f32_dpp v{r}, v{r}, v{r} {ctl} row_mask:0xf bank_mask:0xf")
    for sw in ("v_permlane16_swap_b32", "v_permlane32_swap_b32"):
        for i, r in enumerate(regs):
            A(f"v_mov_b32 v{tmp+i}, v{r}")
        A("s_nop 1")
        for i, r in enumerate(regs):
            A(f"{sw} v{r}, v{tmp+i}")
        for i, r in enumerate(regs):
            A(f"v_add_f32 v{r}, v{r}, v{tmp+i}")


def reduce8(A, r):
    A(f"""
    s_nop 1
    v_add_f32_dpp v{r}, v{r}, v{r} quad_perm:[1,0,3,2] row_mask:0xf bank_mask:0xf
    s_nop 1
    v_add_f32_dpp v{r}, v{r}, v{r} quad_perm:[2,3,0,1] row_mask:0xf bank_mask:0xf
    s_nop 1
    v_add_f32_dpp v{r}, v{r}, v{r} row_half_mirror row_mask:0xf bank_mask:0xf
    """)


def var_to_s(A, r):
    A(f"""
    v_max_f32 v{r}, 0, v{r}
    v_cvt_pk_bf16_f32 v{r}, v{r}, v{r}
    v_lshlrev_b32 v{r}, 16, v{r}
    v_add_f32 v{r}, 0x3727c5ac, v{r}
    v_cvt_pk_bf16_f32 v{r}, v{r}, v{r}
    v_lshlrev_b32 v{r}, 16, v{r}
    v_sqrt_f32 v{r}, v{r}
    s_nop 0
    v_cvt_pk_bf16_f32 v{r}, v{r}, v{r}
    v_lshlrev_b32 v{r}, 16, v{r}
    """)


NAUX, NMAIN = 32, 224
GRID = 256
KG_ROW = 1056
KG_CH = 57 * KG_ROW
KG_TB = {0: 0, 1: 16, 3: 32, 2: 48}
KL_S = 8704
KPOS = lambda l: (l & 7) * 272 + (l >> 3)
KALPHA = [[0, 4, 128, 132], [512, 516, 1024, 1536], [256, 384, 2048, 2049]]
CV_BASE = 98304 + 64
CV_KS = 4160
CV_US = 4576
CV_UOFF = 4 * CV_KS
CV_XOFF = CV_UOFF + 2 * CV_US
CV_D = CV_XOFF + 4096
G1_STAGE = 24576
G1_SLOTS = 6
G1_X = G1_SLOTS * G1_STAGE
P4_SLOT = [0, 3, 4, 5, 6, 7, 8, 1, 2, 0, 3, 4, 5, 6]
P4_X = 149504
WD_EARLY = int(OPT.get("wde", 32))
LDS = 158208
assert CV_BASE + 2 * CV_D <= LDS and P4_X + 8192 + 256 <= LDS


def bf16_round_int(l):
    if l <= 256:
        return l
    sh = l.bit_length() - 8
    q, r = l >> sh, l & ((1 << sh) - 1)
    half = 1 << (sh - 1)
    if r > half or (r == half and (q & 1)):
        q += 1
    return q << sh


def kg_table(A):
    A.raw(".p2align 6")
    A.raw(".type KG_TABLE,@object")
    A.label("KG_TABLE")
    rows = []
    for tid in range(512):
        w, lane = tid >> 6, tid & 63
        ch, o = tid >> 8, tid & 255
        j, g = lane & 15, lane >> 4
        vals = [ch * 4 * KL_S + 4 * KPOS(bf16_round_int(2047 - 8 * o - e)) for e in range(8)]
        vals += [w * KL_S + 4 * (KPOS(KALPHA[T][g]) + j) for T in range(3)]
        vals += [ch * KG_CH + (w & 3) * 256 + j * KG_ROW + g * 16]
        rows.append(vals)
    for part in range(3):
        for tid in range(512):
            A.raw(".long " + ", ".join(str(x) for x in rows[tid][4 * part:4 * part + 4]))
    A.raw(".size KG_TABLE, 24576")


P0_LDS = 131072


def gen_p0_loads(A):
    A(f"""
    s_lshl_b32 s26, s2, 3
    s_add_u32 s26, s26, s22              ; row
    s_mul_i32 s26, s26, 896
    v_lshl_add_u32 v1, v2, 4, s26
    v_mov_b32 v96, 0
    v_mov_b32 v97, 0
    v_mov_b32 v98, 0
    v_mov_b32 v99, 0
    s_mov_b32 s32, -1
    s_mov_b32 s33, 0x00ffffff
    s_mov_b64 exec, s[32:33]
    global_load_dwordx4 v[96:99], v1, s[44:45]
    s_mov_b64 exec, -1
    buffer_load_dword v100, off, s[60:63], 0 sc1
    """)


def gen_p0(A, younger):
    X, U, I = 96, 104, 108
    A(f"""
    s_mov_b32 s26, 0x3f803f80
    v_mov_b32 v101, 0
    v_mov_b32 v102, 0
    s_mul_i32 s27, s22, 1792
    s_add_u32 s27, s27, {P0_LDS}
    v_lshl_add_u32 v116, v2, 5, s27
    v_bfe_u32 v117, v2, 2, 2             ; r
    v_mul_u32_u24 v117, 1792, v117
    v_and_b32 v118, 3, v2
    v_lshl_add_u32 v117, v118, 3, v117
    v_lshrrev_b32 v118, 4, v2            ; g
    v_lshl_add_u32 v117, v118, 5, v117
    s_lshl_b32 s27, s22, 7
    s_add_u32 s27, s27, {P0_LDS}
    v_add_u32 v117, s27, v117
    v_lshrrev_b32 v118, 2, v2
    v_lshlrev_b32 v118, 14, v118
    v_and_b32 v119, 3, v2
    v_lshl_add_u32 v118, v119, 4, v118
    s_lshl_b32 s34, s22, 18              ; unit*16*16384
    s_lshl_b32 s35, s2, 6
    s_add_u32 s34, s34, s35
    s_add_u32 s34, s34, {WS_XU:#x}
    s_add_u32 s35, s34, {8<<18:#x}
    s_waitcnt vmcnt({younger})
    v_readfirstlane_b32 s41, v100        ; epoch
    """)
    for i in range(4):
        A(f"v_dot2c_f32_bf16 v101, s26, v{X+i}")
        A(f"v_dot2c_f32_bf16 v102, v{X+i}, v{X+i}")
    A("""
    s_mul_i32 s42, s41, 0x9e3779b1
    s_add_u32 s42, s42, 0x7f4a7c15
    s_nop 1
    """)
    reduce64(A, [101, 102], 120)
    A(f"""
    v_mul_f32 v101, 0x3b124925, v101     ; mean
    v_mul_f32 v102, 0x3b124925, v102
    v_fma_f32 v102, -v101, v101, v102
    v_cvt_pk_bf16_f32 v120, v101, v101
    v_lshlrev_b32 v120, 16, v120         ; m_bf
    """)
    var_to_s(A, 102)
    A(f"""
    v_rcp_f32 v121, v102
    s_mov_b32 s26, 0x05040100
    s_mov_b32 s27, 0x07060302
    """)
    for i in range(4):
        t_ = 122 + 2 * (i & 1)
        A(f"""
        v_lshlrev_b32 v{t_}, 16, v{X+i}
        v_and_b32 v{t_+1}, 0xffff0000, v{X+i}
        v_pk_add_f32 {v(t_,2)}, {v(t_,2)}, v[120:121] op_sel_hi:[1,0] neg_lo:[0,1] neg_hi:[0,1]
        v_cvt_pk_bf16_f32 v{U+i}, v{t_}, v{t_+1}
        v_lshlrev_b32 v{t_}, 16, v{U+i}
        v_and_b32 v{t_+1}, 0xffff0000, v{U+i}
        v_pk_mul_f32 {v(t_,2)}, {v(t_,2)}, v[120:121] op_sel:[0,1] op_sel_hi:[1,1]
        v_cvt_pk_bf16_f32 v{U+i}, v{t_}, v{t_+1}
        v_perm_b32 v{I+2*i}, v{U+i}, v{X+i}, s26
        v_perm_b32 v{I+2*i+1}, v{U+i}, v{X+i}, s27
        """)
    A(f"""
    s_mov_b64 exec, s[32:33]
    ds_write_b128 v116, {v(I,4)}
    ds_write_b128 v116, {v(I+4,4)} offset:16
    s_mov_b64 exec, -1
    s_waitcnt lgkmcnt(0)
    s_barrier                            ; Bp
    ds_read_b64_tr_b16 v[96:97], v117
    ds_read_b64_tr_b16 v[98:99], v117 offset:{4*1792}
    ds_read_b64_tr_b16 v[100:101], v117 offset:1024
    ds_read_b64_tr_b16 v[102:103], v117 offset:{4*1792+1024}
    s_waitcnt lgkmcnt(2)
    buffer_store_dwordx4 v[96:99], v118, s[60:63], s34 offen sc1
    s_cmp_ge_u32 s22, 6
    s_waitcnt lgkmcnt(0)
    s_cbranch_scc1 P0_skip{younger}
    buffer_store_dwordx4 v[100:103], v118, s[60:63], s35 offen sc1
    """)
    A.label(f"P0_skip{younger}")


def gen_f1_publish(A, name, also_f2=False, younger=0):
    A(f"""
    s_waitcnt vmcnt({younger})
    s_barrier                            ; Bq
    s_cmp_lg_u32 s22, 0
    s_cbranch_scc1 {name}
    """)
    flag_set(A, WS_F1, "s2", 64, NREP, None)
    if also_f2:
        flag_set(A, WS_F2, "s2", 64, NREP, None)
    A.label(name)


def gen_aux(A):
    A.label("AUX")
    X = 8
    gen_p0(A, 0)
    stamp(A, 1)
    gen_f1_publish(A, "AUX_f1", True)
    stamp(A, 2)
    S = 64
    A(f"""
    v_min_u32 v7, 447, v0
    v_mul_u32_u24 v1, 0x124a, v7
    v_lshrrev_b32 v1, 16, v1             ; rg
    v_mul_u32_u24 v2, 14, v1
    v_sub_u32 v2, v7, v2                 ; chunk
    v_mul_u32_u24 v3, 3584, v1
    v_lshl_add_u32 v3, v2, 4, v3
    s_and_b32 s26, s2, 15
    s_mul_i32 s12, s26, 224
    s_cmp_ge_u32 s2, 16
    s_cselect_b32 s4, s50, s48
    s_cselect_b32 s5, s51, s49
    """)
    srd(A, 8, 4, 0, D * F * 2)
    for j in range(14):
        A(f"buffer_load_dwordx4 {v(X+4*j,4)}, v3, s[8:11], s12 offen")
        if j < 13:
            A(f"s_add_u32 s12, s12, {32*3584:#x}")
    for i in range(8):
        A(f"v_mov_b32 v{S+i}, 0")
    for j in range(14):
        A(f"s_waitcnt vmcnt({13-j})")
        for q in range(4):
            A(f"""
            v_lshlrev_b32 v72, 16, v{X+4*j+q}
            v_and_b32 v73, 0xffff0000, v{X+4*j+q}
            v_pk_add_f32 {v(S+2*q,2)}, {v(S+2*q,2)}, v[72:73]
            """)
    A(f"""
    v_mul_u32_u24 v4, 464, v1
    v_lshl_add_u32 v4, v2, 5, v4
    ds_write_b128 v4, {v(S,4)}
    ds_write_b128 v4, {v(S+4,4)} offset:16
    v_and_b32 v5, 127, v0
    v_min_u32 v5, 111, v5                ; column
    v_lshrrev_b32 v6, 7, v0              ; part 0..3
    v_mul_u32_u24 v7, {8*464}, v6
    v_lshl_add_u32 v7, v5, 2, v7
    s_waitcnt lgkmcnt(0)
    s_barrier
    """)
    for i in range(8):
        A(f"ds_read_b32 v{X+i}, v7 offset:{464*i}")
    A("s_waitcnt lgkmcnt(0)")
    for st in (4, 2, 1):
        for i in range(st):
            A(f"v_add_f32 v{X+i}, v{X+i}, v{X+i+st}")
    A(f"""
    v_lshlrev_b32 v7, 9, v6
    v_lshl_add_u32 v7, v5, 2, v7
    ds_write_b32 v7, v{X} offset:16384
    v_lshlrev_b32 v7, 2, v5
    s_waitcnt lgkmcnt(0)
    s_barrier
    ds_read_b32 v{X}, v7 offset:16384
    ds_read_b32 v{X+1}, v7 offset:{16384+512}
    ds_read_b32 v{X+2}, v7 offset:{16384+1024}
    ds_read_b32 v{X+3}, v7 offset:{16384+1536}
    s_mul_i32 s12, s2, 448
    s_add_u32 s12, s12, {WS_CS:#x}
    s_waitcnt lgkmcnt(0)
    v_add_f32 v{X}, v{X}, v{X+1}
    v_add_f32 v{X+2}, v{X+2}, v{X+3}
    v_add_f32 v{X}, v{X}, v{X+2}
    v_cmp_gt_u32 vcc, 112, v0
    s_and_saveexec_b64 s[32:33], vcc
    s_cbranch_execz AUX_c
    buffer_store_dword v{X}, v7, s[60:63], s12 offen sc1
    """)
    A.label("AUX_c")
    A("s_mov_b64 exec, s[32:33]")
    stamp(A, 3)
    A(f"""
    v_and_b32 v2, 63, v0
    v_lshlrev_b32 v5, 7, v2
    s_and_b32 s28, s2, {NREP-1}
    s_mul_i32 s28, s28, {REPS}
    s_add_u32 s28, s28, {WS_F2:#x}
    s_cmp_lg_u32 s22, 0
    s_cbranch_scc1 AUX_w
    """)
    poll(A, "AUX_p2", "buffer_load_dwordx4 v[8:11], v5, s[60:63], s28 offen sc1", q4_ok(8), sleep=8)
    A(f"""
    s_cmp_lg_u32 s2, 0
    s_cbranch_scc1 AUX_w
    s_add_u32 s26, s41, 1
    v_mov_b32 v8, s26
    s_mov_b64 exec, 1
    buffer_store_dword v8, off, s[60:63], 0 sc1
    s_mov_b64 exec, -1
    """)
    A.label("AUX_w")
    A("""
    s_waitcnt vmcnt(0)
    s_barrier
    """)
    stamp(A, 4)
    S1, S2 = 40, 48
    A(f"""
    v_lshrrev_b32 v1, 3, v0              ; dgrp 0..63
    v_and_b32 v2, 7, v0
    v_lshlrev_b32 v3, 8, v1
    v_lshl_add_u32 v3, v2, 4, v3
    s_lshr_b32 s24, s2, 1
    s_mul_i32 s24, s24, {HTB}
    s_and_b32 s25, s2, 1
    s_lshl_b32 s25, s25, 7
    s_add_u32 s24, s24, s25
    s_add_u32 s24, s24, {WS_HT:#x}
    """)
    for i in range(7):
        A(f"buffer_load_dwordx4 {v(X+4*i,4)}, v3, s[60:63], s24 offen sc1")
        if i < 6:
            A(f"s_add_u32 s24, s24, 16384")
    for i in range(16):
        A(f"v_mov_b32 v{S1+i}, 0")
    for i in range(7):
        A(f"s_waitcnt vmcnt({6-i})")
        for q in range(4):
            A(f"""
            v_lshlrev_b32 v56, 16, v{X+4*i+q}
            v_and_b32 v57, 0xffff0000, v{X+4*i+q}
            v_pk_add_f32 {v(S1+2*q,2)}, {v(S1+2*q,2)}, v[56:57]
            v_pk_fma_f32 {v(S2+2*q,2)}, v[56:57], v[56:57], {v(S2+2*q,2)}
            """)
    A(f"""
    v_mul_u32_u24 v4, 528, v1
    v_lshl_add_u32 v4, v2, 5, v4
    ds_write_b128 v4, {v(S1,4)}
    ds_write_b128 v4, {v(S1+4,4)} offset:16
    ds_write_b128 v4, {v(S2,4)} offset:256
    ds_write_b128 v4, {v(S2+4,4)} offset:272
    v_and_b32 v5, 127, v0
    v_lshrrev_b32 v6, 7, v0
    v_mul_u32_u24 v7, {16*528}, v6
    v_lshl_add_u32 v7, v5, 2, v7
    s_waitcnt lgkmcnt(0)
    s_barrier
    """)
    for i in range(16):
        A(f"ds_read_b32 v{X+i}, v7 offset:{528*i}")
    A("s_waitcnt lgkmcnt(0)")
    for st in (8, 4, 2, 1):
        for i in range(st):
            A(f"v_add_f32 v{X+i}, v{X+i}, v{X+i+st}")
    A(f"""
    v_lshlrev_b32 v7, 2, v0
    ds_write_b32 v7, v{X} offset:{64*528}
    s_waitcnt lgkmcnt(0)
    s_barrier
    s_cmp_lg_u32 s22, 0
    s_cbranch_scc1 AUX_done
    """)
    for i in range(4):
        A(f"ds_read_b32 v{X+i}, v7 offset:{64*528 + 512*i}")
        A(f"ds_read_b32 v{X+4+i}, v7 offset:{64*528 + 512*i + 256}")
    A(f"""
    s_lshl_b32 s26, s2, 8
    s_add_u32 s27, s26, {WS_MEAN:#x}
    s_add_u32 s26, s26, {WS_R2:#x}
    s_waitcnt lgkmcnt(0)
    v_add_f32 v{X}, v{X}, v{X+1}
    v_add_f32 v{X+2}, v{X+2}, v{X+3}
    v_add_f32 v{X+4}, v{X+4}, v{X+5}
    v_add_f32 v{X+6}, v{X+6}, v{X+7}
    v_add_f32 v40, v{X}, v{X+2}
    v_add_f32 v41, v{X+4}, v{X+6}
    v_mul_f32 v40, 0x3b124925, v40       ; mean
    v_cvt_pk_bf16_f32 v42, v40, v40
    v_lshlrev_b32 v42, 16, v42
    buffer_store_dword v42, v7, s[60:63], s27 offen sc1
    v_mul_f32 v41, 0x3b124925, v41
    v_fma_f32 v41, -v40, v40, v41
    """)
    var_to_s(A, 41)
    A(f"""
    v_mul_f32 v41, v41, v41
    v_rcp_f32 v41, v41
    v_and_b32 v2, 63, v0
    buffer_store_dword v41, v7, s[60:63], s26 offen sc1
    s_waitcnt vmcnt(0)
    """)
    flag_set(A, WS_F3, "s2", 8, NREP, None)
    A.label("AUX_done")
    stamp_end(A)
    A("s_endpgm")


def gen_phase1(A):
    XU = 112
    A(f"""
    s_sub_u32 s3, s2, {NAUX}
    s_and_b32 s26, s3, 7
    s_mul_i32 s26, s26, 28
    s_lshr_b32 s27, s3, 3
    s_add_u32 s43, s26, s27              ; dpair
    s_lshl_b32 s27, s43, 10
    v_lshl_add_u32 v3, v0, 1, s27
    s_lshr_b32 s28, s22, 2               ; channel
    s_lshl_b32 s26, s43, 1
    s_add_u32 s26, s26, s28
    s_lshl_b32 s26, s26, 1
    v_mov_b32 v31, s26                   ; 2*d
    s_mul_i32 s31, s28, {KG_CH}
    s_lshl_b32 s26, s23, 8
    s_add_u32 m0, s31, s26
    global_load_ushort v10, v31, s[16:17]
    global_load_ushort v4, v3, s[4:5]
    global_load_ushort v5, v3, s[6:7]
    global_load_ushort v6, v3, s[8:9]
    global_load_ushort v7, v3, s[10:11]
    global_load_ushort v8, v3, s[12:13]
    global_load_ushort v9, v3, s[14:15]
    global_load_ushort v29, v31, s[18:19]
    s_lshl_b32 s26, s3, 3
    s_add_u32 s26, s26, s22
    s_mul_i32 s27, s26, 0xaaab
    s_lshr_b32 s27, s27, 17              ; wi / 3
    s_mul_i32 s32, s27, 3
    s_sub_u32 s26, s26, s32              ; wi % 3
    s_mul_i32 s32, s27, 0xaaab
    s_lshr_b32 s32, s32, 17
    s_mul_i32 s33, s32, 3
    s_sub_u32 s27, s27, s33              ; matrix = (wi/3) % 3
    s_min_u32 s32, s32, 195
    s_lshl_b32 s32, s32, 13
    v_lshl_add_u32 v16, v2, 7, s32
    s_cmp_eq_u32 s27, 0
    s_cselect_b32 s34, s48, s50
    s_cselect_b32 s35, s49, s51
    s_cmp_eq_u32 s27, 2
    s_cselect_b32 s34, s52, s34
    s_cselect_b32 s35, s53, s35
    s_cmp_eq_u32 s26, 0
    s_cselect_b64 exec, -1, 1
    {"global_load_dword v128, v16, s[34:35]" if "nopf0" not in OPT else "global_load_dword v128, v31, s[34:35]"}
    s_mov_b64 exec, -1
    s_mov_b32 s32, -1
    s_mov_b32 s33, 0x00ffffff
    v_mov_b32 v30, 0x00003f80
    ds_write_addtid_b32 v30
    ; tile ids for later phases
    s_and_b32 s24, s3, 3
    s_lshl_b32 s24, s24, 2
    s_bfe_u32 s25, s3, 0x20003
    s_add_u32 s24, s24, s25              ; tblk
    s_bfe_u32 s46, s3, 0x10002
    s_mul_i32 s25, s46, 7
    s_lshr_b32 s47, s3, 5                ; dblk
    s_add_u32 s25, s25, s47              ; fblk
    """)
    gen_p0(A, 9)
    A(f"""
    s_add_u32 s58, s58, KG_TABLE-PC0
    s_addc_u32 s59, s59, 0
    v_lshlrev_b32 v18, 4, v0
    v_add_u32 v19, 8192, v18
    v_add_u32 v17, 16384, v18
    global_load_dwordx4 v[12:15], v17, s[58:59]
    global_load_dwordx4 v[20:23], v18, s[58:59]
    global_load_dwordx4 v[24:27], v19, s[58:59]
    """)
    NY = 3
    stamp(A, 1)
    ACC = 32
    AR, AI = 44, 45
    BP, CP = 46, 48
    A2, B2 = 50, 51
    T0, T1 = 52, 54
    P = {r: 56 + 2 * (r - 1) for r in range(1, 8)}
    Z8, Q1 = 70, 72
    QA, QB = 74, 76
    BA, BB = 78, 80
    X0 = 82
    E0, E1, E2 = 86, 88, 90
    W0 = 92
    FR = 44
    A(f"""
    s_waitcnt vmcnt({7+NY})
    v_lshlrev_b32 v28, 16, v10
    v_mul_f32 v28, 0x3fb8aa3b, v28
    v_exp_f32 v28, v28
    v_lshlrev_b32 v{AR}, 16, v4
    v_cvt_pk_bf16_f32 v28, v28, v28
    v_lshlrev_b32 v{AI}, 16, v5
    v_lshlrev_b32 v28, 16, v28           ; dt
    """)
    A(f"""
    v_mul_f32 v{A2}, v28, v{AR}
    v_mul_f32 v{B2}, v28, v{AI}
    v_mul_f32 v{A2}, 0x3fb8aa3b, v{A2}
    v_mul_f32 v{B2}, 0.15915494, v{B2}
    v_mul_f32 v{E1}, 0x41000000, v{A2}
    v_mul_f32 v{E1+1}, 0x41000000, v{B2}
    v_mul_f32 v{E2}, 0x43000000, v{A2}
    v_mul_f32 v{E2+1}, 0x43000000, v{B2}
    v_exp_f32 v{E0}, v{A2}
    v_fract_f32 v{E0+1}, v{B2}
    v_exp_f32 v{E1}, v{E1}
    v_fract_f32 v{E1+1}, v{E1+1}
    v_exp_f32 v{E2}, v{E2}
    v_fract_f32 v{E2+1}, v{E2+1}
    v_cos_f32 v{P[1]}, v{E0+1}
    v_sin_f32 v{P[1]+1}, v{E0+1}
    v_cos_f32 v{Z8}, v{E1+1}
    v_sin_f32 v{Z8+1}, v{E1+1}
    v_cos_f32 v{Q1}, v{E2+1}
    v_sin_f32 v{Q1+1}, v{E2+1}
    v_pk_mul_f32 {v(P[1],2)}, {v(P[1],2)}, {v(E0,2)} op_sel_hi:[1,0]
    v_pk_mul_f32 {v(Z8,2)}, {v(Z8,2)}, {v(E1,2)} op_sel_hi:[1,0]
    v_pk_mul_f32 {v(Q1,2)}, {v(Q1,2)}, {v(E2,2)} op_sel_hi:[1,0]
    """)
    rowof = {}
    for T in range(3):
        for g in range(4):
            for r in range(4):
                e = KALPHA[T][g] + [r, 128 * r, 2 * r][T]
                if e <= 2048:
                    rowof[e] = KG_TB[T] + 4 * g + r
    wsel = [0]

    def emit(row, reg, neg=""):
        w = W0 + wsel[0]; wsel[0] ^= 1
        A(f"v_cvt_pk_bf16_f32 v{w}, v{reg}, {neg}v{reg+1}")
        A(f"ds_write_addtid_b32 v{w} offset:{row*KG_ROW}")

    emitA = lambda e, reg: emit(rowof[e], reg)
    mulA = lambda d, x, y: cmul(A, d, x, y, T0)
    emitA(1, P[1])
    mulA(P[2], P[1], P[1]); emitA(2, P[2])
    mulA(P[3], P[2], P[1]); emitA(3, P[3])
    mulA(P[4], P[2], P[2]); emitA(4, P[4])
    mulA(P[5], P[4], P[1]); emitA(5, P[5])
    mulA(P[6], P[4], P[2]); emitA(6, P[6])
    mulA(P[7], P[4], P[3]); emitA(7, P[7])
    cur = Q1
    for i in range(1, 17):
        if i > 1:
            nxt = QA if cur != QA else QB
            mulA(nxt, cur, Q1)
            cur = nxt
        if i == int(OPT.get("f1at", 3)):
            gen_f1_publish(A, "P1_f1", younger=0)
            A(f"""
            s_cmp_lt_u32 s22, 4
            s_cbranch_scc1 P1_nowd
            v_min_u32 v16, 55, v2
            s_lshr_b32 s26, s3, 3                ; q
            s_lshl_b32 s27, s26, 2
            s_add_u32 s27, s27, s23              ; 4q + w
            s_mul_i32 s28, s27, {112*128}
            v_lshl_add_u32 v17, v16, 7, s28
            v_mul_u32_u24 v18, 0x124a, v16
            v_lshrrev_b32 v18, 16, v18
            v_mul_u32_u24 v18, {3584-14*128}, v18
            v_lshl_add_u32 v18, v16, 7, v18
            s_mul_i32 s28, s27, {4*3584}
            s_mul_i32 s32, s46, 1792
            s_add_u32 s28, s28, s32
            v_add_u32 v18, s28, v18
            v_add_u32 v19, {56*128}, v17
            """)
            if "pf1" in OPT:
                A("""
                global_load_dword v128, v18, s[48:49]
                global_load_dword v129, v18, s[50:51]
                global_load_dword v130, v17, s[52:53]
                global_load_dword v131, v19, s[52:53]
                """)
            A.label("P1_nowd")
            stamp(A, 2)
        emitA(128 * i, cur)
        for r in {1: range(1, 8), 2: (2, 4, 6), 3: (2, 4, 6), 4: (4,), 5: (4,), 6: (4,), 7: (4,)}.get(i, ()):
            mulA(X0, cur, P[r])
            emitA(128 * i + r, X0)
    A(f"""
    s_lshr_b32 s28, s22, 2
    v_lshlrev_b32 v{BP}, 16, v6
    v_lshlrev_b32 v{BP+1}, 16, v7
    v_lshlrev_b32 v{CP}, 16, v8
    v_lshlrev_b32 v{CP+1}, 16, v9
    v_lshlrev_b32 v29, 16, v29
    v_and_b32 v4, 255, v0
    v_cmp_eq_u32 vcc, 0, v4
    """)
    cmul(A, BA, CP, BP, T0)
    A(f"""
    v_cndmask_b32 v29, 0, v29, vcc
    v_pk_mul_f32 {v(BA,2)}, {v(BA,2)}, v[28:29] op_sel_hi:[1,0]
    """)
    curb = BA
    for j in range(16):
        if j > 0:
            nxt = BB if curb == BA else BA
            cmul(A, nxt, curb, Z8, T1)
            curb = nxt
        emit(KG_TB[3] + j, curb, "-")
    A(f"""
    v_lshlrev_b32 v5, 7, v2
    s_and_b32 s40, s2, {NREP-1}
    s_mul_i32 s40, s40, {REPS}
    s_add_u32 s31, s40, {WS_F1:#x}
    s_waitcnt lgkmcnt(0)
    """)
    stamp(A, 3)
    items = []
    for ks in range(4):
        for q, T in enumerate((3, 0, 1, 2)):
            b = FR + 16 * ks + 4 * q
            items.append(('ds', f"ds_read_b128 {v(b,4)}, v15 offset:{KG_TB[T]*KG_ROW + ks*64}", R(b, 4)))
    for ks in range(4):
        for T in range(3):
            a, b = FR + 16 * ks + 4 + 4 * T, FR + 16 * ks
            c = "0" if ks == 0 else v(ACC + 4 * T, 4)
            items.append(('use', f"v_mfma_f32_16x16x32_bf16 {v(ACC+4*T,4)}, {v(a,4)}, {v(b,4)}, {c}", R(a, 4) + R(b, 4)))
    Sched().run(items, A)
    A(f"""
    s_barrier                            ; Ba
    s_nop 3
    v_add_f32 v{ACC}, v{ACC}, v29
    s_nop 0
    """)
    for T in range(3):
        for r in range(4):
            beta = [r, 128 * r, 2 * r][T]
            A(f"ds_write_b32 v{12+T}, v{ACC+4*T+r} offset:{4*KPOS(beta)}")
    A(f"""
    v_mov_b32 v8, 0
    v_mov_b32 v9, 0
    v_mov_b32 v10, 0
    v_mov_b32 v11, 0
    s_mul_i32 s29, s28, {CV_D}
    s_add_u32 s29, s29, {CV_BASE}
    s_mul_i32 s26, s23, {CV_KS}
    s_add_u32 s26, s26, s29
    s_add_u32 s26, s26, 4080
    s_mul_i32 s27, s23, {CV_US}
    s_add_u32 s27, s27, s29
    s_add_u32 s27, s27, {CV_UOFF - 5*16}
    v_mov_b32 v7, s27
    v_mov_b32 v16, s26
    v_cmp_gt_u32 vcc, 5, v2
    s_cmp_lt_u32 s23, 2
    s_cselect_b32 s30, 34, 5
    v_cndmask_b32 v7, v7, v16, vcc
    v_lshl_add_u32 v7, v2, 4, v7
    v_cmp_gt_u32 vcc, s30, v2
    s_and_saveexec_b64 s[32:33], vcc
    ds_write_b128 v7, v[8:11]
    s_mov_b64 exec, s[32:33]
    v_lshlrev_b32 v16, 5, v0
    s_lshl_b32 s30, s43, 14
    s_add_u32 s30, s30, {WS_XU:#x}
    s_waitcnt lgkmcnt(0)
    s_barrier                            ; Bb
    """)
    items = []
    for e in range(8):
        b = FR + 4 * e
        items.append(('ds', f"ds_read2st64_b32 {v(b,2)}, v{20+e} offset0:0 offset1:34", R(b, 2)))
        items.append(('ds', f"ds_read2st64_b32 {v(b+2,2)}, v{20+e} offset0:68 offset1:102", R(b + 2, 2)))
    items.append(('op', "v_lshl_add_u32 v7, v4, 4, s29"))
    for e in range(8):
        b = FR + 4 * e
        items.append(('use', f"v_pk_add_f32 {v(b,2)}, {v(b,2)}, {v(b+2,2)}", R(b, 4)))
        items.append(('op', f"v_add_f32 v{b}, v{b}, v{b+1}"))
        if e % 2 == 1:
            items.append(('op', f"v_cvt_pk_bf16_f32 v{32+e//2}, v{b-4}, v{b}"))
    Sched().run(items, A)
    A(f"""
    v_mov_b32 v36, v33
    v_mov_b32 v37, v34
    ds_write_b128 v7, v[32:35]
    ds_write_b64 v7, v[32:33] offset:{2*CV_KS - 8}
    ds_write_b64 v7, v[34:35] offset:{2*CV_KS}
    ds_write_b32 v7, v32 offset:{CV_KS - 4}
    ds_write_b64 v7, v[36:37] offset:{CV_KS}
    ds_write_b32 v7, v35 offset:{CV_KS + 8}
    ds_write_b32 v7, v32 offset:{3*CV_KS - 12}
    ds_write_b64 v7, v[36:37] offset:{3*CV_KS - 8}
    ds_write_b32 v7, v35 offset:{3*CV_KS}
    """)


def gen_xu(A):
    XU = 112
    U0 = CV_UOFF + 448
    A(f"""
    v_and_b32 v7, 1, v0
    v_mul_u32_u24 v7, {CV_D}, v7
    v_lshrrev_b32 v16, 1, v0
    v_lshl_add_u32 v7, v16, 4, v7
    v_add_u32 v7, {CV_BASE}, v7
    v_lshlrev_b32 v16, 5, v0
    s_add_u32 s26, s30, 8192
    s_cmp_lg_u32 s22, 3
    s_cbranch_scc1 P1_f_got
    """)
    poll(A, "P1_f", "buffer_load_dwordx4 v[8:11], v5, s[60:63], s31 offen sc1", q4_ok(8), sleep=2)
    A(f"""
    s_barrier                            ; Bf
    """)
    stamp(A, 4)
    A(f"""
    buffer_load_dwordx4 {v(XU+4,4)}, v16, s[60:63], s30 offen offset:16 sc1
    buffer_load_dwordx4 {v(XU+12,4)}, v16, s[60:63], s26 offen offset:16 sc1
    buffer_load_dwordx4 {v(XU,4)}, v16, s[60:63], s30 offen sc1
    buffer_load_dwordx4 {v(XU+8,4)}, v16, s[60:63], s26 offen sc1
    """)
    for hf in range(2):
        u = XU + 4 + 8 * hf
        o = U0 + 2048 * hf
        A(f"""
        s_waitcnt vmcnt({3-hf})
        ds_write_b128 v7, {v(u,4)} offset:{o}
        v_alignbit_b32 v{44+4*hf}, v{u+1}, v{u}, 16
        v_alignbit_b32 v{46+4*hf}, v{u+2}, v{u+1}, 16
        v_alignbit_b32 v{47+4*hf}, v{u+3}, v{u+2}, 16
        ds_write_b16 v7, v{u} offset:{o + CV_US + 2}
        ds_write_b32 v7, v{44+4*hf} offset:{o + CV_US + 4}
        ds_write_b64 v7, {v(46+4*hf,2)} offset:{o + CV_US + 8}
        ds_write_b16_d16_hi v7, v{u+3} offset:{o + CV_US + 16}
        """)
    A(f"""
    s_waitcnt vmcnt(1)
    ds_write_b128 v7, {v(XU,4)} offset:{CV_XOFF}
    s_waitcnt vmcnt(0)
    ds_write_b128 v7, {v(XU+8,4)} offset:{CV_XOFF+2048}
    """)
    stamp(A, 5)


def gen_conv(A):
    XR, ACC, FP = 12, 20, 40
    A(f"""
    v_and_b32 v4, 15, v2                 ; i / n
    v_lshrrev_b32 v5, 4, v2              ; g
    s_lshr_b32 s28, s22, 1               ; dsel
    s_and_b32 s30, s22, 1                ; role
    s_mul_i32 s27, s28, {CV_D}
    s_add_u32 s27, s27, {CV_BASE}
    v_and_b32 v36, 3, v4
    v_sub_u32 v36, 3, v36
    v_mul_u32_u24 v36, {CV_KS}, v36
    v_lshrrev_b32 v37, 2, v4
    v_sub_u32 v37, v5, v37
    v_lshl_add_u32 v36, v37, 4, v36
    v_add_u32 v36, {4080 - 512*7}, v36
    v_add_u32 v36, s27, v36              ; F addr
    v_and_b32 v37, 1, v4
    v_sub_u32 v37, 1, v37
    v_mul_u32_u24 v37, {CV_US}, v37
    v_lshrrev_b32 v38, 1, v4
    v_lshl_add_u32 v37, v38, 6, v37
    v_lshl_add_u32 v37, v5, 4, v37
    v_add_u32 v37, {CV_UOFF + 448}, v37
    v_add_u32 v37, s27, v37              ; G addr
    v_lshlrev_b32 v6, 7, v5
    v_lshl_add_u32 v6, v4, 2, v6
    s_add_u32 s26, s27, {CV_XOFF}
    v_add_u32 v6, s26, v6
    v_lshl_add_u32 v7, v2, 4, s26
    v_mul_u32_u24 v38, {HTB}, v5
    v_lshl_add_u32 v38, v4, 4, v38
    s_lshl_b32 s33, s43, 1
    s_add_u32 s33, s33, s28
    s_lshl_b32 s33, s33, 8
    s_add_u32 s33, s33, {WS_HT:#x}         ; HT + d*256
    s_waitcnt lgkmcnt(0)
    s_barrier                            ; Bc
    """)
    stamp(A, 6)
    A("""
    s_cmp_eq_u32 s30, 0
    s_cbranch_scc0 CV_roleB
    """)
    for role, tiles in ((0, (7, 6, 1, 0)), (1, (5, 4, 3, 2))):
        if role == 1:
            A.label("CV_roleB")
        nf = max(tiles) + 1

        def reads(base):
            out = []
            for a in range(nf):
                out.append(('ds', f"ds_read_b128 {v(base+4*a,4)}, v36 offset:{512*(7-a)}", R(base + 4 * a, 4)))
                out.append(('ds', f"ds_read_b128 {v(base+32+4*a,4)}, v37 offset:{512*a}", R(base + 32 + 4 * a, 4)))
            return out

        def mfmas(base):
            pairs = [(a, c - a, q) for q, c in enumerate(tiles) for a in range(c + 1)]
            pairs.sort(key=lambda p: (max(p[0], p[1]), p[2]))
            return [('use', f"v_mfma_f32_16x16x32_bf16 {v(ACC+4*q,4)}, {v(base+32+4*b,4)}, {v(base+4*a,4)}, {v(ACC+4*q,4)}",
                     R(base + 32 + 4 * b, 4) + R(base + 4 * a, 4)) for a, b, q in pairs]

        def step(cur, nxt):
            it = [('op', "v_subrev_u32 v36, 64, v36"), ('op', "v_subrev_u32 v37, 64, v37")]
            rs = reads(nxt)
            i = 0
            for m in mfmas(cur):
                it.append(m)
                if i < len(rs):
                    it.append(rs[i]); i += 1
            return it + rs[i:]

        for q, c in enumerate(tiles):
            A(f"ds_read2_b32 {v(XR+2*q,2)}, v6 offset0:{0} offset1:16" if c == 0 else
              f"ds_read_b32 v{XR+2*q}, v6 offset:{512*c}\nds_read_b32 v{XR+2*q+1}, v6 offset:{512*c+64}")
        A("s_waitcnt lgkmcnt(0)")
        S = Sched()
        S.run(reads(FP), A)
        for q in range(4):
            A(f"""
            v_lshlrev_b32 v{ACC+4*q}, 16, v{XR+2*q}
            v_and_b32 v{ACC+4*q+1}, 0xffff0000, v{XR+2*q}
            v_lshlrev_b32 v{ACC+4*q+2}, 16, v{XR+2*q+1}
            v_and_b32 v{ACC+4*q+3}, 0xffff0000, v{XR+2*q+1}
            """)
        A("s_mov_b32 s36, 4")
        A.label(f"CV_loop{role}")
        S.run(step(FP, FP + 64) + step(FP + 64, FP), A)
        A(f"""
        s_sub_u32 s36, s36, 1
        s_cmp_lg_u32 s36, 0
        s_cbranch_scc1 CV_loop{role}
        s_nop 6
        """)
        for q, c in enumerate(tiles):
            A(f"""
            v_cvt_pk_bf16_f32 v{XR+2*q}, v{ACC+4*q}, v{ACC+4*q+1}
            v_cvt_pk_bf16_f32 v{XR+2*q+1}, v{ACC+4*q+2}, v{ACC+4*q+3}
            ds_write_b32 v6, v{XR+2*q} offset:{512*c}
            ds_write_b32 v6, v{XR+2*q+1} offset:{512*c+64}
            """)
        A(f"""
        s_add_u32 s34, s33, {2*tiles[1]*HTB:#x}
        s_add_u32 s35, s33, {2*tiles[3]*HTB:#x}
        s_waitcnt lgkmcnt(0)
        ds_read_b128 v[20:23], v7 offset:{512*tiles[1]}
        ds_read_b128 v[24:27], v7 offset:{512*tiles[3]}
        """)
        if role == 0:
            A("s_branch CV_out")
    A.label("CV_out")
    A(f"""
    s_waitcnt lgkmcnt(1)
    buffer_store_dwordx4 v[20:23], v38, s[60:63], s34 offen sc1
    s_waitcnt lgkmcnt(0)
    buffer_store_dwordx4 v[24:27], v38, s[60:63], s35 offen sc1
    """)
    stamp(A, 7)


def gen_consumer(A):
    gen_xu(A)
    gen_conv(A)
    ACC = 24
    FP = 152
    acc = lambda m, tt: ACC + 16 * (m * 4 + tt)
    A(f"""
    v_lshrrev_b32 v4, 5, v2              ; h
    v_bfe_u32 v3, v2, 2, 2               ; r
    v_lshl_add_u32 v5, v4, 2, v3
    v_lshlrev_b32 v5, 8, v5
    v_bfe_u32 v6, v2, 4, 1
    v_lshl_add_u32 v5, v6, 5, v5
    v_and_b32 v6, 3, v2
    v_lshl_add_u32 v5, v6, 3, v5
    v_xor_b32 v6, s23, v3
    v_lshl_add_u32 v8, v6, 6, v5
    s_mov_b32 s33, 0
    """)
    for tt in range(4):
        A(f"""
        v_xor_b32 v6, {tt}, v3
        v_lshl_add_u32 v{9+tt}, v6, 6, v5
        """)
    A(f"""
    v_lshlrev_b32 v18, 7, v2
    v_mov_b32 v19, v3
    s_waitcnt vmcnt(0)
    s_barrier                            ; BH
    s_cmp_lg_u32 s22, 0
    s_cbranch_scc1 C_nf2
    """)
    flag_set(A, WS_F2, "s2", 64, NREP, None)
    A("s_nop 1")
    A("v_mov_b32 v3, v19")
    A.label("C_nf2")
    stamp(A, 8)
    for i in range(128):
        A(f"v_mov_b32 v{ACC+i}, 0")
    A(f"""
    s_add_u32 s28, s40, {WS_F2:#x}
    s_cmp_lg_u32 s22, 0
    s_cbranch_scc1 C_f2_got
    """)
    poll(A, "C_f2", f"buffer_load_dwordx4 {v(FP,4)}, v18, s[60:63], s28 offen sc1", q4_ok(FP))
    A("s_barrier                            ; BS")
    stamp(A, 9)

    def fa(base, kk, m): return base + 24 * kk + 4 * m
    def fb(base, kk, tt): return base + 24 * kk + 8 + 4 * tt

    def reads(base):
        out = []
        for kk in range(2):
            for kind, i in [('b', 0), ('a', 0), ('a', 1), ('b', 1), ('b', 2), ('b', 3)]:
                for j in range(2):
                    if kind == 'a':
                        d = fa(base, kk, i) + 2 * j
                        out.append(('ds', f"ds_read_b64_tr_b16 {v(d,2)}, v13 offset:{8192*(i+1) + 4096*kk + 2048*j}", R(d, 2)))
                    else:
                        d = fb(base, kk, i) + 2 * j
                        out.append(('ds', f"ds_read_b64_tr_b16 {v(d,2)}, v{14+i} offset:{4096*kk + 2048*j}", R(d, 2)))
        return out

    def addr_setup():
        return [('op', t) for t in f"""v_add_u32 v13, s33, v8
            v_add_u32 v14, s33, v9
            v_add_u32 v15, s33, v10
            v_add_u32 v16, s33, v11
            v_add_u32 v17, s33, v12
            s_add_u32 s33, s33, {G1_STAGE}
            s_cmp_eq_u32 s33, {G1_SLOTS*G1_STAGE}
            s_cselect_b32 s33, 0, s33""".split("\n")]

    def step(cur, nxt, bar):
        ms = []
        for kk in range(2):
            for tt in range(4):
                for m in range(2):
                    a, b = fa(cur, kk, m), fb(cur, kk, tt)
                    ms.append(('use', f"v_mfma_f32_32x32x16_bf16 {v(acc(m,tt),16)}, {v(a,4)}, {v(b,4)}, {v(acc(m,tt),16)}", R(a, 4) + R(b, 4)))
        rs = reads(nxt)
        ad = addr_setup()
        it = [ms[0]] + ad[:4] + [ms[1]] + ad[4:]
        if bar:
            it += [ms[2], ('drain',), ('op', "s_barrier")]
            rest = ms[3:]
        else:
            rest = ms[2:]
        i = 0
        for m in rest:
            it.append(m)
            for _ in range(2):
                if i < len(rs):
                    it.append(rs[i]); i += 1
        return it + rs[i:]

    S = Sched()
    S.run(addr_setup(), A)
    A("s_barrier                            ; B0")
    stamp(A, 10)
    S.run(reads(FP), A)
    A("s_mov_b32 s36, 7")
    A.label("C_loop3")
    S.run(step(FP, FP + 48, True) + step(FP + 48, FP, False), A)
    A(f"""
    s_sub_u32 s36, s36, 1
    s_cmp_lg_u32 s36, 0
    s_cbranch_scc1 C_loop3
    """)
    stamp(A, 11)
    CS, M, O = FP, FP + 32, FP + 40
    A(f"""
    s_lshl_b32 s26, s23, 7
    v_lshl_add_u32 v6, v4, 4, s26
    v_add_u32 v6, {G1_X}, v6
    v_and_b32 v7, 31, v2
    v_lshlrev_b32 v7, 2, v7
    v_add_u32 v7, {G1_X+1024}, v7
    s_waitcnt lgkmcnt(0)
    """)
    for tt in range(4):
        A(f"ds_read_b32 v{M+2*tt}, v7 offset:{128*tt}")
    for q in range(4):
        for m in range(2):
            A(f"ds_read_b128 {v(CS+16*m+4*q,4)}, v6 offset:{512*m + 32*q}")
    A(f"""
    s_lshl_b32 s26, s24, 2
    s_mul_i32 s26, s26, {HAT}
    s_lshl_b32 s29, s25, 3
    s_lshl_b32 s30, s23, 1
    s_add_u32 s29, s29, s30
    s_lshl_b32 s29, s29, 10
    s_add_u32 s26, s26, s29
    s_add_u32 s26, s26, {WS_HA:#x}
    v_lshlrev_b32 v6, 4, v2
    s_waitcnt lgkmcnt(0)
    s_barrier
    """)
    for tt in range(4):
        for q in range(4):
            g_, u_ = acc(0, tt) + 4 * q, acc(1, tt) + 4 * q
            o = O + 8 * (tt & 1) + 2 * q
            for h in range(2):
                A(f"v_pk_fma_f32 {v(g_+2*h,2)}, {v(CS+4*q+2*h,2)}, {v(M+2*tt,2)}, {v(g_+2*h,2)} op_sel_hi:[1,0,1] neg_lo:[0,1,0] neg_hi:[0,1,0]")
                A(f"v_pk_fma_f32 {v(u_+2*h,2)}, {v(CS+16+4*q+2*h,2)}, {v(M+2*tt,2)}, {v(u_+2*h,2)} op_sel_hi:[1,0,1] neg_lo:[0,1,0] neg_hi:[0,1,0]")
            for i in range(4):
                A(f"v_max_f32 v{g_+i}, 0, v{g_+i}")
            for h in range(2):
                A(f"v_pk_mul_f32 {v(g_+2*h,2)}, {v(g_+2*h,2)}, {v(u_+2*h,2)}")
            for h in range(2):
                A(f"v_cvt_pk_bf16_f32 v{o+h}, v{g_+2*h}, v{g_+2*h+1}")
            if q & 1:
                A(f"buffer_store_dwordx4 {v(o-2,4)}, v6, s[60:63], s26 offen offset:{1024*(q>>1)} sc1")
        if tt < 3:
            A(f"s_add_u32 s26, s26, {HAT}")
    ACC4, AF, BF, NB = 16, 80, 160, 6
    A(f"""
    v_lshl_add_u32 v5, v4, 2, v3
    v_lshlrev_b32 v5, 7, v5
    v_bfe_u32 v7, v2, 4, 1
    v_lshl_add_u32 v5, v7, 5, v5
    v_and_b32 v7, 3, v2
    v_lshl_add_u32 v5, v7, 3, v5
    v_lshrrev_b32 v3, 1, v3
    s_lshl_b32 s28, s23, 12
    v_lshl_add_u32 v8, v3, 6, v5
    v_add_u32 v8, s28, v8
    v_xor_b32 v9, 64, v8
    v_add_u32 v10, 0x10000, v8
    v_add_u32 v11, 0x10000, v9
    v_add_u32 v12, 0x20000, v8
    v_add_u32 v13, 0x20000, v9
    s_and_b32 s26, s23, 1
    s_lshr_b32 s27, s23, 1
    v_xor_b32 v7, s26, v3
    v_lshl_add_u32 v14, v7, 6, v5
    s_lshl_b32 s28, s27, 12
    s_add_u32 s28, s28, {P4_X}
    v_add_u32 v14, s28, v14
    s_lshl_b32 s28, s24, 1
    s_add_u32 s28, s28, s46
    s_lshl_b32 s28, s28, 1
    s_mul_i32 s30, s28, {HAT}
    s_lshl_b32 s28, s23, 11
    s_add_u32 s30, s30, s28
    s_add_u32 s30, s30, {WS_HA:#x}
    s_add_u32 s31, s30, {HAT}
    s_lshl_b32 s34, s24, 9
    s_add_u32 s34, s34, {WS_F4:#x}
    s_and_b32 s28, s25, 3
    s_lshl_b32 s28, s28, 7
    s_lshr_b32 s32, s25, 2
    s_lshl_b32 s32, s32, 2
    s_add_u32 s28, s28, s32
    s_add_u32 s28, s28, s34
    v_mov_b32 v7, s42
    v_mul_u32_u24 v1, {2*128+12}, v2
    s_cmp_lt_u32 s25, 2
    s_cselect_b32 s32, 3, 1
    s_mov_b32 s33, 0
    v_and_b32 v15, 3, v2
    v_lshlrev_b32 v15, 7, v15
    """)
    for i in range(64):
        A(f"v_mov_b32 v{ACC4+i}, 0")
    A(f"""
    s_waitcnt vmcnt(0)
    s_barrier                            ; BX
    s_cmp_lg_u32 s23, 0
    s_cbranch_scc1 C_nf4
    s_mov_b64 exec, s[32:33]
    buffer_store_dword v7, v1, s[60:63], s28 offen sc1
    s_mov_b64 exec, -1
    """)
    A.label("C_nf4")
    stamp(A, 12)

    def ardsl(st, base):
        sl = st % 9
        out = []
        for kk in range(2):
            for dt in range(2):
                for j in range(2):
                    off = sl * 16384 + 2048 * kk + 1024 * j
                    reg = 8 + dt + 2 * (off >> 16)
                    d = base + 8 * kk + 4 * dt + 2 * j
                    out.append(('ds', f"ds_read_b64_tr_b16 {v(d,2)}, v{reg} offset:{off & 0xffff}", R(d, 2)))
        return out

    S = Sched()
    for st in range(5):
        S.run(ardsl(st, AF + 16 * st), A)
    A(f"""
    s_waitcnt lgkmcnt(0)
    s_barrier                            ; BY
    s_cmp_lg_u32 s23, 0
    s_cbranch_scc1 C_f4_got
    """)
    S = Sched()
    poll(A, "C_f4", f"buffer_load_dwordx4 {v(BF,4)}, v15, s[60:63], s34 offen sc1", q4_ok(BF))

    def bload(st):
        b = BF + 16 * (st % NB)
        for kk in range(2):
            for tt in range(2):
                A(f"buffer_load_dwordx4 {v(b+8*kk+4*tt,4)}, v6, s[60:63], s{30+tt} offen offset:{1024*kk} sc1")
        A("s_add_u32 s30, s30, 8192")
        A("s_add_u32 s31, s31, 8192")

    A("s_barrier                            ; BZ")
    stamp(A, 13)
    for st in range(NB):
        bload(st)
    issued = NB
    for st in range(14):
        a = AF + 16 * (st % 5)
        b = BF + 16 * (st % NB)
        items = []
        for kk in range(2):
            items.append(('op', f"s_waitcnt vmcnt({4*(issued-1-st) + (2 if kk == 0 else 0)})"))
            for dt in range(2):
                for tt in range(2):
                    c = ACC4 + 16 * (2 * dt + tt)
                    items.append(('use', f"v_mfma_f32_32x32x16_bf16 {v(c,16)}, {v(a+8*kk+4*dt,4)}, {v(b+8*kk+4*tt,4)}, {v(c,16)}", R(a + 8 * kk + 4 * dt, 4)))
        S.run(items, A)
        if issued < 14:
            bload(issued); issued += 1
        if st + 5 < 14:
            S.run(ardsl(st + 5, a), A)
        if st == 9:
            A("s_waitcnt lgkmcnt(0)")
            S.q = []
            A("s_barrier                            ; BR")
    A("s_nop 7")
    for w in range(4):
        if w < 3:
            A(f"s_cmp_lg_u32 s23, {w}")
            A(f"s_cbranch_scc1 C_x{w+1}")
        for i in range(1, 4):
            dst = (w + i) & 3
            for q in range(4):
                A(f"ds_write_b128 v6, {v(ACC4+16*dst+4*q,4)} offset:{dst*12288 + (i-1)*4096 + q*1024}")
        if w:
            for r in range(16):
                A(f"v_mov_b32 v{ACC4+r}, v{ACC4+16*w+r}")
        if w < 3:
            A("s_branch C_xd")
            A.label(f"C_x{w+1}")
    A.label("C_xd")
    srd(A, 8, 54, 0, L * D * 2)
    FR = 160
    A(f"""
    s_mul_i32 s28, s23, 12288
    v_add_u32 v5, s28, v6
    v_and_b32 v6, 31, v2
    s_lshl_b32 s28, s26, 7
    v_lshl_add_u32 v7, v6, 2, s28
    v_add_u32 v7, {P4_X+8192}, v7
    ds_read_b32 v196, v7
    """)
    for q in range(4):
        A(f"ds_read_b64_tr_b16 {v(FR+2*q,2)}, v14 offset:{1024*q}")
    A(f"""
    v_mul_u32_u24 v6, 896, v6
    v_lshl_add_u32 v6, v4, 4, v6
    s_lshl_b32 s28, s24, 1
    s_add_u32 s28, s28, s46
    s_lshl_b32 s28, s28, 1
    s_add_u32 s28, s28, s26
    s_mul_i32 s29, s28, {32*896}
    s_lshl_b32 s30, s47, 7
    s_add_u32 s29, s29, s30
    s_lshl_b32 s30, s27, 6
    s_add_u32 s29, s29, s30
    s_waitcnt lgkmcnt(0)
    s_barrier                            ; BE
    """)
    PR = 80
    items = []
    for q in range(4):
        for i in range(3):
            d = PR + 16 * i + 4 * q
            items.append(('ds', f"ds_read_b128 {v(d,4)}, v5 offset:{i*4096 + q*1024}", R(d, 4)))
    O = FR + 8
    for q in range(4):
        for h in range(2):
            a = ACC4 + 4 * q + 2 * h
            p0, p1, p2 = (PR + 16 * i + 4 * q + 2 * h for i in range(3))
            items.append(('use', f"v_pk_add_f32 {v(p0,2)}, {v(p0,2)}, {v(p1,2)}", R(p0, 2) + R(p1, 2)))
            items.append(('use', f"v_pk_add_f32 {v(a,2)}, {v(a,2)}, {v(p2,2)}", R(p2, 2)))
            for ln in f"""v_lshlrev_b32 v198, 16, v{FR+2*q+h}
            v_pk_add_f32 {v(a,2)}, {v(a,2)}, {v(p0,2)}
            v_and_b32 v199, 0xffff0000, v{FR+2*q+h}
            v_pk_mul_f32 {v(a,2)}, {v(a,2)}, v[196:197] op_sel_hi:[1,0]
            v_cvt_pk_bf16_f32 v200, v{a}, v{a+1}
            v_lshlrev_b32 v{a}, 16, v200
            v_and_b32 v{a+1}, 0xffff0000, v200
            v_pk_add_f32 {v(a,2)}, {v(a,2)}, v[198:199]
            v_cvt_pk_bf16_f32 v{O+2*q+h}, v{a}, v{a+1}""".split("\n"):
                items.append(('op', ln))
        if q & 1:
            o = O + 2 * (q - 1)
            for ln in f"""s_nop 1
            v_permlane32_swap_b32 v{o}, v{o+2}
            v_permlane32_swap_b32 v{o+1}, v{o+3}
            buffer_store_dwordx4 {v(o,4)}, v6, s[8:11], s29 offen offset:{32*(q>>1)}""".split("\n"):
                items.append(('op', ln))
    Sched().run(items, A)
    stamp_end(A)
    A("s_endpgm")


def gen_loader(A):
    A.label("LOADER")
    WD = 32
    A(f"""
    v_lshrrev_b32 v4, 5, v2              ; h
    v_lshrrev_b32 v9, 4, v2
    v_lshlrev_b32 v10, 2, v9
    v_and_b32 v11, 15, v2
    v_xor_b32 v10, v10, v11
    s_lshl_b32 s26, s23, 3
    v_add_u32 v9, s26, v9
    v_lshlrev_b32 v11, 8, v9
    v_lshl_add_u32 v11, v10, 4, v11
    v_mul_u32_u24 v12, 3584, v9
    v_lshl_add_u32 v12, v10, 4, v12
    s_lshl_b32 s26, s25, 8
    v_add_u32 v12, s26, v12
    v_add_u32 v13, {4*3584-1024}, v12
    s_lshl_b32 s27, s23, 11              ; q*2048
    s_mov_b32 s29, 0                     ; W soffset
    s_mul_i32 s30, s24, {HTB}
    s_add_u32 s30, s30, {WS_HT:#x}         ; h soffset
    v_and_b32 v14, 31, v2
    v_lshlrev_b32 v14, 4, v14
    v_mul_u32_u24 v15, {F*4}, v4
    v_add_u32 v14, v14, v15
    v_lshrrev_b32 v3, 3, v2
    v_and_b32 v5, 7, v2
    s_lshl_b32 s28, s23, 5
    v_add_u32 v6, s28, v3
    v_mul_u32_u24 v16, 896, v6
    v_lshl_add_u32 v16, v5, 4, v16
    s_lshl_b32 s28, s47, 7
    v_add_u32 v16, s28, v16
    v_bfe_u32 v7, v2, 4, 1
    v_lshlrev_b32 v7, 2, v7
    v_xor_b32 v7, v7, v5
    v_lshlrev_b32 v24, 7, v6
    v_lshl_add_u32 v24, v7, 4, v24
    v_add_u32 v25, 0x10000, v24
    v_add_u32 v26, 0x20000, v24
    s_lshl_b32 s28, s23, 4
    v_add_u32 v6, s28, v3
    v_lshlrev_b32 v18, 8, v6
    v_lshl_add_u32 v18, v7, 4, v18
    v_add_u32 v19, 1024, v18
    v_lshlrev_b32 v20, 2, v2
    v_and_b32 v21, 7, v2
    v_lshlrev_b32 v21, 7, v21
    s_add_u32 s38, s40, {WS_F3:#x}
    s_mov_b32 s35, 0
    """)
    srd(A, 4, 48, 0, D * F * 2)
    srd(A, 8, 50, 0, D * F * 2)
    srd(A, 12, 52, 0, D * F * 2)
    V = VM(A)
    V.q = ["pf"] * 4

    def wdma(st):
        base = (st % G1_SLOTS) * G1_STAGE
        A(f"s_add_u32 m0, s27, {base+8192}")
        A("s_nop 0")
        V.op("buffer_load_dwordx4 v12, s[4:7], s29 offen lds", ("s", st))
        V.op("buffer_load_dwordx4 v13, s[4:7], s29 offen offset:1024 lds", ("s", st))
        A(f"s_add_u32 m0, s27, {base+16384}")
        A("s_nop 0")
        V.op("buffer_load_dwordx4 v12, s[8:11], s29 offen lds", ("s", st))
        V.op("buffer_load_dwordx4 v13, s[8:11], s29 offen offset:1024 lds", ("s", st))
        A(f"s_add_u32 s29, s29, {32*3584:#x}")

    def hdma(st):
        base = (st % G1_SLOTS) * G1_STAGE
        A(f"s_add_u32 m0, s27, {base}")
        A("s_nop 0")
        V.op("buffer_load_dwordx4 v11, s[60:63], s30 offen sc1 lds", ("s", st))
        V.op("buffer_load_dwordx4 v11, s[60:63], s30 offen offset:1024 sc1 lds", ("s", st))
        A("s_add_u32 s30, s30, 8192")

    wdn = [0]

    def wdload(n):
        for _ in range(n):
            i = wdn[0]
            A(f"s_mov_b32 s35, {(i >> 2) * 128 * 896 + (i & 3) * 7168:#x}")
            V.op(f"buffer_load_dwordx4 {v(WD+4*i,4)}, v16, s[12:15], s35 offen", ("w", i // 4))
            wdn[0] += 1

    def wdwrite(st):
        off = (st % 9) * 16384
        for i in range(4):
            A(f"ds_write_b128 v{24 + (off >> 16)}, {v(WD+16*st+4*i,4)} offset:{(off & 0xffff) + 1024*i}")

    A("s_waitcnt lgkmcnt(0)")
    A("s_barrier                            ; Bf")
    stamp(A, 4)
    A("s_barrier                            ; Bc")
    stamp(A, 6)
    for st in range(4):
        wdma(st)
    wdload(int(OPT.get("n0", 0)))
    stamp(A, 7)
    A("s_barrier                            ; BH")
    stamp(A, 8)
    wdma(4); wdma(5)
    wdload(int(OPT.get("n1", 0)))
    A("s_barrier                            ; BS")
    stamp(A, 9)
    A(f"s_setprio {OPT.get('prio3', 1)}")
    for st in range(6):
        hdma(st)
    V.wait(("s", 0))
    A("s_barrier                            ; B0")
    stamp(A, 10)
    WSCH = [int(x) for x in OPT.get("wsch", "6.8.3.3.3.8.12.13").split(".")]
    wdload(min(WSCH[0], 56 - wdn[0]))
    V.wait(("s", 1), ("s", 2))
    nxt = 6
    for b in range(1, 8):
        A(f"s_barrier                            ; B{b}")
        while nxt < 14 and nxt <= 2 * b + 4:
            hdma(nxt); wdma(nxt); nxt += 1
        if b == 5:
            V.op("buffer_load_dwordx4 v[28:31], v21, s[60:63], s38 offen sc1", "f3")
        if b == 6:
            V.wait("f3")
            A(q4_ok(28))
            A("s_cbranch_scc1 L_f3_got")
            poll(A, "L_f3", "buffer_load_dwordx4 v[28:31], v21, s[60:63], s38 offen sc1", q4_ok(28))
            A(f"""
            s_lshl_b32 s26, s25, 9
            s_add_u32 s26, s26, {WS_CS:#x}
            s_mov_b32 m0, {G1_X}
            s_lshl_b32 s28, s24, 9
            """)
            V.op("buffer_load_dwordx4 v14, s[60:63], s26 offen sc1 lds", "x")
            A(f"""
            s_and_b32 s26, s23, 1
            s_lshl_b32 s26, s26, 8
            s_add_u32 s28, s28, s26
            s_add_u32 s28, s28, {WS_MEAN:#x}
            s_add_u32 m0, s26, {G1_X+1024}
            s_lshl_b32 s31, s24, 1
            """)
            V.op("buffer_load_dword v20, s[60:63], s28 offen sc1 lds", "x")
            A(f"""
            s_add_u32 s31, s31, s46
            s_lshl_b32 s31, s31, 8
            s_add_u32 s31, s31, {WS_R2:#x}
            s_mov_b32 m0, {P4_X+8192}
            s_mul_i32 s34, s24, {HTB}
            """)
            V.op("buffer_load_dword v20, s[60:63], s31 offen sc1 lds", "x")
            A(f"""
            s_lshl_b32 s28, s46, 7
            s_add_u32 s34, s34, s28
            s_lshl_b32 s28, s47, 14
            s_add_u32 s34, s34, s28
            s_add_u32 s34, s34, {WS_HT:#x}
            s_add_u32 m0, s27, {P4_X}
            s_nop 0
            """)
            V.op("buffer_load_dwordx4 v18, s[60:63], s34 offen sc1 lds", "x")
            V.op("buffer_load_dwordx4 v19, s[60:63], s34 offen offset:1024 sc1 lds", "x")
        wdload(min(WSCH[b], 56 - wdn[0]))
        if b < 6:
            V.wait(("s", 2 * b + 1), ("s", 2 * b + 2))
        if b == 6:
            V.wait("x")
    stamp(A, 11)
    A("s_setprio 0")
    A("s_barrier                            ; B8")
    assert wdn[0] == 56
    for st in range(9):
        V.wait(("w", st))
        wdwrite(st)
    V.drain("lgkmcnt(0)")
    A("s_barrier                            ; BX")
    stamp(A, 12)
    A("s_barrier                            ; BY")
    for st in range(9, 14):
        wdwrite(st)
    A("s_waitcnt lgkmcnt(0)")
    A("s_barrier                            ; BZ")
    stamp(A, 13)
    if "nopf" not in OPT:
        A(f"""
        v_subrev_u32 v3, 256, v0
        s_lshl_b32 s28, s47, 8
        v_add_u32 v3, s28, v3                ; 0..1791
        v_and_b32 v5, 1, v3
        v_mul_u32_u24 v5, {HAT}, v5
        v_lshrrev_b32 v3, 1, v3
        v_lshl_add_u32 v3, v3, 7, v5
        s_lshl_b32 s28, s24, 1
        s_add_u32 s28, s28, s46
        s_mul_i32 s28, s28, {2*HAT}
        s_add_u32 s28, s28, {WS_HA:#x}
        buffer_load_dword v5, v3, s[60:63], s28 offen sc1
        """)
    A("s_barrier                            ; BR")
    A("s_barrier                            ; BE")
    stamp_end(A)
    A("s_endpgm")


def main(path):
    ref = open(f"cdna_kernels/{NAME}.s.ref").read().split("\n")
    head = [l for l in ref if l.startswith(";") and "@launch" not in l]
    A = Asm()
    for l in head:
        A.raw(l)
    A.raw(f"; @launch grid=({GRID},1,1) block=(512,1,1) lds={LDS}")
    A.raw('.amdgcn_target "amdgcn-amd-amdhsa--gfx950"')
    A.raw(".text")
    A.raw(f".globl {KNAME}")
    A.raw(".p2align 8")
    A.raw(f".type {KNAME},@function")
    A.label(KNAME)
    A(f"""
    s_cmp_ge_u32 s2, {GRID}
    s_cbranch_scc1 EXIT
    s_load_dwordx16 s[4:19], s[0:1], {KA['A_re']}
    s_load_dwordx2 s[44:45], s[0:1], {KA['x']}
    s_load_dwordx8 s[48:55], s[0:1], {KA['Wg']}
    s_load_dwordx4 s[64:67], s[0:1], {KA['dbg']}
    s_getpc_b64 s[58:59]
    """)
    A.label("PC0")
    A(f"""
    v_lshlrev_b32 v1, 6, v0
    v_min_u32 v1, CODE_END-PC0-4, v1
    global_load_dword v127, v1, s[58:59]
    v_lshrrev_b32 v1, 6, v0
    v_and_b32 v2, 63, v0                 ; lane
    s_nop 0
    v_readfirstlane_b32 s22, v1          ; wave
    """)
    stamp_begin(A)
    A(f"""
    s_waitcnt lgkmcnt(0)
    s_and_b32 s23, s22, 3
    s_mov_b32 s20, s66
    s_mov_b32 s21, s67
    s_mov_b32 s60, s66
    s_mov_b32 s61, s67
    s_mov_b32 s62, {WS_USED:#x}
    s_mov_b32 s63, 0x00020000
    """)
    gen_p0_loads(A)
    A(f"""
    s_cmp_lt_u32 s2, {NAUX}
    s_cbranch_scc1 AUX
    """)
    gen_phase1(A)
    A("""
    s_cmp_ge_u32 s22, 4
    s_cbranch_scc1 LOADER
    """)
    gen_consumer(A)
    gen_loader(A)
    gen_aux(A)
    A.label("EXIT")
    A("s_endpgm")
    A.label("CODE_END")
    kg_table(A)
    A.raw(f""".section .rodata,"a"
.p2align 6
.amdhsa_kernel {KNAME}
  .amdhsa_next_free_vgpr 256
  .amdhsa_next_free_sgpr 96
  .amdhsa_accum_offset 256
  .amdhsa_group_segment_fixed_size 0
  .amdhsa_kernarg_size 128
  .amdhsa_user_sgpr_count 2
  .amdhsa_user_sgpr_kernarg_segment_ptr 1
  .amdhsa_system_sgpr_workgroup_id_x 1
.end_amdhsa_kernel
""")
    open(path, "w").write(A.text())


if __name__ == "__main__":
    main(sys.argv[1] if len(sys.argv) > 1 else f"km.s")
```

```python
import sys, os

NAME = "sequential_preLN__ssm_conv_s4__glu_gated_reglu__prompt"
KNAME = NAME + "_kernel"
L, D, N, F = 2048, 448, 256, 1792

WS_EPOCH = 0x0000000
WS_CS = 0x0010000
WS_R2 = 0x0020000
WS_MEAN = 0x0030000
NREP = 4
REPS = 64 * 128 + 128
WS_F1 = 0x0040000
WS_F2 = 0x0050000
WS_F3 = 0x0060000
WS_F4 = 0x0070000
WS_XU = 0x0800000
WS_HT = 0x0100000
WS_HA = 0x1000000
WS_DBG = 0x2000000
WS_SIZE = 0x10000000
WS_USED = 0x1800000
HTB = D * 256
HAT = 112 * 1024

KA = dict(x=0, A_re=8, A_im=16, B_re=24, B_im=32, C_re=40, C_im=48, log_dt=56, Dskip=64,
          B_x=72, Wg=80, Wu=88, Wd=96, out=104, dbg=112, ws=120)
STAMP = os.environ.get("STAMP", "0") == "1"
OPT = dict(kv.split("=") for kv in os.environ.get("OPT", "").split(",") if kv)
NSTAMP = 22


class Asm:
    def __init__(self):
        self.lines = []

    def __call__(self, s):
        for ln in s.strip("\n").split("\n"):
            ln = ln.strip()
            if ln:
                self.lines.append("    " + ln)

    def label(self, n):
        self.lines.append(n + ":")

    def raw(self, s):
        self.lines.append(s)

    def text(self):
        return "\n".join(self.lines) + "\n"


def v(a, n=1):
    return f"v{a}" if n == 1 else f"v[{a}:{a+n-1}]"


def s(a, n=1):
    return f"s{a}" if n == 1 else f"s[{a}:{a+n-1}]"


def R(a, n):
    return list(range(a, a + n))


def cmul(A, d, x, y, t):
    A(f"v_pk_mul_f32 {v(t,2)}, {v(x,2)}, {v(y,2)} op_sel:[0,0] op_sel_hi:[1,0]")
    A(f"v_pk_fma_f32 {v(d,2)}, {v(x,2)}, {v(y,2)}, {v(t,2)} op_sel:[1,1,0] op_sel_hi:[0,1,1] neg_lo:[1,0,0]")


def srd(A, sd, sbase, off, nbytes):
    if off:
        A(f"s_add_u32 {s(sd)}, {s(sbase)}, {off:#x}")
        A(f"s_addc_u32 {s(sd+1)}, {s(sbase+1)}, 0")
    else:
        A(f"s_mov_b32 {s(sd)}, {s(sbase)}")
        A(f"s_mov_b32 {s(sd+1)}, {s(sbase+1)}")
    A(f"s_mov_b32 {s(sd+2)}, {nbytes:#x}")
    A(f"s_mov_b32 {s(sd+3)}, 0x00020000")


_late = [False]
def stamp(A, i):
    if STAMP and not ('p0st' in OPT and _late[0] and 14 <= i <= 19):
        A("s_memtime s[68:69]")
        A("s_waitcnt lgkmcnt(0)")
        A(f"s_mov_b32 s{72+i}, s68")


def stamp_begin(A):
    if STAMP:
        for i in range(NSTAMP):
            A(f"s_mov_b32 s{72+i}, 0")
        A("s_memrealtime s[68:69]")
        A("s_waitcnt lgkmcnt(0)")
        A("s_mov_b32 s70, s68")
        stamp(A, 0)


def stamp_end(A):
    if not STAMP:
        return
    stamp(A, NSTAMP - 2)
    A("s_waitcnt vmcnt(0)")
    stamp(A, NSTAMP - 1)
    A(f"""
    s_memrealtime s[68:69]
    s_waitcnt lgkmcnt(0)
    s_add_u32 s96, s20, {WS_DBG:#x}
    s_addc_u32 s97, s21, 0
    s_mov_b32 s98, 0x100000
    s_mov_b32 s99, 0x00020000
    v_lshrrev_b32 v1, 6, v0
    s_lshl_b32 s71, s2, 3
    v_add_u32 v1, s71, v1
    v_lshlrev_b32 v1, 7, v1
    """)
    for i in range(NSTAMP):
        A(f"v_mov_b32 v2, s{72+i}")
        A(f"buffer_store_dword v2, v1, s[96:99], 0 offen offset:{4*i}")
    if "dbg" in OPT:
        n = len(A.lines)
        A(f"""
        s_cmp_lg_u32 s2, {OPT['dbg']}
        s_cbranch_scc1 DBG{n}
        s_cmp_lg_u32 s22, 0
        s_cbranch_scc1 DBG{n}
        s_mov_b32 s92, s64
        s_mov_b32 s93, s65
        s_mov_b32 s94, 256
        s_mov_b32 s95, 0x00020000
        s_sub_u32 s69, s68, s70
        v_mov_b32 v2, s69
        buffer_store_dword v2, off, s[92:95], 0
        """)
        for i in range(1, NSTAMP):
            A(f"s_sub_u32 s69, s{72+i}, s72")
            A(f"v_mov_b32 v2, s69")
            A(f"buffer_store_dword v2, off, s[92:95], 0 offset:{4*i}")
        A.label(f"DBG{n}")
    A("v_mov_b32 v2, s68")
    A("buffer_store_dword v2, v1, s[96:99], 0 offen offset:124")
    A("v_mov_b32 v2, s70")
    A("buffer_store_dword v2, v1, s[96:99], 0 offen offset:120")


class Sched:
    def __init__(self):
        self.q = []

    def run(self, items, emit):
        for it in items:
            if it[0] == 'ds':
                emit(it[1])
                self.q.append(set(it[2]))
            elif it[0] == 'use':
                need = -1
                for i, d in enumerate(self.q):
                    if d & set(it[2]):
                        need = i
                if need >= 0:
                    n = min(len(self.q) - 1 - need, 15)
                    emit(f"s_waitcnt lgkmcnt({n})")
                    self.q = self.q[len(self.q) - n:] if n else []
                emit(it[1])
            elif it[0] == 'drain':
                emit("s_waitcnt lgkmcnt(0)")
                self.q = []
            else:
                emit(it[1])


class VM:
    def __init__(self, A):
        self.A = A
        self.q = []

    def op(self, text, tag):
        self.A(text)
        self.q.append(tag)
        assert len(self.q) <= 63, "too many outstanding vmem ops"

    def wait(self, *tags, extra=""):
        need = -1
        for i, t in enumerate(self.q):
            if t in tags:
                need = i
        if need >= 0:
            n = len(self.q) - 1 - need
            self.A(f"s_waitcnt vmcnt({n}) {extra}")
            self.q = self.q[len(self.q) - n:] if n else []
        elif extra:
            self.A(f"s_waitcnt {extra}")

    def drain(self, extra=""):
        self.A(f"s_waitcnt vmcnt(0) {extra}")
        self.q = []


def poll(A, name, load, okcode, cnt=36, sleep=1):
    A(f"s_mov_b32 s{cnt}, 0x40000")
    A.label(f"{name}_poll")
    A(load)
    A("s_waitcnt vmcnt(0)")
    A(okcode)
    A(f"""
    s_cbranch_scc1 {name}_got
    s_sub_u32 s{cnt}, s{cnt}, 1
    s_cmp_eq_u32 s{cnt}, 0
    s_cbranch_scc1 {name}_got
    s_sleep {sleep}
    s_branch {name}_poll
    """)
    A.label(f"{name}_got")


def flag_set(A, region, idx_sgpr, nline, nrep, after):
    A(f"""
    s_lshr_b32 s28, {idx_sgpr}, 2
    s_lshl_b32 s28, s28, 7
    s_and_b32 s32, {idx_sgpr}, 3
    s_lshl_b32 s32, s32, 2
    s_add_u32 s28, s28, s32
    s_add_u32 s28, s28, {region:#x}
    v_mul_u32_u24 v1, {REPS}, v2
    v_mov_b32 v3, s42
    s_mov_b64 exec, {(1<<nrep)-1}
    buffer_store_dword v3, v1, s[60:63], s28 offen sc1
    s_mov_b64 exec, -1
    """)


def q4_ok(r):
    return (f"v_xor_b32 v{r}, s42, v{r}\nv_xor_b32 v{r+1}, s42, v{r+1}\nv_xor_b32 v{r+2}, s42, v{r+2}\nv_xor_b32 v{r+3}, s42, v{r+3}\n"
            f"v_or3_b32 v{r}, v{r}, v{r+1}, v{r+2}\nv_or_b32 v{r}, v{r}, v{r+3}\nv_cmp_eq_u32 vcc, 0, v{r}\ns_nop 3\ns_cmp_eq_u64 vcc, exec")


def reduce64(A, regs, tmp):
    for ctl in ("quad_perm:[1,0,3,2]", "quad_perm:[2,3,0,1]", "row_half_mirror", "row_mirror"):
        A("s_nop 0")
        for r in regs:
            A(f"v_add_f32_dpp v{r}, v{r}, v{r} {ctl} row_mask:0xf bank_mask:0xf")
    for sw in ("v_permlane16_swap_b32", "v_permlane32_swap_b32"):
        for i, r in enumerate(regs):
            A(f"v_mov_b32 v{tmp+i}, v{r}")
        A("s_nop 1")
        for i, r in enumerate(regs):
            A(f"{sw} v{r}, v{tmp+i}")
        for i, r in enumerate(regs):
            A(f"v_add_f32 v{r}, v{r}, v{tmp+i}")


def reduce8(A, r):
    A(f"""
    s_nop 1
    v_add_f32_dpp v{r}, v{r}, v{r} quad_perm:[1,0,3,2] row_mask:0xf bank_mask:0xf
    s_nop 1
    v_add_f32_dpp v{r}, v{r}, v{r} quad_perm:[2,3,0,1] row_mask:0xf bank_mask:0xf
    s_nop 1
    v_add_f32_dpp v{r}, v{r}, v{r} row_half_mirror row_mask:0xf bank_mask:0xf
    """)


def var_to_s(A, r):
    A(f"""
    v_max_f32 v{r}, 0, v{r}
    v_cvt_pk_bf16_f32 v{r}, v{r}, v{r}
    v_lshlrev_b32 v{r}, 16, v{r}
    v_add_f32 v{r}, 0x3727c5ac, v{r}
    v_cvt_pk_bf16_f32 v{r}, v{r}, v{r}
    v_lshlrev_b32 v{r}, 16, v{r}
    v_sqrt_f32 v{r}, v{r}
    s_nop 0
    v_cvt_pk_bf16_f32 v{r}, v{r}, v{r}
    v_lshlrev_b32 v{r}, 16, v{r}
    """)


NAUX, NMAIN = 32, 224
GRID = 256
KG_ROW = 1056
KG_CH = 57 * KG_ROW
KG_TB = {0: 0, 1: 16, 3: 32, 2: 48}
KL_S = 8704
KPOS = lambda l: (l & 7) * 272 + (l >> 3)
KALPHA = [[0, 4, 128, 132], [512, 516, 1024, 1536], [256, 384, 2048, 2049]]
CV_BASE = 98304 + 64
CV_KS = 4160
CV_US = 4576
CV_KC = 4 * CV_KS
CV_UX = CV_BASE + 2 * CV_KC + 64
CV_XOFF = 2 * CV_US
CV_UD = CV_XOFF + 4096
KL_BASE = CV_UX
G1_STAGE = 24576
G1_SLOTS = 6
G1_X = G1_SLOTS * G1_STAGE
P4_SLOT = [0, 3, 4, 5, 6, 7, 8, 1, 2, 0, 3, 4, 5, 6]
P4_X = 149504
WD_EARLY = int(OPT.get("wde", 32))
LDS = 158208
assert CV_UX + 2 * CV_UD <= LDS and P4_X + 8192 + 256 <= LDS


def bf16_round_int(l):
    if l <= 256:
        return l
    sh = l.bit_length() - 8
    q, r = l >> sh, l & ((1 << sh) - 1)
    half = 1 << (sh - 1)
    if r > half or (r == half and (q & 1)):
        q += 1
    return q << sh


def kg_table(A):
    A.raw(".p2align 6")
    A.raw(".type KG_TABLE,@object")
    A.label("KG_TABLE")
    rows = []
    for tid in range(512):
        w, lane = tid >> 6, tid & 63
        ch, o = tid >> 8, tid & 255
        j, g = lane & 15, lane >> 4
        T = min(w & 3, 2)
        vals = [KL_BASE + ch * KL_S + 4 * KPOS(bf16_round_int(2047 - 8 * o - e)) for e in range(8)]
        vals += [KL_BASE + ch * KL_S + 4 * (KPOS(KALPHA[T][g] + [r, 128 * r, 2 * r][T]) + j) for r in range(4)]
        rows.append(vals)
    for part in range(3):
        for tid in range(512):
            A.raw(".long " + ", ".join(str(x) for x in rows[tid][4 * part:4 * part + 4]))
    A.raw(".size KG_TABLE, 24576")
    A.label("TABLE_END")


P0_LDS = 131072
NPF = 13


def gen_p0_loads(A):
    A(f"""
    s_lshl_b32 s26, s2, 3
    s_add_u32 s26, s26, s22              ; row
    s_mul_i32 s26, s26, 896
    v_lshl_add_u32 v1, v2, 4, s26
    v_mov_b32 v96, 0
    v_mov_b32 v97, 0
    v_mov_b32 v98, 0
    v_mov_b32 v99, 0
    s_mov_b32 s32, -1
    s_mov_b32 s33, 0x00ffffff
    s_mov_b64 exec, s[32:33]
    global_load_dwordx4 v[96:99], v1, s[44:45]
    s_mov_b64 exec, -1
    buffer_load_dword v126, off, s[60:63], 0 sc1
    """)


def gen_p0(A, uid, after_x=None, younger=0):
    X, U, I = 96, 104, 108
    A(f"""
    s_mov_b32 s26, 0x3f803f80
    v_mov_b32 v101, 0
    v_mov_b32 v102, 0
    s_mul_i32 s27, s22, 1792
    s_add_u32 s27, s27, {P0_LDS}
    v_lshl_add_u32 v116, v2, 5, s27
    v_bfe_u32 v117, v2, 2, 2             ; r
    v_mul_u32_u24 v117, 1792, v117
    v_and_b32 v118, 3, v2
    v_lshl_add_u32 v117, v118, 3, v117
    v_lshrrev_b32 v118, 4, v2            ; g
    v_lshl_add_u32 v117, v118, 5, v117
    s_lshl_b32 s27, s22, 7
    s_add_u32 s27, s27, {P0_LDS}
    v_add_u32 v117, s27, v117
    v_lshrrev_b32 v118, 3, v2
    v_lshlrev_b32 v118, 15, v118
    v_and_b32 v119, 7, v2
    v_lshl_add_u32 v118, v119, 4, v118
    s_lshl_b32 s34, s22, 18              ; unit*8*32768
    s_lshl_b32 s35, s2, 7
    s_add_u32 s34, s34, s35
    s_add_u32 s34, s34, {WS_XU:#x}
    s_add_u32 s35, s34, {8<<18:#x}
    """)
    if "p0st" in OPT: stamp(A, 14)
    A(f"s_waitcnt vmcnt({younger+1})")
    if "p0st" in OPT: stamp(A, 15)

    if after_x: after_x()
    for i in range(4):
        A(f"v_dot2c_f32_bf16 v101, s26, v{X+i}")
        A(f"v_dot2c_f32_bf16 v102, v{X+i}, v{X+i}")
    A("""
    s_nop 2
    """)
    reduce64(A, [101, 102], 120)
    A(f"""
    v_mul_f32 v101, 0x3b124925, v101     ; mean
    v_mul_f32 v102, 0x3b124925, v102
    v_fma_f32 v102, -v101, v101, v102
    v_cvt_pk_bf16_f32 v120, v101, v101
    v_lshlrev_b32 v120, 16, v120         ; m_bf
    """)
    var_to_s(A, 102)
    A(f"""
    v_rcp_f32 v121, v102
    s_mov_b32 s26, 0x05040100
    s_mov_b32 s27, 0x07060302
    """)
    for i in range(4):
        t_ = 122 + 2 * (i & 1)
        A(f"""
        v_lshlrev_b32 v{t_}, 16, v{X+i}
        v_and_b32 v{t_+1}, 0xffff0000, v{X+i}
        v_pk_add_f32 {v(t_,2)}, {v(t_,2)}, v[120:121] op_sel_hi:[1,0] neg_lo:[0,1] neg_hi:[0,1]
        v_cvt_pk_bf16_f32 v{U+i}, v{t_}, v{t_+1}
        v_lshlrev_b32 v{t_}, 16, v{U+i}
        v_and_b32 v{t_+1}, 0xffff0000, v{U+i}
        v_pk_mul_f32 {v(t_,2)}, {v(t_,2)}, v[120:121] op_sel:[0,1] op_sel_hi:[1,1]
        v_cvt_pk_bf16_f32 v{U+i}, v{t_}, v{t_+1}
        v_perm_b32 v{I+2*i}, v{U+i}, v{X+i}, s26
        v_perm_b32 v{I+2*i+1}, v{U+i}, v{X+i}, s27
        """)
    A(f"""
    s_mov_b64 exec, s[32:33]
    ds_write_b128 v116, {v(I,4)}
    ds_write_b128 v116, {v(I+4,4)} offset:16
    s_mov_b64 exec, -1
    s_waitcnt lgkmcnt(0)
    """)
    if "p0st" in OPT: stamp(A, 17)
    A(f"""
    s_barrier                            ; Bp
    """)
    if "p0st" in OPT: stamp(A, 18)
    A(f"""
    ds_read_b64_tr_b16 v[96:97], v117
    ds_read_b64_tr_b16 v[98:99], v117 offset:{4*1792}
    ds_read_b64_tr_b16 v[100:101], v117 offset:1024
    ds_read_b64_tr_b16 v[102:103], v117 offset:{4*1792+1024}
    s_waitcnt lgkmcnt(2)
    buffer_store_dwordx4 v[96:99], v118, s[60:63], s34 offen sc1
    s_cmp_ge_u32 s22, 6
    s_waitcnt lgkmcnt(0)
    s_cbranch_scc1 P0_skip{uid}
    buffer_store_dwordx4 v[100:103], v118, s[60:63], s35 offen sc1
    """)
    A.label(f"P0_skip{uid}")


def gen_f1_publish(A, name, also_f2=False, younger=0):
    A(f"""
    s_waitcnt vmcnt({younger})
    v_readfirstlane_b32 s41, v126        ; epoch
    s_barrier                            ; Bq
    s_mul_i32 s42, s41, 0x9e3779b1
    s_add_u32 s42, s42, 0x7f4a7c15
    s_cmp_lg_u32 s22, 0
    s_cbranch_scc1 {name}
    """)
    flag_set(A, WS_F1, "s2", 64, NREP, None)
    if also_f2:
        flag_set(A, WS_F2, "s2", 64, NREP, None)
    A.label(name)


def gen_aux(A):
    _late[0] = False
    A.label("AUX")
    X = 8
    gen_p0(A, 0)
    stamp(A, 1)
    gen_f1_publish(A, "AUX_f1", True)
    stamp(A, 2)
    S = 64
    A(f"""
    v_min_u32 v7, 447, v0
    v_mul_u32_u24 v1, 0x124a, v7
    v_lshrrev_b32 v1, 16, v1             ; rg
    v_mul_u32_u24 v2, 14, v1
    v_sub_u32 v2, v7, v2                 ; chunk
    v_mul_u32_u24 v3, 3584, v1
    v_lshl_add_u32 v3, v2, 4, v3
    s_and_b32 s26, s2, 15
    s_mul_i32 s12, s26, 224
    s_cmp_ge_u32 s2, 16
    s_cselect_b32 s4, s50, s48
    s_cselect_b32 s5, s51, s49
    """)
    srd(A, 8, 4, 0, D * F * 2)
    for j in range(14):
        A(f"buffer_load_dwordx4 {v(X+4*j,4)}, v3, s[8:11], s12 offen")
        if j < 13:
            A(f"s_add_u32 s12, s12, {32*3584:#x}")
    for i in range(8):
        A(f"v_mov_b32 v{S+i}, 0")
    for j in range(14):
        A(f"s_waitcnt vmcnt({13-j})")
        for q in range(4):
            A(f"""
            v_lshlrev_b32 v72, 16, v{X+4*j+q}
            v_and_b32 v73, 0xffff0000, v{X+4*j+q}
            v_pk_add_f32 {v(S+2*q,2)}, {v(S+2*q,2)}, v[72:73]
            """)
    A(f"""
    v_mul_u32_u24 v4, 464, v1
    v_lshl_add_u32 v4, v2, 5, v4
    ds_write_b128 v4, {v(S,4)}
    ds_write_b128 v4, {v(S+4,4)} offset:16
    v_and_b32 v5, 127, v0
    v_min_u32 v5, 111, v5                ; column
    v_lshrrev_b32 v6, 7, v0              ; part 0..3
    v_mul_u32_u24 v7, {8*464}, v6
    v_lshl_add_u32 v7, v5, 2, v7
    s_waitcnt lgkmcnt(0)
    s_barrier
    """)
    for i in range(8):
        A(f"ds_read_b32 v{X+i}, v7 offset:{464*i}")
    A("s_waitcnt lgkmcnt(0)")
    for st in (4, 2, 1):
        for i in range(st):
            A(f"v_add_f32 v{X+i}, v{X+i}, v{X+i+st}")
    A(f"""
    v_lshlrev_b32 v7, 9, v6
    v_lshl_add_u32 v7, v5, 2, v7
    ds_write_b32 v7, v{X} offset:16384
    v_lshlrev_b32 v7, 2, v5
    s_waitcnt lgkmcnt(0)
    s_barrier
    ds_read_b32 v{X}, v7 offset:16384
    ds_read_b32 v{X+1}, v7 offset:{16384+512}
    ds_read_b32 v{X+2}, v7 offset:{16384+1024}
    ds_read_b32 v{X+3}, v7 offset:{16384+1536}
    s_mul_i32 s12, s2, 448
    s_add_u32 s12, s12, {WS_CS:#x}
    s_waitcnt lgkmcnt(0)
    v_add_f32 v{X}, v{X}, v{X+1}
    v_add_f32 v{X+2}, v{X+2}, v{X+3}
    v_add_f32 v{X}, v{X}, v{X+2}
    v_cmp_gt_u32 vcc, 112, v0
    s_and_saveexec_b64 s[32:33], vcc
    s_cbranch_execz AUX_c
    buffer_store_dword v{X}, v7, s[60:63], s12 offen sc1
    """)
    A.label("AUX_c")
    A("s_mov_b64 exec, s[32:33]")
    stamp(A, 3)
    A(f"""
    v_and_b32 v2, 63, v0
    v_lshlrev_b32 v5, 7, v2
    s_and_b32 s28, s2, {NREP-1}
    s_mul_i32 s28, s28, {REPS}
    s_add_u32 s28, s28, {WS_F2:#x}
    s_cmp_lg_u32 s22, 0
    s_cbranch_scc1 AUX_w
    """)
    poll(A, "AUX_p2", "buffer_load_dwordx4 v[8:11], v5, s[60:63], s28 offen sc1", q4_ok(8), sleep=8)
    A(f"""
    s_cmp_lg_u32 s2, 0
    s_cbranch_scc1 AUX_w
    s_add_u32 s26, s41, 1
    v_mov_b32 v8, s26
    s_mov_b64 exec, 1
    buffer_store_dword v8, off, s[60:63], 0 sc1
    s_mov_b64 exec, -1
    """)
    A.label("AUX_w")
    A("""
    s_waitcnt vmcnt(0)
    s_barrier
    """)
    stamp(A, 4)
    S1, S2 = 40, 48
    A(f"""
    v_lshrrev_b32 v1, 3, v0              ; dgrp 0..63
    v_and_b32 v2, 7, v0
    v_lshlrev_b32 v3, 8, v1
    v_lshl_add_u32 v3, v2, 4, v3
    s_lshr_b32 s24, s2, 1
    s_mul_i32 s24, s24, {HTB}
    s_and_b32 s25, s2, 1
    s_lshl_b32 s25, s25, 7
    s_add_u32 s24, s24, s25
    s_add_u32 s24, s24, {WS_HT:#x}
    """)
    for i in range(7):
        A(f"buffer_load_dwordx4 {v(X+4*i,4)}, v3, s[60:63], s24 offen sc1")
        if i < 6:
            A(f"s_add_u32 s24, s24, 16384")
    for i in range(16):
        A(f"v_mov_b32 v{S1+i}, 0")
    for i in range(7):
        A(f"s_waitcnt vmcnt({6-i})")
        for q in range(4):
            A(f"""
            v_lshlrev_b32 v56, 16, v{X+4*i+q}
            v_and_b32 v57, 0xffff0000, v{X+4*i+q}
            v_pk_add_f32 {v(S1+2*q,2)}, {v(S1+2*q,2)}, v[56:57]
            v_pk_fma_f32 {v(S2+2*q,2)}, v[56:57], v[56:57], {v(S2+2*q,2)}
            """)
    A(f"""
    v_mul_u32_u24 v4, 528, v1
    v_lshl_add_u32 v4, v2, 5, v4
    ds_write_b128 v4, {v(S1,4)}
    ds_write_b128 v4, {v(S1+4,4)} offset:16
    ds_write_b128 v4, {v(S2,4)} offset:256
    ds_write_b128 v4, {v(S2+4,4)} offset:272
    v_and_b32 v5, 127, v0
    v_lshrrev_b32 v6, 7, v0
    v_mul_u32_u24 v7, {16*528}, v6
    v_lshl_add_u32 v7, v5, 2, v7
    s_waitcnt lgkmcnt(0)
    s_barrier
    """)
    for i in range(16):
        A(f"ds_read_b32 v{X+i}, v7 offset:{528*i}")
    A("s_waitcnt lgkmcnt(0)")
    for st in (8, 4, 2, 1):
        for i in range(st):
            A(f"v_add_f32 v{X+i}, v{X+i}, v{X+i+st}")
    A(f"""
    v_lshlrev_b32 v7, 2, v0
    ds_write_b32 v7, v{X} offset:{64*528}
    s_waitcnt lgkmcnt(0)
    s_barrier
    s_cmp_lg_u32 s22, 0
    s_cbranch_scc1 AUX_done
    """)
    for i in range(4):
        A(f"ds_read_b32 v{X+i}, v7 offset:{64*528 + 512*i}")
        A(f"ds_read_b32 v{X+4+i}, v7 offset:{64*528 + 512*i + 256}")
    A(f"""
    s_lshl_b32 s26, s2, 8
    s_add_u32 s27, s26, {WS_MEAN:#x}
    s_add_u32 s26, s26, {WS_R2:#x}
    s_waitcnt lgkmcnt(0)
    v_add_f32 v{X}, v{X}, v{X+1}
    v_add_f32 v{X+2}, v{X+2}, v{X+3}
    v_add_f32 v{X+4}, v{X+4}, v{X+5}
    v_add_f32 v{X+6}, v{X+6}, v{X+7}
    v_add_f32 v40, v{X}, v{X+2}
    v_add_f32 v41, v{X+4}, v{X+6}
    v_mul_f32 v40, 0x3b124925, v40       ; mean
    v_cvt_pk_bf16_f32 v42, v40, v40
    v_lshlrev_b32 v42, 16, v42
    buffer_store_dword v42, v7, s[60:63], s27 offen sc1
    v_mul_f32 v41, 0x3b124925, v41
    v_fma_f32 v41, -v40, v40, v41
    """)
    var_to_s(A, 41)
    A(f"""
    v_mul_f32 v41, v41, v41
    v_rcp_f32 v41, v41
    v_and_b32 v2, 63, v0
    buffer_store_dword v41, v7, s[60:63], s26 offen sc1
    s_waitcnt vmcnt(0)
    """)
    flag_set(A, WS_F3, "s2", 8, NREP, None)
    A.label("AUX_done")
    stamp_end(A)
    A("s_endpgm")


def gen_phase1(A):
    XU = 112
    A(f"""
    s_sub_u32 s3, s2, {NAUX}
    s_and_b32 s26, s3, 7
    s_mul_i32 s26, s26, 28
    s_lshr_b32 s27, s3, 3
    s_add_u32 s43, s26, s27              ; dpair
    s_lshl_b32 s27, s43, 10
    v_lshl_add_u32 v3, v0, 1, s27
    s_lshr_b32 s28, s22, 2               ; channel
    s_lshl_b32 s26, s43, 1
    s_add_u32 s26, s26, s28
    s_lshl_b32 s26, s26, 1
    v_mov_b32 v31, s26                   ; 2*d
    global_load_ushort v10, v31, s[16:17]
    global_load_ushort v4, v3, s[4:5]
    global_load_ushort v5, v3, s[6:7]
    global_load_ushort v6, v3, s[8:9]
    global_load_ushort v7, v3, s[10:11]
    global_load_ushort v8, v3, s[12:13]
    global_load_ushort v9, v3, s[14:15]
    global_load_ushort v29, v31, s[18:19]
    s_mul_i32 s31, s28, {KG_CH}
    s_lshl_b32 s26, s23, 8
    s_add_u32 m0, s31, s26
    v_mov_b32 v30, 0x00003f80
    ds_write_addtid_b32 v30
    ; tile ids for later phases
    s_and_b32 s24, s3, 3
    s_lshl_b32 s24, s24, 2
    s_bfe_u32 s25, s3, 0x20003
    s_add_u32 s24, s24, s25              ; tblk
    s_bfe_u32 s46, s3, 0x10002
    s_mul_i32 s25, s46, 7
    s_lshr_b32 s47, s3, 5                ; dblk
    s_add_u32 s25, s25, s47              ; fblk
    """)
    gen_p0(A, 1, None, 8)
    A(f"""
    s_add_u32 s58, s58, KG_TABLE-PC0
    s_addc_u32 s59, s59, 0
    v_lshlrev_b32 v18, 4, v0
    v_add_u32 v19, 8192, v18
    v_add_u32 v17, 16384, v18
    global_load_dwordx4 v[12:15], v17, s[58:59]
    global_load_dwordx4 v[20:23], v18, s[58:59]
    global_load_dwordx4 v[24:27], v19, s[58:59]
    """)
    stamp(A, 1)
    ACC = 32
    AR, AI = 44, 45
    BP, CP = 46, 48
    A2, B2 = 50, 51
    T0, T1 = 52, 54
    P = {r: 56 + 2 * (r - 1) for r in range(1, 8)}
    Z8, Q1 = 70, 72
    QA, QB = 74, 76
    BA, BB = 78, 80
    X0 = 82
    E0, E1, E2 = 86, 88, 90
    W0 = 92
    FR = 44
    A(f"""
    s_waitcnt vmcnt(9)
    v_lshlrev_b32 v28, 16, v10
    v_mul_f32 v28, 0x3fb8aa3b, v28
    v_exp_f32 v28, v28
    v_lshlrev_b32 v{AR}, 16, v4
    v_cvt_pk_bf16_f32 v28, v28, v28
    v_lshlrev_b32 v{AI}, 16, v5
    v_lshlrev_b32 v28, 16, v28           ; dt
    """)
    A(f"""
    v_mul_f32 v{A2}, v28, v{AR}
    v_mul_f32 v{B2}, v28, v{AI}
    v_mul_f32 v{A2}, 0x3fb8aa3b, v{A2}
    v_mul_f32 v{B2}, 0.15915494, v{B2}
    v_mul_f32 v{E1}, 0x41000000, v{A2}
    v_mul_f32 v{E1+1}, 0x41000000, v{B2}
    v_mul_f32 v{E2}, 0x43000000, v{A2}
    v_mul_f32 v{E2+1}, 0x43000000, v{B2}
    v_exp_f32 v{E0}, v{A2}
    v_fract_f32 v{E0+1}, v{B2}
    v_exp_f32 v{E1}, v{E1}
    v_fract_f32 v{E1+1}, v{E1+1}
    v_exp_f32 v{E2}, v{E2}
    v_fract_f32 v{E2+1}, v{E2+1}
    v_cos_f32 v{P[1]}, v{E0+1}
    v_sin_f32 v{P[1]+1}, v{E0+1}
    v_cos_f32 v{Z8}, v{E1+1}
    v_sin_f32 v{Z8+1}, v{E1+1}
    v_cos_f32 v{Q1}, v{E2+1}
    v_sin_f32 v{Q1+1}, v{E2+1}
    v_pk_mul_f32 {v(P[1],2)}, {v(P[1],2)}, {v(E0,2)} op_sel_hi:[1,0]
    v_pk_mul_f32 {v(Z8,2)}, {v(Z8,2)}, {v(E1,2)} op_sel_hi:[1,0]
    v_pk_mul_f32 {v(Q1,2)}, {v(Q1,2)}, {v(E2,2)} op_sel_hi:[1,0]
    """)
    rowof = {}
    for T in range(3):
        for g in range(4):
            for r in range(4):
                e = KALPHA[T][g] + [r, 128 * r, 2 * r][T]
                if e <= 2048:
                    rowof[e] = KG_TB[T] + 4 * g + r
    wsel = [0]

    def emit(row, reg, neg=""):
        w = W0 + wsel[0]; wsel[0] ^= 1
        A(f"v_cvt_pk_bf16_f32 v{w}, v{reg}, {neg}v{reg+1}")
        A(f"ds_write_addtid_b32 v{w} offset:{row*KG_ROW}")

    emitA = lambda e, reg: emit(rowof[e], reg)
    mulA = lambda d, x, y: cmul(A, d, x, y, T0)
    emitA(1, P[1])
    mulA(P[2], P[1], P[1]); emitA(2, P[2])
    mulA(P[3], P[2], P[1]); emitA(3, P[3])
    mulA(P[4], P[2], P[2]); emitA(4, P[4])
    mulA(P[5], P[4], P[1]); emitA(5, P[5])
    mulA(P[6], P[4], P[2]); emitA(6, P[6])
    mulA(P[7], P[4], P[3]); emitA(7, P[7])
    cur = Q1
    for i in range(1, 17):
        if i > 1:
            nxt = QA if cur != QA else QB
            mulA(nxt, cur, Q1)
            cur = nxt
        if i == int(OPT.get("f1at", 2)):
            gen_f1_publish(A, "P1_f1", younger=3)
            A(f"""
            s_cmp_lt_u32 s22, 4
            s_cbranch_scc1 P1_nowd
            s_cmp_eq_u32 s22, 7
            s_cbranch_scc1 P1_nowd
            v_min_u32 v16, 55, v2
            s_mul_i32 s28, s3, {56*128}
            v_lshl_add_u32 v16, v16, 7, s28
            s_cmp_eq_u32 s22, 4
            s_cselect_b32 s34, s48, s50
            s_cselect_b32 s35, s49, s51
            s_cmp_eq_u32 s22, 6
            s_cselect_b32 s34, s52, s34
            s_cselect_b32 s35, s53, s35
            """)
            if "nopf0" not in OPT:
                A("global_load_dword v128, v16, s[34:35]")
            A.label("P1_nowd")
        emitA(128 * i, cur)
        for r in {1: range(1, 8), 2: (2, 4, 6), 3: (2, 4, 6), 4: (4,), 5: (4,), 6: (4,), 7: (4,)}.get(i, ()):
            mulA(X0, cur, P[r])
            emitA(128 * i + r, X0)
    A(f"""
    s_lshr_b32 s28, s22, 2
    v_lshlrev_b32 v{BP}, 16, v6
    v_lshlrev_b32 v{BP+1}, 16, v7
    v_lshlrev_b32 v{CP}, 16, v8
    v_lshlrev_b32 v{CP+1}, 16, v9
    v_lshlrev_b32 v29, 16, v29
    v_and_b32 v4, 255, v0
    v_cmp_eq_u32 vcc, 0, v4
    """)
    cmul(A, BA, CP, BP, T0)
    A(f"""
    v_cndmask_b32 v29, 0, v29, vcc
    v_pk_mul_f32 {v(BA,2)}, {v(BA,2)}, v[28:29] op_sel_hi:[1,0]
    """)
    curb = BA
    for j in range(16):
        if j > 0:
            nxt = BB if curb == BA else BA
            cmul(A, nxt, curb, Z8, T1)
            curb = nxt
        emit(KG_TB[3] + j, curb, "-")
    FB = 132
    A(f"""
    s_and_b32 s40, s2, {NREP-1}
    s_mul_i32 s40, s40, {REPS}
    v_and_b32 v5, 15, v2
    v_mul_u32_u24 v5, {KG_ROW}, v5
    v_lshrrev_b32 v6, 4, v2
    v_lshl_add_u32 v5, v6, 4, v5
    s_mul_i32 s26, s28, {KG_CH}
    v_add_u32 v5, s26, v5
    s_cmp_eq_u32 s23, 1
    s_cselect_b32 s26, {KG_TB[1]*KG_ROW}, 0
    s_cmp_eq_u32 s23, 2
    s_cselect_b32 s26, {KG_TB[2]*KG_ROW}, s26
    v_add_u32 v6, s26, v5
    s_mul_i32 s29, s28, {CV_KC}
    s_add_u32 s29, s29, {CV_BASE}
    s_waitcnt lgkmcnt(0)
    """)
    stamp(A, 3)
    A(f"""
    s_barrier                            ; Ba
    s_cmp_eq_u32 s23, 3
    s_cbranch_scc1 P1_nomm
    """)
    items = []

    def rd(ks):
        b = FB + 8 * (ks % 14)
        return [('ds', f"ds_read_b128 {v(b,4)}, v6 offset:{ks*64}", R(b, 4)),
                ('ds', f"ds_read_b128 {v(b+4,4)}, v5 offset:{KG_TB[3]*KG_ROW + ks*64}", R(b + 4, 4))]
    for ks in range(7):
        items += rd(ks)
    for ks in range(16):
        b = FB + 8 * (ks % 14)
        acc_ = ACC + 4 * (ks & 1)
        c = "0" if ks < 2 else v(acc_, 4)
        items.append(('use', f"v_mfma_f32_16x16x32_bf16 {v(acc_,4)}, {v(b,4)}, {v(b+4,4)}, {c}", R(b, 8)))
        if ks + 7 < 16:
            items += rd(ks + 7)
    Sched().run(items, A)
    A(f"""
    s_waitcnt vmcnt(2)
    s_nop 6
    v_add_f32 v{ACC}, v{ACC}, v29
    v_pk_add_f32 {v(ACC+2,2)}, {v(ACC+2,2)}, {v(ACC+6,2)}
    v_pk_add_f32 {v(ACC,2)}, {v(ACC,2)}, {v(ACC+4,2)}
    ds_write_b32 v14, v{ACC+2}
    ds_write_b32 v15, v{ACC+3}
    ds_write_b32 v12, v{ACC}
    ds_write_b32 v13, v{ACC+1}
    """)
    A.label("P1_nomm")
    A(f"""
    s_lshr_b32 s30, s43, 1
    s_lshl_b32 s30, s30, 15
    s_and_b32 s26, s43, 1
    s_lshl_b32 s26, s26, 6
    s_add_u32 s30, s30, s26
    s_add_u32 s30, s30, {WS_XU:#x}
    v_lshl_add_u32 v7, v4, 4, s29
    s_mul_i32 s26, s23, {CV_KS-4}
    s_add_u32 s26, s26, s29
    s_add_u32 s26, s26, 4096
    v_lshl_add_u32 v16, v2, 2, s26
    s_add_u32 s27, s23, 12
    v_mov_b32 v8, 0
    v_mov_b32 v9, 0
    v_mov_b32 v10, 0
    v_mov_b32 v11, 0
    s_sub_u32 s26, s22, 4
    s_cmp_lt_u32 s26, 3
    s_cbranch_scc1 P1_tw1
    s_waitcnt vmcnt(0)
    """)
    A.label("P1_tw1")
    A(f"""
    s_waitcnt vmcnt(1) lgkmcnt(0)
    s_barrier                            ; Bb
    """)
    items = [('ds', f"ds_read_b32 v{FR+e}, v{20+e}", [FR + e]) for e in range(8)]
    items += [('op', "v_cmp_gt_u32 vcc, s27, v2"), ('op', "s_and_saveexec_b64 s[32:33], vcc"),
              ('ds', "ds_write_b32 v16, v8", []), ('op', "s_mov_b64 exec, s[32:33]")]
    for q in range(4):
        items.append(('use', f"v_cvt_pk_bf16_f32 v{32+q}, v{FR+2*q}, v{FR+2*q+1}", R(FR + 2 * q, 2)))
    Sched().run(items, A)
    XU = 112
    U0 = 448
    A(f"""
    v_mov_b32 v36, v33
    v_mov_b32 v37, v34
    s_barrier
    ds_write_b128 v7, v[32:35]
    ds_write_b64 v7, v[32:33] offset:{2*CV_KS - 8}
    ds_write_b64 v7, v[34:35] offset:{2*CV_KS}
    ds_write_b32 v7, v32 offset:{CV_KS - 4}
    ds_write_b64 v7, v[36:37] offset:{CV_KS}
    ds_write_b32 v7, v35 offset:{CV_KS + 8}
    ds_write_b32 v7, v32 offset:{3*CV_KS - 12}
    ds_write_b64 v7, v[36:37] offset:{3*CV_KS - 8}
    ds_write_b32 v7, v35 offset:{3*CV_KS}
    ; u pads: wave -> (ch = w>>2... only c<2): 28 chunks + 2 bytes
    s_mul_i32 s26, s28, {CV_UD}
    s_mul_i32 s27, s23, {CV_US}
    s_add_u32 s26, s26, s27
    s_add_u32 s26, s26, {CV_UX}
    v_lshl_add_u32 v16, v2, 4, s26
    v_mov_b32 v17, s26
    s_cmp_lt_u32 s23, 2
    s_cselect_b32 s32, 0x0fffffff, 0
    s_mov_b32 s33, 0
    s_mov_b64 exec, s[32:33]
    s_cbranch_execz P1_nz
    ds_write_b128 v16, v[8:11]
    s_cmp_eq_u32 s23, 1
    s_cbranch_scc0 P1_nz
    ds_write_b16 v17, v8 offset:448
    """)
    A.label("P1_nz")
    A(f"""
    s_mov_b64 exec, -1
    v_and_b32 v17, 1, v0
    v_mul_u32_u24 v7, {CV_UD}, v17
    v_lshrrev_b32 v16, 1, v0             ; tb8
    v_lshl_add_u32 v7, v16, 4, v7
    v_add_u32 v7, {CV_UX}, v7
    v_lshlrev_b32 v16, 7, v16
    v_lshl_add_u32 v16, v17, 5, v16
    v_and_b32 v5, 7, v2
    v_lshlrev_b32 v5, 7, v5
    s_lshl_b32 s31, s22, 10
    s_add_u32 s31, s31, s40
    s_add_u32 s31, s31, {WS_F1:#x}
    """)
    stamp(A, 2)
    poll(A, "P1_f", "buffer_load_dwordx4 v[8:11], v5, s[60:63], s31 offen sc1", q4_ok(8), sleep=2)
    stamp(A, 4)
    u = XU + 4
    A(f"""
    buffer_load_dwordx4 {v(u,4)}, v16, s[60:63], s30 offen offset:16 sc1
    buffer_load_dwordx4 {v(XU,4)}, v16, s[60:63], s30 offen sc1
    """)


def gen_xu_store(A):
    XU, U0 = 112, 448
    u = XU + 4
    A(f"""
    s_waitcnt vmcnt(1)
    ds_write_b128 v7, {v(u,4)} offset:{U0}
    v_alignbit_b32 v44, v{u+1}, v{u}, 16
    v_alignbit_b32 v46, v{u+2}, v{u+1}, 16
    v_alignbit_b32 v47, v{u+3}, v{u+2}, 16
    ds_write_b16 v7, v{u} offset:{U0 + CV_US + 2}
    ds_write_b32 v7, v44 offset:{U0 + CV_US + 4}
    ds_write_b64 v7, v[46:47] offset:{U0 + CV_US + 8}
    ds_write_b16_d16_hi v7, v{u+3} offset:{U0 + CV_US + 16}
    s_waitcnt vmcnt(0)
    ds_write_b128 v7, {v(XU,4)} offset:{CV_XOFF}
    """)
    stamp(A, 5)


def gen_conv(A):
    XR, ACC, FP = 12, 20, 40
    A(f"""
    v_and_b32 v4, 15, v2                 ; i / n
    v_lshrrev_b32 v5, 4, v2              ; g
    s_lshr_b32 s28, s22, 1               ; dsel
    s_and_b32 s30, s22, 1                ; role
    s_mul_i32 s27, s28, {CV_KC}
    s_add_u32 s27, s27, {CV_BASE}
    v_and_b32 v36, 3, v4
    v_sub_u32 v36, 3, v36
    v_mul_u32_u24 v36, {CV_KS}, v36
    v_lshrrev_b32 v37, 2, v4
    v_sub_u32 v37, v5, v37
    v_lshl_add_u32 v36, v37, 4, v36
    v_add_u32 v36, {4080 - 512*7}, v36
    v_add_u32 v36, s27, v36              ; F addr
    s_mul_i32 s27, s28, {CV_UD}
    s_add_u32 s27, s27, {CV_UX}
    v_and_b32 v37, 1, v4
    v_sub_u32 v37, 1, v37
    v_mul_u32_u24 v37, {CV_US}, v37
    v_lshrrev_b32 v38, 1, v4
    v_lshl_add_u32 v37, v38, 6, v37
    v_lshl_add_u32 v37, v5, 4, v37
    v_add_u32 v37, 448, v37
    v_add_u32 v37, s27, v37              ; G addr
    v_lshlrev_b32 v6, 7, v5
    v_lshl_add_u32 v6, v4, 2, v6
    s_add_u32 s26, s27, {CV_XOFF}
    v_add_u32 v6, s26, v6
    v_lshl_add_u32 v39, v2, 4, s26
    v_mul_u32_u24 v38, {HTB}, v5
    v_lshl_add_u32 v38, v4, 4, v38
    s_lshl_b32 s33, s43, 1
    s_add_u32 s33, s33, s28
    s_lshl_b32 s33, s33, 8
    s_add_u32 s33, s33, {WS_HT:#x}         ; HT + d*256
    """)
    gen_xu_store(A)
    A("""
    s_waitcnt lgkmcnt(0)
    s_barrier                            ; Bc
    """)
    stamp(A, 6)
    A("""
    s_cmp_eq_u32 s30, 0
    s_cbranch_scc0 CV_roleB
    """)
    for role, tiles in ((0, (7, 6, 1, 0)), (1, (5, 4, 3, 2))):
        if role == 1:
            A.label("CV_roleB")
        nf = max(tiles) + 1

        def reads(base):
            out = []
            for a in range(nf):
                out.append(('ds', f"ds_read_b128 {v(base+4*a,4)}, v36 offset:{512*(7-a)}", R(base + 4 * a, 4)))
                out.append(('ds', f"ds_read_b128 {v(base+32+4*a,4)}, v37 offset:{512*a}", R(base + 32 + 4 * a, 4)))
            return out

        def mfmas(base):
            pairs = [(a, c - a, q) for q, c in enumerate(tiles) for a in range(c + 1)]
            pairs.sort(key=lambda p: (max(p[0], p[1]), p[2]))
            return [('use', f"v_mfma_f32_16x16x32_bf16 {v(ACC+4*q,4)}, {v(base+32+4*b,4)}, {v(base+4*a,4)}, {v(ACC+4*q,4)}",
                     R(base + 32 + 4 * b, 4) + R(base + 4 * a, 4)) for a, b, q in pairs]

        def step(cur, nxt):
            it = [('op', "v_subrev_u32 v36, 64, v36"), ('op', "v_subrev_u32 v37, 64, v37")]
            rs = reads(nxt)
            i = 0
            for m in mfmas(cur):
                it.append(m)
                if i < len(rs):
                    it.append(rs[i]); i += 1
            return it + rs[i:]

        for q, c in enumerate(tiles):
            A(f"ds_read2_b32 {v(XR+2*q,2)}, v6 offset0:{0} offset1:16" if c == 0 else
              f"ds_read_b32 v{XR+2*q}, v6 offset:{512*c}\nds_read_b32 v{XR+2*q+1}, v6 offset:{512*c+64}")
        A("s_waitcnt lgkmcnt(0)")
        S = Sched()
        S.run(reads(FP), A)
        for q in range(4):
            A(f"""
            v_lshlrev_b32 v{ACC+4*q}, 16, v{XR+2*q}
            v_and_b32 v{ACC+4*q+1}, 0xffff0000, v{XR+2*q}
            v_lshlrev_b32 v{ACC+4*q+2}, 16, v{XR+2*q+1}
            v_and_b32 v{ACC+4*q+3}, 0xffff0000, v{XR+2*q+1}
            """)
        A("s_mov_b32 s36, 4")
        A.label(f"CV_loop{role}")
        S.run(step(FP, FP + 64) + step(FP + 64, FP), A)
        A(f"""
        s_sub_u32 s36, s36, 1
        s_cmp_lg_u32 s36, 0
        s_cbranch_scc1 CV_loop{role}
        s_nop 6
        """)
        for q, c in enumerate(tiles):
            A(f"""
            v_cvt_pk_bf16_f32 v{XR+2*q}, v{ACC+4*q}, v{ACC+4*q+1}
            v_cvt_pk_bf16_f32 v{XR+2*q+1}, v{ACC+4*q+2}, v{ACC+4*q+3}
            ds_write_b32 v6, v{XR+2*q} offset:{512*c}
            ds_write_b32 v6, v{XR+2*q+1} offset:{512*c+64}
            """)
        A(f"""
        s_add_u32 s34, s33, {2*tiles[1]*HTB:#x}
        s_add_u32 s35, s33, {2*tiles[3]*HTB:#x}
        s_waitcnt lgkmcnt(0)
        ds_read_b128 v[20:23], v39 offset:{512*tiles[1]}
        ds_read_b128 v[24:27], v39 offset:{512*tiles[3]}
        """)
        if role == 0:
            A("s_branch CV_out")
    A.label("CV_out")
    A(f"""
    s_waitcnt lgkmcnt(1)
    buffer_store_dwordx4 v[20:23], v38, s[60:63], s34 offen sc1
    s_waitcnt lgkmcnt(0)
    buffer_store_dwordx4 v[24:27], v38, s[60:63], s35 offen sc1
    """)
    stamp(A, 7)


def gen_consumer(A):
    _late[0] = True
    gen_conv(A)
    ACC = 24
    FP = 152
    acc = lambda m, tt: ACC + 16 * (m * 4 + tt)
    A(f"""
    v_lshrrev_b32 v4, 5, v2              ; h
    v_bfe_u32 v3, v2, 2, 2               ; r
    v_lshl_add_u32 v5, v4, 2, v3
    v_lshlrev_b32 v5, 8, v5
    v_bfe_u32 v6, v2, 4, 1
    v_lshl_add_u32 v5, v6, 5, v5
    v_and_b32 v6, 3, v2
    v_lshl_add_u32 v5, v6, 3, v5
    v_xor_b32 v6, s23, v3
    v_lshl_add_u32 v8, v6, 6, v5
    s_mov_b32 s33, 0
    """)
    A("""
    s_xor_b32 s37, s46, 1
    s_lshl_b32 s37, s37, 1
    v_xor_b32 v7, s37, v3
    """)
    for tt in range(4):
        A(f"""
        v_xor_b32 v6, {tt}, v7
        v_lshl_add_u32 v{9+tt}, v6, 6, v5
        """)
    A(f"""
    v_lshlrev_b32 v18, 7, v2
    v_mov_b32 v19, v3
    s_waitcnt vmcnt(0)
    s_barrier                            ; BH
    s_cmp_lg_u32 s22, 0
    s_cbranch_scc1 C_nf2
    """)
    flag_set(A, WS_F2, "s2", 64, NREP, None)
    A("s_nop 1")
    A("v_mov_b32 v3, v19")
    A.label("C_nf2")
    stamp(A, 8)
    for i in range(128):
        A(f"v_mov_b32 v{ACC+i}, 0")
    A(f"""
    s_add_u32 s28, s40, {WS_F2:#x}
    s_cmp_lg_u32 s22, 0
    s_cbranch_scc1 C_f2_got
    """)
    poll(A, "C_f2", f"buffer_load_dwordx4 {v(FP,4)}, v18, s[60:63], s28 offen sc1", q4_ok(FP))
    A("s_barrier                            ; BS")
    stamp(A, 9)

    def fa(base, kk, m): return base + 24 * kk + 4 * m
    def fb(base, kk, tt): return base + 24 * kk + 8 + 4 * tt

    def reads(base):
        out = []
        for kk in range(2):
            for kind, i in [('b', 0), ('a', 0), ('a', 1), ('b', 1), ('b', 2), ('b', 3)]:
                for j in range(2):
                    if kind == 'a':
                        d = fa(base, kk, i) + 2 * j
                        out.append(('ds', f"ds_read_b64_tr_b16 {v(d,2)}, v13 offset:{8192*(i+1) + 4096*kk + 2048*j}", R(d, 2)))
                    else:
                        d = fb(base, kk, i) + 2 * j
                        out.append(('ds', f"ds_read_b64_tr_b16 {v(d,2)}, v{14+i} offset:{4096*kk + 2048*j}", R(d, 2)))
        return out

    def addr_setup():
        return [('op', t) for t in f"""v_add_u32 v13, s33, v8
            v_add_u32 v14, s33, v9
            v_add_u32 v15, s33, v10
            v_add_u32 v16, s33, v11
            v_add_u32 v17, s33, v12
            s_add_u32 s33, s33, {G1_STAGE}
            s_cmp_eq_u32 s33, {G1_SLOTS*G1_STAGE}
            s_cselect_b32 s33, 0, s33""".split("\n")]

    def step(cur, nxt, bar):
        ms = []
        for kk in range(2):
            for tt in range(4):
                for m in range(2):
                    a, b = fa(cur, kk, m), fb(cur, kk, tt)
                    ms.append(('use', f"v_mfma_f32_32x32x16_bf16 {v(acc(m,tt),16)}, {v(a,4)}, {v(b,4)}, {v(acc(m,tt),16)}", R(a, 4) + R(b, 4)))
        rs = reads(nxt)
        ad = addr_setup()
        it = [ms[0]] + ad[:4] + [ms[1]] + ad[4:]
        if bar:
            it += [ms[2], ('drain',), ('op', "s_barrier")]
            rest = ms[3:]
        else:
            rest = ms[2:]
        i = 0
        for m in rest:
            it.append(m)
            for _ in range(2):
                if i < len(rs):
                    it.append(rs[i]); i += 1
        return it + rs[i:]

    S = Sched()
    S.run(addr_setup(), A)
    A("s_barrier                            ; B0")
    stamp(A, 10)
    S.run(reads(FP), A)
    A("s_mov_b32 s36, 7")
    A.label("C_loop3")
    S.run(step(FP, FP + 48, True) + step(FP + 48, FP, False), A)
    A(f"""
    s_sub_u32 s36, s36, 1
    s_cmp_lg_u32 s36, 0
    s_cbranch_scc1 C_loop3
    """)
    stamp(A, 11)
    CS, M, O = FP, FP + 32, FP + 40
    A(f"""
    s_lshl_b32 s26, s23, 7
    v_lshl_add_u32 v6, v4, 4, s26
    v_add_u32 v6, {G1_X}, v6
    v_and_b32 v7, 31, v2
    v_lshlrev_b32 v7, 2, v7
    v_add_u32 v7, {G1_X+1024}, v7
    s_lshl_b32 s26, s37, 7
    v_add_u32 v7, s26, v7
    v_xor_b32 v1, 256, v7
    s_waitcnt lgkmcnt(0)
    """)
    for tt in range(4):
        A(f"ds_read_b32 v{M+2*tt}, v{7 if tt < 2 else 1} offset:{128*(tt&1)}")
    for q in range(4):
        for m in range(2):
            A(f"ds_read_b128 {v(CS+16*m+4*q,4)}, v6 offset:{512*m + 32*q}")
    A(f"""
    s_lshl_b32 s26, s24, 2
    s_add_u32 s26, s26, s37
    s_mul_i32 s26, s26, {HAT}
    s_mul_i32 s38, s37, {2*HAT}
    s_sub_u32 s38, {HAT}, s38
    s_lshl_b32 s29, s25, 3
    s_lshl_b32 s30, s23, 1
    s_add_u32 s29, s29, s30
    s_lshl_b32 s29, s29, 10
    s_add_u32 s26, s26, s29
    s_add_u32 s26, s26, {WS_HA:#x}
    v_lshlrev_b32 v6, 4, v2
    s_waitcnt lgkmcnt(0)
    s_barrier
    """)
    stamp(A, 14)
    for tt in range(4):
        for q in range(4):
            g_, u_ = acc(0, tt) + 4 * q, acc(1, tt) + 4 * q
            o = O + 8 * (tt & 1) + 2 * q
            for h in range(2):
                A(f"v_pk_fma_f32 {v(g_+2*h,2)}, {v(CS+4*q+2*h,2)}, {v(M+2*tt,2)}, {v(g_+2*h,2)} op_sel_hi:[1,0,1] neg_lo:[0,1,0] neg_hi:[0,1,0]")
                A(f"v_pk_fma_f32 {v(u_+2*h,2)}, {v(CS+16+4*q+2*h,2)}, {v(M+2*tt,2)}, {v(u_+2*h,2)} op_sel_hi:[1,0,1] neg_lo:[0,1,0] neg_hi:[0,1,0]")
            for i in range(4):
                A(f"v_max_f32 v{g_+i}, 0, v{g_+i}")
            for h in range(2):
                A(f"v_pk_mul_f32 {v(g_+2*h,2)}, {v(g_+2*h,2)}, {v(u_+2*h,2)}")
            for h in range(2):
                A(f"v_cvt_pk_bf16_f32 v{o+h}, v{g_+2*h}, v{g_+2*h+1}")
            if q & 1:
                A(f"buffer_store_dwordx4 {v(o-2,4)}, v6, s[60:63], s26 offen offset:{1024*(q>>1)} sc1")
        if tt < 3:
            A(f"s_add_u32 s26, s26, {HAT if tt != 1 else 's38'}")
    stamp(A, 15)
    ACC4, AF, BF, NB = 16, 80, 160, 6
    A(f"""
    v_lshl_add_u32 v5, v4, 2, v3
    v_lshlrev_b32 v5, 7, v5
    v_bfe_u32 v7, v2, 4, 1
    v_lshl_add_u32 v5, v7, 5, v5
    v_and_b32 v7, 3, v2
    v_lshl_add_u32 v5, v7, 3, v5
    v_lshrrev_b32 v3, 1, v3
    s_lshl_b32 s28, s23, 12
    v_lshl_add_u32 v8, v3, 6, v5
    v_add_u32 v8, s28, v8
    v_xor_b32 v9, 64, v8
    v_add_u32 v10, 0x10000, v8
    v_add_u32 v11, 0x10000, v9
    v_add_u32 v12, 0x20000, v8
    v_add_u32 v13, 0x20000, v9
    s_and_b32 s26, s23, 1
    s_lshr_b32 s27, s23, 1
    v_xor_b32 v7, s26, v3
    v_lshl_add_u32 v14, v7, 6, v5
    s_lshl_b32 s28, s27, 12
    s_add_u32 s28, s28, {P4_X}
    v_add_u32 v14, s28, v14
    s_lshl_b32 s28, s24, 1
    s_add_u32 s28, s28, s46
    s_lshl_b32 s28, s28, 1
    s_mul_i32 s30, s28, {HAT}
    s_lshl_b32 s28, s23, 11
    s_add_u32 s30, s30, s28
    s_add_u32 s38, s30, {WS_HA:#x}
    s_add_u32 s39, s25, 1
    s_cmp_eq_u32 s39, 14
    s_cselect_b32 s39, 0, s39
    s_lshl_b32 s39, s39, 13
    s_add_u32 s30, s38, s39
    s_add_u32 s31, s30, {HAT}
    s_lshl_b32 s34, s24, 9
    s_add_u32 s34, s34, {WS_F4:#x}
    s_and_b32 s28, s25, 3
    s_lshl_b32 s28, s28, 7
    s_lshr_b32 s32, s25, 2
    s_lshl_b32 s32, s32, 2
    s_add_u32 s28, s28, s32
    s_add_u32 s28, s28, s34
    v_mov_b32 v7, s42
    v_mul_u32_u24 v1, {2*128+12}, v2
    s_cmp_lt_u32 s25, 2
    s_cselect_b32 s32, 3, 1
    s_mov_b32 s33, 0
    v_and_b32 v15, 3, v2
    v_lshlrev_b32 v15, 7, v15
    """)
    for i in range(64):
        A(f"v_mov_b32 v{ACC4+i}, 0")
    A(f"""
    s_waitcnt vmcnt(0)
    s_barrier                            ; BX
    s_cmp_lg_u32 s23, 0
    s_cbranch_scc1 C_nf4
    s_mov_b64 exec, s[32:33]
    buffer_store_dword v7, v1, s[60:63], s28 offen sc1
    s_mov_b64 exec, -1
    """)
    A.label("C_nf4")
    stamp(A, 12)

    def ardsl(st, base):
        sl = st % 9
        out = []
        for kk in range(2):
            for dt in range(2):
                for j in range(2):
                    off = sl * 16384 + 2048 * kk + 1024 * j
                    reg = 8 + dt + 2 * (off >> 16)
                    d = base + 8 * kk + 4 * dt + 2 * j
                    out.append(('ds', f"ds_read_b64_tr_b16 {v(d,2)}, v{reg} offset:{off & 0xffff}", R(d, 2)))
        return out

    def bbuf(st): return BF + 16 * ((st + 2) % NB)

    def mf(st, kk, dt, tt):
        a = AF + 16 * (st % 5) + 8 * kk + 4 * dt
        b = bbuf(st) + (8 * tt + 4 * kk if st == 0 else 8 * kk + 4 * tt)
        c = ACC4 + 16 * (2 * dt + tt)
        return ('use', f"v_mfma_f32_32x32x16_bf16 {v(c,16)}, {v(a,4)}, {v(b,4)}, {v(c,16)}", R(a, 4))

    assert bbuf(0) == O
    S = Sched()
    for st in range(5):
        S.run(ardsl(st, AF + 16 * st), A)
    S.run([mf(0, kk, dt, tt) for kk in range(2) for dt in range(2) for tt in range(2)], A)
    A(f"""
    s_waitcnt lgkmcnt(0)
    s_barrier                            ; BY
    """)
    S = Sched()
    S.run(ardsl(5, AF), A)
    A(f"""
    s_cmp_lg_u32 s23, 0
    s_cbranch_scc1 C_f4_got
    """)
    poll(A, "C_f4", f"buffer_load_dwordx4 {v(BF,4)}, v15, s[60:63], s34 offen sc1", q4_ok(BF))

    def bl(i):
        st, kk, tt = i // 4, (i // 2) % 2, i % 2
        out = [('op', f"buffer_load_dwordx4 {v(bbuf(st)+8*kk+4*tt,4)}, v6, s[60:63], s{30+tt} offen offset:{1024*kk} sc1")]
        if i % 4 == 3:
            out += [('op', x) for x in f"""s_add_u32 s39, s39, 8192
            s_cmp_eq_u32 s39, {14*8192}
            s_cselect_b32 s39, 0, s39
            s_add_u32 s30, s38, s39
            s_add_u32 s31, s30, {HAT}""".split("\n")]
        return out

    A("s_barrier                            ; BZ")
    if STAMP: S.q = []
    stamp(A, 13)
    issued = 4 + 4 * int(OPT.get("b0", 3))
    for i in range(4, issued):
        S.run(bl(i), A)
    stamp(A, 16)
    for st in range(1, 14):
        if st == 2:
            stamp(A, 17); S.q = []
        items = []
        for kk in range(2):
            items.append(('op', f"s_waitcnt vmcnt({issued - (4*st + 2*kk + 2)})"))
            for dt in range(2):
                for tt in range(2):
                    items.append(mf(st, kk, dt, tt))
                    if issued < 56 and issued < 4 * (st + NB):
                        items += bl(issued); issued += 1
        S.run(items, A)
        if st + 5 < 14:
            S.run(ardsl(st + 5, AF + 16 * (st % 5)), A)
        if st == 9:
            A("s_waitcnt lgkmcnt(0)")
            S.q = []
            A("s_barrier                            ; BR")
    stamp(A, 18)
    A("s_nop 7")
    for w in range(4):
        if w < 3:
            A(f"s_cmp_lg_u32 s23, {w}")
            A(f"s_cbranch_scc1 C_x{w+1}")
        for i in range(1, 4):
            dst = (w + i) & 3
            for q in range(4):
                A(f"ds_write_b128 v6, {v(ACC4+16*dst+4*q,4)} offset:{dst*12288 + (i-1)*4096 + q*1024}")
        if w:
            for r in range(16):
                A(f"v_mov_b32 v{ACC4+r}, v{ACC4+16*w+r}")
        if w < 3:
            A("s_branch C_xd")
            A.label(f"C_x{w+1}")
    A.label("C_xd")
    srd(A, 8, 54, 0, L * D * 2)
    FR = 160
    A(f"""
    s_mul_i32 s28, s23, 12288
    v_add_u32 v5, s28, v6
    v_and_b32 v6, 31, v2
    s_lshl_b32 s28, s26, 7
    v_lshl_add_u32 v7, v6, 2, s28
    v_add_u32 v7, {P4_X+8192}, v7
    ds_read_b32 v196, v7
    """)
    for q in range(4):
        A(f"ds_read_b64_tr_b16 {v(FR+2*q,2)}, v14 offset:{1024*q}")
    A(f"""
    v_mul_u32_u24 v6, 896, v6
    v_lshl_add_u32 v6, v4, 4, v6
    s_lshl_b32 s28, s24, 1
    s_add_u32 s28, s28, s46
    s_lshl_b32 s28, s28, 1
    s_add_u32 s28, s28, s26
    s_mul_i32 s29, s28, {32*896}
    s_lshl_b32 s30, s47, 7
    s_add_u32 s29, s29, s30
    s_lshl_b32 s30, s27, 6
    s_add_u32 s29, s29, s30
    s_waitcnt lgkmcnt(0)
    s_barrier                            ; BE
    """)
    stamp(A, 19)
    PR = 80
    items = []
    for q in range(4):
        for i in range(3):
            d = PR + 16 * i + 4 * q
            items.append(('ds', f"ds_read_b128 {v(d,4)}, v5 offset:{i*4096 + q*1024}", R(d, 4)))
    O = FR + 8
    for q in range(4):
        for h in range(2):
            a = ACC4 + 4 * q + 2 * h
            p0, p1, p2 = (PR + 16 * i + 4 * q + 2 * h for i in range(3))
            items.append(('use', f"v_pk_add_f32 {v(p0,2)}, {v(p0,2)}, {v(p1,2)}", R(p0, 2) + R(p1, 2)))
            items.append(('use', f"v_pk_add_f32 {v(a,2)}, {v(a,2)}, {v(p2,2)}", R(p2, 2)))
            for ln in f"""v_lshlrev_b32 v198, 16, v{FR+2*q+h}
            v_pk_add_f32 {v(a,2)}, {v(a,2)}, {v(p0,2)}
            v_and_b32 v199, 0xffff0000, v{FR+2*q+h}
            v_pk_mul_f32 {v(a,2)}, {v(a,2)}, v[196:197] op_sel_hi:[1,0]
            v_cvt_pk_bf16_f32 v200, v{a}, v{a+1}
            v_lshlrev_b32 v{a}, 16, v200
            v_and_b32 v{a+1}, 0xffff0000, v200
            v_pk_add_f32 {v(a,2)}, {v(a,2)}, v[198:199]
            v_cvt_pk_bf16_f32 v{O+2*q+h}, v{a}, v{a+1}""".split("\n"):
                items.append(('op', ln))
        if q & 1:
            o = O + 2 * (q - 1)
            for ln in f"""s_nop 1
            v_permlane32_swap_b32 v{o}, v{o+2}
            v_permlane32_swap_b32 v{o+1}, v{o+3}
            buffer_store_dwordx4 {v(o,4)}, v6, s[8:11], s29 offen offset:{32*(q>>1)}""".split("\n"):
                items.append(('op', ln))
    Sched().run(items, A)
    stamp_end(A)
    A("s_endpgm")


def gen_loader(A):
    A.label("LOADER")
    WD = 32
    gen_xu_store(A)
    A("""
    s_waitcnt lgkmcnt(0)
    s_barrier                            ; Bc
    """)
    stamp(A, 6)
    A(f"""
    v_lshrrev_b32 v4, 5, v2              ; h
    v_lshrrev_b32 v9, 4, v2
    v_lshlrev_b32 v10, 2, v9
    v_and_b32 v11, 15, v2
    v_xor_b32 v10, v10, v11
    s_lshl_b32 s26, s23, 3
    v_add_u32 v9, s26, v9
    v_lshlrev_b32 v11, 8, v9
    v_lshl_add_u32 v11, v10, 4, v11
    v_mul_u32_u24 v12, 3584, v9
    v_lshl_add_u32 v12, v10, 4, v12
    s_lshl_b32 s26, s25, 8
    v_add_u32 v12, s26, v12
    v_add_u32 v13, {4*3584-1024}, v12
    s_lshl_b32 s27, s23, 11              ; q*2048
    s_mov_b32 s29, 0                     ; W soffset
    s_mul_i32 s30, s24, {HTB}
    s_add_u32 s30, s30, {WS_HT:#x}         ; h soffset
    v_and_b32 v14, 31, v2
    v_lshlrev_b32 v14, 4, v14
    v_mul_u32_u24 v15, {F*4}, v4
    v_add_u32 v14, v14, v15
    v_lshrrev_b32 v3, 3, v2
    v_and_b32 v5, 7, v2
    s_lshl_b32 s28, s23, 5
    v_add_u32 v6, s28, v3
    v_mul_u32_u24 v16, 896, v6
    v_lshl_add_u32 v16, v5, 4, v16
    s_lshl_b32 s28, s47, 7
    v_add_u32 v16, s28, v16
    v_bfe_u32 v7, v2, 4, 1
    v_lshlrev_b32 v7, 2, v7
    v_xor_b32 v7, v7, v5
    v_lshlrev_b32 v24, 7, v6
    v_lshl_add_u32 v24, v7, 4, v24
    v_add_u32 v25, 0x10000, v24
    v_add_u32 v26, 0x20000, v24
    s_lshl_b32 s28, s23, 4
    v_add_u32 v6, s28, v3
    v_lshlrev_b32 v18, 8, v6
    v_lshl_add_u32 v18, v7, 4, v18
    v_add_u32 v19, 1024, v18
    v_lshlrev_b32 v20, 2, v2
    v_and_b32 v21, 7, v2
    v_lshlrev_b32 v21, 7, v21
    s_add_u32 s38, s40, {WS_F3:#x}
    s_mul_i32 s35, s25, {128*896:#x}
    """)
    srd(A, 4, 48, 0, D * F * 2)
    srd(A, 8, 50, 0, D * F * 2)
    srd(A, 12, 52, 0, D * F * 2)
    V = VM(A)
    V.q = []

    def wdma(st):
        base = (st % G1_SLOTS) * G1_STAGE
        A(f"s_add_u32 m0, s27, {base+8192}")
        A("s_nop 0")
        V.op("buffer_load_dwordx4 v12, s[4:7], s29 offen lds", ("s", st))
        V.op("buffer_load_dwordx4 v13, s[4:7], s29 offen offset:1024 lds", ("s", st))
        A(f"s_add_u32 m0, s27, {base+16384}")
        A("s_nop 0")
        V.op("buffer_load_dwordx4 v12, s[8:11], s29 offen lds", ("s", st))
        V.op("buffer_load_dwordx4 v13, s[8:11], s29 offen offset:1024 lds", ("s", st))
        A(f"s_add_u32 s29, s29, {32*3584:#x}")

    def hdma(st):
        base = (st % G1_SLOTS) * G1_STAGE
        A(f"s_add_u32 m0, s27, {base}")
        A("s_nop 0")
        V.op("buffer_load_dwordx4 v11, s[60:63], s30 offen sc1 lds", ("s", st))
        V.op("buffer_load_dwordx4 v11, s[60:63], s30 offen offset:1024 sc1 lds", ("s", st))
        A("s_add_u32 s30, s30, 8192")

    wdn = [0]

    def wdload(n):
        for _ in range(n):
            i = wdn[0]
            V.op(f"buffer_load_dwordx4 {v(WD+4*i,4)}, v16, s[12:15], s35 offen", ("w", i // 4))
            if i % 4 != 3:
                A("s_add_u32 s35, s35, 7168")
            else:
                A(f"""
                s_add_u32 s35, s35, {128*896 - 3*7168:#x}
                s_cmp_eq_u32 s35, {14*128*896:#x}
                s_cselect_b32 s35, 0, s35
                """)
            wdn[0] += 1

    def wdwrite(st):
        off = (st % 9) * 16384
        for i in range(4):
            A(f"ds_write_b128 v{24 + (off >> 16)}, {v(WD+16*st+4*i,4)} offset:{(off & 0xffff) + 1024*i}")

    for st in range(4):
        wdma(st)
    wdload(int(OPT.get("n0", 24)))
    stamp(A, 7)
    A("s_barrier                            ; BH")
    stamp(A, 8)
    V.wait(("s", 3), ("w", 1))
    wdma(4); wdma(5)
    wdload(int(OPT.get("n1", 0)))
    A("s_barrier                            ; BS")
    stamp(A, 9)
    A(f"s_setprio {OPT.get('prio3', 1)}")
    for st in range(6):
        hdma(st)
    V.wait(("s", 0))
    A("s_barrier                            ; B0")
    stamp(A, 10)
    WSCH = [int(x) for x in OPT.get("wsch", "4.4.1.1.1.5.8.8").split(".")]
    wdload(min(WSCH[0], 56 - wdn[0]))
    V.wait(("s", 1), ("s", 2))
    nxt = 6
    for b in range(1, 8):
        A(f"s_barrier                            ; B{b}")
        while nxt < 14 and nxt <= 2 * b + 4:
            hdma(nxt); wdma(nxt); nxt += 1
        if b == 5:
            V.op("buffer_load_dwordx4 v[28:31], v21, s[60:63], s38 offen sc1", "f3")
        if b == 6:
            V.wait("f3")
            A(q4_ok(28))
            A("s_cbranch_scc1 L_f3_got")
            poll(A, "L_f3", "buffer_load_dwordx4 v[28:31], v21, s[60:63], s38 offen sc1", q4_ok(28))
            A(f"""
            s_lshl_b32 s26, s25, 9
            s_add_u32 s26, s26, {WS_CS:#x}
            s_mov_b32 m0, {G1_X}
            s_lshl_b32 s28, s24, 9
            """)
            V.op("buffer_load_dwordx4 v14, s[60:63], s26 offen sc1 lds", "x")
            A(f"""
            s_and_b32 s26, s23, 1
            s_lshl_b32 s26, s26, 8
            s_add_u32 s28, s28, s26
            s_add_u32 s28, s28, {WS_MEAN:#x}
            s_add_u32 m0, s26, {G1_X+1024}
            s_lshl_b32 s31, s24, 1
            """)
            V.op("buffer_load_dword v20, s[60:63], s28 offen sc1 lds", "x")
            A(f"""
            s_add_u32 s31, s31, s46
            s_lshl_b32 s31, s31, 8
            s_add_u32 s31, s31, {WS_R2:#x}
            s_mov_b32 m0, {P4_X+8192}
            s_mul_i32 s34, s24, {HTB}
            """)
            V.op("buffer_load_dword v20, s[60:63], s31 offen sc1 lds", "x")
            A(f"""
            s_lshl_b32 s28, s46, 7
            s_add_u32 s34, s34, s28
            s_lshl_b32 s28, s47, 14
            s_add_u32 s34, s34, s28
            s_add_u32 s34, s34, {WS_HT:#x}
            s_add_u32 m0, s27, {P4_X}
            s_nop 0
            """)
            V.op("buffer_load_dwordx4 v18, s[60:63], s34 offen sc1 lds", "x")
            V.op("buffer_load_dwordx4 v19, s[60:63], s34 offen offset:1024 sc1 lds", "x")
        wdload(min(WSCH[b], 56 - wdn[0]))
        if b < 6:
            V.wait(("s", 2 * b + 1), ("s", 2 * b + 2))
        if b == 6:
            V.wait("x")
    stamp(A, 11)
    A("s_setprio 0")
    A("s_barrier                            ; B8")
    assert wdn[0] == 56
    for st in range(9):
        V.wait(("w", st))
        wdwrite(st)
    V.drain("lgkmcnt(0)")
    A("s_barrier                            ; BX")
    stamp(A, 12)
    A("s_barrier                            ; BY")
    for st in range(9, 14):
        wdwrite(st)
    A("s_waitcnt lgkmcnt(0)")
    A("s_barrier                            ; BZ")
    stamp(A, 13)
    if "hapf" in OPT:
        A(f"""
        v_subrev_u32 v3, 256, v0
        s_lshl_b32 s28, s47, 8
        v_add_u32 v3, s28, v3                ; 0..1791
        v_and_b32 v5, 1, v3
        v_mul_u32_u24 v5, {HAT}, v5
        v_lshrrev_b32 v3, 1, v3
        v_lshl_add_u32 v3, v3, 7, v5
        s_lshl_b32 s28, s24, 1
        s_add_u32 s28, s28, s46
        s_mul_i32 s28, s28, {2*HAT}
        s_add_u32 s28, s28, {WS_HA:#x}
        buffer_load_dword v5, v3, s[60:63], s28 offen sc1
        """)
    A("s_barrier                            ; BR")
    A("s_barrier                            ; BE")
    stamp_end(A)
    A("s_endpgm")


def main(path):
    ref = open(f"cdna_kernels/{NAME}.s.ref").read().split("\n")
    head = [l for l in ref if l.startswith(";") and "@launch" not in l]
    A = Asm()
    for l in head:
        A.raw(l)
    A.raw(f"; @launch grid=({GRID},1,1) block=(512,1,1) lds={LDS}")
    A.raw('.amdgcn_target "amdgcn-amd-amdhsa--gfx950"')
    A.raw(".text")
    A.raw(f".globl {KNAME}")
    A.raw(".p2align 8")
    A.raw(f".type {KNAME},@function")
    A.label(KNAME)
    A(f"""
    s_cmp_ge_u32 s2, {GRID}
    s_cbranch_scc1 EXIT
    s_load_dwordx16 s[4:19], s[0:1], {KA['A_re']}
    s_load_dwordx2 s[44:45], s[0:1], {KA['x']}
    s_load_dwordx8 s[48:55], s[0:1], {KA['Wg']}
    s_load_dwordx4 s[64:67], s[0:1], {KA['dbg']}
    s_getpc_b64 s[58:59]
    """)
    A.label("PC0")
    A(f"""
    s_lshr_b32 s22, s2, 3
    s_mul_i32 s22, s22, {NPF*128}
    v_subrev_u32 v1, 448, v0
    v_cmp_gt_u32 vcc, {NPF}, v1
    v_lshl_add_u32 v1, v1, 7, s22
    v_min_u32 v1, TABLE_END-PC0-4, v1
    s_and_saveexec_b64 s[24:25], vcc
    s_cbranch_execz PF_skip
    global_load_dword v127, v1, s[58:59]
    """)
    A.label("PF_skip")
    A(f"""
    s_mov_b64 exec, s[24:25]
    v_lshrrev_b32 v1, 6, v0
    v_and_b32 v2, 63, v0                 ; lane
    s_nop 0
    v_readfirstlane_b32 s22, v1          ; wave
    """)
    stamp_begin(A)
    A(f"""
    s_waitcnt lgkmcnt(0)
    s_and_b32 s23, s22, 3
    s_mov_b32 s20, s66
    s_mov_b32 s21, s67
    s_mov_b32 s60, s66
    s_mov_b32 s61, s67
    s_mov_b32 s62, {WS_USED:#x}
    s_mov_b32 s63, 0x00020000
    """)
    gen_p0_loads(A)
    A(f"""
    s_cmp_lt_u32 s2, {NAUX}
    s_cbranch_scc1 AUX
    """)
    gen_phase1(A)
    A("""
    s_cmp_ge_u32 s22, 4
    s_cbranch_scc1 LOADER
    """)
    gen_consumer(A)
    gen_loader(A)
    gen_aux(A)
    A.label("EXIT")
    A("s_endpgm")
    A.label("CODE_END")
    kg_table(A)
    A.raw(f""".section .rodata,"a"
.p2align 6
.amdhsa_kernel {KNAME}
  .amdhsa_next_free_vgpr 256
  .amdhsa_next_free_sgpr 100
  .amdhsa_accum_offset 256
  .amdhsa_group_segment_fixed_size 0
  .amdhsa_kernarg_size 128
  .amdhsa_user_sgpr_count 2
  .amdhsa_user_sgpr_kernarg_segment_ptr 1
  .amdhsa_system_sgpr_workgroup_id_x 1
.end_amdhsa_kernel
""")
    open(path, "w").write(A.text())


if __name__ == "__main__":
    main(sys.argv[1] if len(sys.argv) > 1 else f"km.s")
```

```python
import sys, os

NAME = "sequential_preLN__ssm_conv_s4__glu_gated_reglu__prompt"
KNAME = NAME + "_kernel"
L, D, N, F = 2048, 448, 256, 1792

WS_EPOCH = 0x0000000
WS_ST1 = 0x0004000
WS_CS = 0x0010000
WS_R2 = 0x0020000
WS_MEAN = 0x0030000
NREP = 4
REPS = 64 * 128 + 128
WS_F1 = 0x0040000
WS_F2 = 0x0050000
WS_F3 = 0x0060000
WS_F4 = 0x0070000
WS_XU = 0x0800000
WS_HT = 0x0100000
WS_HA = 0x1000000
WS_DBG = 0x2000000
WS_SIZE = 0x10000000
WS_USED = 0x1800000
HTB = D * 256 + int(os.environ.get("HPAD", "256"))
XUS = 32768 + int(os.environ.get("XPAD", "256"))
HAT = 112 * 1024

KA = dict(x=0, A_re=8, A_im=16, B_re=24, B_im=32, C_re=40, C_im=48, log_dt=56, Dskip=64,
          B_x=72, Wg=80, Wu=88, Wd=96, out=104, dbg=112, ws=120)
STAMP = os.environ.get("STAMP", "0") == "1"
OPT = dict(kv.split("=") for kv in os.environ.get("OPT", "").split(",") if kv)
NSTAMP = 22


class Asm:
    def __init__(self):
        self.lines = []

    def __call__(self, s):
        for ln in s.strip("\n").split("\n"):
            ln = ln.strip()
            if ln:
                self.lines.append("    " + ln)

    def label(self, n):
        self.lines.append(n + ":")

    def raw(self, s):
        self.lines.append(s)

    def text(self):
        return "\n".join(self.lines) + "\n"


def v(a, n=1):
    return f"v{a}" if n == 1 else f"v[{a}:{a+n-1}]"


def s(a, n=1):
    return f"s{a}" if n == 1 else f"s[{a}:{a+n-1}]"


def R(a, n):
    return list(range(a, a + n))


def cmul(A, d, x, y, t):
    A(f"v_pk_mul_f32 {v(t,2)}, {v(x,2)}, {v(y,2)} op_sel:[0,0] op_sel_hi:[1,0]")
    A(f"v_pk_fma_f32 {v(d,2)}, {v(x,2)}, {v(y,2)}, {v(t,2)} op_sel:[1,1,0] op_sel_hi:[0,1,1] neg_lo:[1,0,0]")


def srd(A, sd, sbase, off, nbytes):
    if off:
        A(f"s_add_u32 {s(sd)}, {s(sbase)}, {off:#x}")
        A(f"s_addc_u32 {s(sd+1)}, {s(sbase+1)}, 0")
    else:
        A(f"s_mov_b32 {s(sd)}, {s(sbase)}")
        A(f"s_mov_b32 {s(sd+1)}, {s(sbase+1)}")
    A(f"s_mov_b32 {s(sd+2)}, {nbytes:#x}")
    A(f"s_mov_b32 {s(sd+3)}, 0x00020000")


_late = [False]
def stamp(A, i):
    if STAMP and not ('p0st' in OPT and _late[0] and 14 <= i <= 19):
        A("s_memtime s[68:69]")
        A("s_waitcnt lgkmcnt(0)")
        A(f"s_mov_b32 s{72+i}, s68")


def stamp_begin(A):
    if STAMP:
        for i in range(NSTAMP):
            A(f"s_mov_b32 s{72+i}, 0")
        A("s_memrealtime s[68:69]")
        A("s_waitcnt lgkmcnt(0)")
        A("s_mov_b32 s70, s68")
        stamp(A, 0)


def stamp_end(A):
    if not STAMP:
        return
    stamp(A, NSTAMP - 2)
    A("s_waitcnt vmcnt(0)")
    stamp(A, NSTAMP - 1)
    A(f"""
    s_memrealtime s[68:69]
    s_waitcnt lgkmcnt(0)
    s_add_u32 s96, s20, {WS_DBG:#x}
    s_addc_u32 s97, s21, 0
    s_mov_b32 s98, 0x100000
    s_mov_b32 s99, 0x00020000
    v_lshrrev_b32 v1, 6, v0
    s_lshl_b32 s71, s2, 3
    v_add_u32 v1, s71, v1
    v_lshlrev_b32 v1, 7, v1
    """)
    for i in range(NSTAMP):
        A(f"v_mov_b32 v2, s{72+i}")
        A(f"buffer_store_dword v2, v1, s[96:99], 0 offen offset:{4*i}")
    if "spin" in OPT:
        n = len(A.lines)
        A(f"""
        s_cmp_lg_u32 s2, 100
        s_cbranch_scc1 SPN{n}
        s_cmp_lg_u32 s22, 0
        s_cbranch_scc1 SPN{n}
        s_memrealtime s[94:95]
        s_waitcnt lgkmcnt(0)
        ; realtime ticks per ... use cycle stamps: wait 2*(stamp_i - stamp_0) cycles
        s_sub_u32 s69, s{72+int(OPT['spin'])}, s72
        s_lshl_b32 s69, s69, 1
        s_memtime s[94:95]
        s_waitcnt lgkmcnt(0)
        s_add_u32 s69, s69, s94
        """)
        A.label(f"SPL{n}")
        A(f"""
        s_sleep 4
        s_memtime s[94:95]
        s_waitcnt lgkmcnt(0)
        s_sub_u32 s95, s94, s69
        s_cmp_lt_i32 s95, 0
        s_cbranch_scc1 SPL{n}
        """)
        A.label(f"SPN{n}")
    if "dbg" in OPT:
        n = len(A.lines)
        A(f"""
        s_cmp_lg_u32 s2, {OPT['dbg']}
        s_cbranch_scc1 DBG{n}
        s_cmp_lg_u32 s22, 0
        s_cbranch_scc1 DBG{n}
        s_mov_b32 s92, s64
        s_mov_b32 s93, s65
        s_mov_b32 s94, 256
        s_mov_b32 s95, 0x00020000
        s_sub_u32 s69, s68, s70
        v_mov_b32 v2, s69
        buffer_store_dword v2, off, s[92:95], 0
        """)
        for i in range(1, NSTAMP):
            A(f"s_sub_u32 s69, s{72+i}, s72")
            A(f"v_mov_b32 v2, s69")
            A(f"buffer_store_dword v2, off, s[92:95], 0 offset:{4*i}")
        A.label(f"DBG{n}")
    A("v_mov_b32 v2, s68")
    A("buffer_store_dword v2, v1, s[96:99], 0 offen offset:124")
    A("v_mov_b32 v2, s70")
    A("buffer_store_dword v2, v1, s[96:99], 0 offen offset:120")


class Sched:
    def __init__(self):
        self.q = []

    def run(self, items, emit):
        for it in items:
            if it[0] == 'ds':
                emit(it[1])
                self.q.append(set(it[2]))
            elif it[0] == 'use':
                need = -1
                for i, d in enumerate(self.q):
                    if d & set(it[2]):
                        need = i
                if need >= 0:
                    n = min(len(self.q) - 1 - need, 15)
                    emit(f"s_waitcnt lgkmcnt({n})")
                    self.q = self.q[len(self.q) - n:] if n else []
                emit(it[1])
            elif it[0] == 'drain':
                emit("s_waitcnt lgkmcnt(0)")
                self.q = []
            else:
                emit(it[1])


class VM:
    def __init__(self, A):
        self.A = A
        self.q = []

    def op(self, text, tag):
        self.A(text)
        self.q.append(tag)
        assert len(self.q) <= 63, "too many outstanding vmem ops"

    def wait(self, *tags, extra=""):
        need = -1
        for i, t in enumerate(self.q):
            if t in tags:
                need = i
        if need >= 0:
            n = len(self.q) - 1 - need
            self.A(f"s_waitcnt vmcnt({n}) {extra}")
            self.q = self.q[len(self.q) - n:] if n else []
        elif extra:
            self.A(f"s_waitcnt {extra}")

    def drain(self, extra=""):
        self.A(f"s_waitcnt vmcnt(0) {extra}")
        self.q = []


def poll(A, name, load, okcode, cnt=36, sleep=1):
    A(f"s_mov_b32 s{cnt}, 0x40000")
    A.label(f"{name}_poll")
    A(load)
    A("s_waitcnt vmcnt(0)")
    A(okcode)
    A(f"""
    s_cbranch_scc1 {name}_got
    s_sub_u32 s{cnt}, s{cnt}, 1
    s_cmp_eq_u32 s{cnt}, 0
    s_cbranch_scc1 {name}_got
    s_sleep {sleep}
    s_branch {name}_poll
    """)
    A.label(f"{name}_got")


def flag_set(A, region, idx_sgpr, nline, nrep, after):
    A(f"""
    s_lshr_b32 s28, {idx_sgpr}, 2
    s_lshl_b32 s28, s28, 7
    s_and_b32 s32, {idx_sgpr}, 3
    s_lshl_b32 s32, s32, 2
    s_add_u32 s28, s28, s32
    s_add_u32 s28, s28, {region:#x}
    v_mul_u32_u24 v1, {REPS}, v2
    v_mov_b32 v3, s42
    s_mov_b64 exec, {(1<<nrep)-1}
    buffer_store_dword v3, v1, s[60:63], s28 offen sc1
    s_mov_b64 exec, -1
    """)


def q4_ok(r):
    return (f"v_xor_b32 v{r}, s42, v{r}\nv_xor_b32 v{r+1}, s42, v{r+1}\nv_xor_b32 v{r+2}, s42, v{r+2}\nv_xor_b32 v{r+3}, s42, v{r+3}\n"
            f"v_or3_b32 v{r}, v{r}, v{r+1}, v{r+2}\nv_or_b32 v{r}, v{r}, v{r+3}\nv_cmp_eq_u32 vcc, 0, v{r}\ns_nop 3\ns_cmp_eq_u64 vcc, exec")


def reduce64(A, regs, tmp, mid=None):
    for ctl in ("quad_perm:[1,0,3,2]", "quad_perm:[2,3,0,1]", "row_half_mirror", "row_mirror"):
        A("s_nop 0")
        for r in regs:
            A(f"v_add_f32_dpp v{r}, v{r}, v{r} {ctl} row_mask:0xf bank_mask:0xf")
    if mid: A(mid)
    for sw in ("v_permlane16_swap_b32", "v_permlane32_swap_b32"):
        for i, r in enumerate(regs):
            A(f"v_mov_b32 v{tmp+i}, v{r}")
        A("s_nop 1")
        for i, r in enumerate(regs):
            A(f"{sw} v{r}, v{tmp+i}")
        for i, r in enumerate(regs):
            A(f"v_add_f32 v{r}, v{r}, v{tmp+i}")


def reduce8(A, r):
    A(f"""
    s_nop 1
    v_add_f32_dpp v{r}, v{r}, v{r} quad_perm:[1,0,3,2] row_mask:0xf bank_mask:0xf
    s_nop 1
    v_add_f32_dpp v{r}, v{r}, v{r} quad_perm:[2,3,0,1] row_mask:0xf bank_mask:0xf
    s_nop 1
    v_add_f32_dpp v{r}, v{r}, v{r} row_half_mirror row_mask:0xf bank_mask:0xf
    """)


def var_to_s(A, r):
    A(f"""
    v_max_f32 v{r}, 0, v{r}
    v_cvt_pk_bf16_f32 v{r}, v{r}, v{r}
    v_lshlrev_b32 v{r}, 16, v{r}
    v_add_f32 v{r}, 0x3727c5ac, v{r}
    v_cvt_pk_bf16_f32 v{r}, v{r}, v{r}
    v_lshlrev_b32 v{r}, 16, v{r}
    v_sqrt_f32 v{r}, v{r}
    s_nop 0
    v_cvt_pk_bf16_f32 v{r}, v{r}, v{r}
    v_lshlrev_b32 v{r}, 16, v{r}
    """)


NAUX, NMAIN = 32, 224
GRID = 256
KG_ROW = 1056
KG_CH = 57 * KG_ROW
KG_TB = {0: 0, 1: 16, 3: 32, 2: 48}
KL_S = 8704
KPOS = lambda l: (l & 7) * 272 + (l >> 3)
KALPHA = [[0, 4, 128, 132], [512, 516, 1024, 1536], [256, 384, 2048, 2049]]
CV_BASE = 98304 + 64
CV_KS = 4160
CV_US = 4576
CV_KC = 4 * CV_KS
CV_UX = CV_BASE + 2 * CV_KC + 64
CV_XOFF = 2 * CV_US
CV_UD = CV_XOFF + 4096
KL_BASE = CV_UX
G1_STAGE = 24576
G1_SLOTS = 6
G1_X = G1_SLOTS * G1_STAGE
P4_SLOT = [0, 3, 4, 5, 6, 7, 8, 1, 2, 0, 3, 4, 5, 6]
P4_X = 149504
WD_EARLY = int(OPT.get("wde", 32))
LDS = 158208
assert CV_UX + 2 * CV_UD <= LDS and P4_X + 8192 + 256 <= LDS


def bf16_round_int(l):
    if l <= 256:
        return l
    sh = l.bit_length() - 8
    q, r = l >> sh, l & ((1 << sh) - 1)
    half = 1 << (sh - 1)
    if r > half or (r == half and (q & 1)):
        q += 1
    return q << sh


def kg_table(A):
    A.raw(".p2align 6")
    A.raw(".type KG_TABLE,@object")
    A.label("KG_TABLE")
    rows = []
    for tid in range(512):
        w, lane = tid >> 6, tid & 63
        ch, o = tid >> 8, tid & 255
        j, g = lane & 15, lane >> 4
        T = min(w & 3, 2)
        vals = [KL_BASE + ch * KL_S + 4 * KPOS(bf16_round_int(2047 - 8 * o - e)) for e in range(8)]
        vals += [KL_BASE + ch * KL_S + 4 * (KPOS(KALPHA[T][g] + [r, 128 * r, 2 * r][T]) + j) for r in range(4)]
        rows.append(vals)
    for part in range(3):
        for tid in range(512):
            A.raw(".long " + ", ".join(str(x) for x in rows[tid][4 * part:4 * part + 4]))
    A.raw(".size KG_TABLE, 24576")
    A.label("TABLE_END")


P0_LDS = 122880
NPF = 13


def gen_p0_loads(A):
    A(f"""
    s_lshl_b32 s26, s2, 3
    s_add_u32 s26, s26, s22              ; row
    s_mul_i32 s26, s26, 896
    v_lshl_add_u32 v1, v2, 4, s26
    v_mov_b32 v96, 0
    v_mov_b32 v97, 0
    v_mov_b32 v98, 0
    v_mov_b32 v99, 0
    s_mov_b32 s32, -1
    s_mov_b32 s33, 0x00ffffff
    s_mov_b64 exec, s[32:33]
    global_load_dwordx4 v[96:99], v1, s[44:45]
    s_mov_b64 exec, 1
    buffer_load_dword v126, off, s[60:63], 0 sc1
    s_mov_b64 exec, -1
    """)


def gen_p0(A, uid, younger=0):
    X = 96
    A(f"""
    s_mov_b32 s26, 0x3f803f80
    v_mov_b32 v104, 0
    v_mov_b32 v105, 0
    s_mul_i32 s27, s22, 928
    s_add_u32 s27, s27, {P0_LDS}
    v_lshl_add_u32 v116, v2, 4, s27
    v_bfe_u32 v117, v2, 2, 2             ; r
    v_mul_u32_u24 v117, 928, v117
    v_and_b32 v118, 3, v2
    v_lshl_add_u32 v117, v118, 3, v117
    v_lshrrev_b32 v118, 4, v2            ; g
    v_lshl_add_u32 v117, v118, 5, v117
    s_min_u32 s34, s22, 6
    s_lshl_b32 s27, s34, 7
    s_add_u32 s27, s27, {P0_LDS}
    v_add_u32 v117, s27, v117
    v_lshrrev_b32 v118, 3, v2
    v_mul_u32_u24 v118, {XUS}, v118
    v_and_b32 v119, 7, v2
    v_lshl_add_u32 v118, v119, 4, v118
    s_mul_i32 s34, s34, {8*XUS}
    s_lshl_b32 s35, s2, 7
    s_add_u32 s34, s34, s35
    s_add_u32 s34, s34, {WS_XU:#x}
    s_lshl_b32 s35, s2, 6
    s_lshl_b32 s27, s22, 2
    s_add_u32 s35, s35, s27
    s_add_u32 s35, s35, {WS_ST1:#x}
    v_lshlrev_b32 v119, 5, v2
    s_waitcnt vmcnt({younger+1})
    s_mov_b64 exec, s[32:33]
    ds_write_b128 v116, {v(X,4)}
    s_mov_b64 exec, -1
    """)
    for i in range(4):
        A(f"v_dot2c_f32_bf16 v104, s26, v{X+i}")
        A(f"v_dot2c_f32_bf16 v105, v{X+i}, v{X+i}")
    A(f"""
    s_waitcnt lgkmcnt(0)
    s_barrier                            ; Bp
    ds_read_b64_tr_b16 v[100:101], v117
    ds_read_b64_tr_b16 v[102:103], v117 offset:{4*928}
    """)
    reduce64(A, [104, 105], 120, mid=f"s_waitcnt lgkmcnt(0)\nbuffer_store_dwordx4 v[100:103], v118, s[60:63], s34 offen sc1")
    A(f"""
    v_mul_f32 v104, 0x3b124925, v104     ; mean
    v_mul_f32 v105, 0x3b124925, v105
    v_fma_f32 v105, -v104, v104, v105
    v_cvt_pk_bf16_f32 v120, v104, v104
    v_lshlrev_b32 v120, 16, v120         ; m_bf
    """)
    var_to_s(A, 105)
    A(f"""
    v_rcp_f32 v121, v105
    v_cmp_eq_u32 vcc, 0, v2
    s_mov_b64 exec, 3
    s_nop 0
    v_cndmask_b32 v120, v121, v120, vcc
    buffer_store_dword v120, v119, s[60:63], s35 offen sc1
    s_mov_b64 exec, -1
    """)


def gen_f1_publish(A, name, also_f2=False, younger=0):
    A(f"""
    s_waitcnt vmcnt({younger})
    v_readfirstlane_b32 s41, v126        ; epoch
    s_barrier                            ; Bq
    s_mul_i32 s42, s41, 0x9e3779b1
    s_add_u32 s42, s42, 0x7f4a7c15
    s_cmp_lg_u32 s22, 0
    s_cbranch_scc1 {name}
    """)
    flag_set(A, WS_F1, "s2", 64, NREP, None)
    if also_f2:
        flag_set(A, WS_F2, "s2", 64, NREP, None)
    A.label(name)


def gen_aux(A):
    _late[0] = False
    A.label("AUX")
    X = 8
    gen_p0(A, 0)
    stamp(A, 1)
    gen_f1_publish(A, "AUX_f1", True)
    stamp(A, 2)
    S = 64
    A(f"""
    v_min_u32 v7, 447, v0
    v_mul_u32_u24 v1, 0x124a, v7
    v_lshrrev_b32 v1, 16, v1             ; rg
    v_mul_u32_u24 v2, 14, v1
    v_sub_u32 v2, v7, v2                 ; chunk
    v_mul_u32_u24 v3, 3584, v1
    v_lshl_add_u32 v3, v2, 4, v3
    s_and_b32 s26, s2, 15
    s_mul_i32 s12, s26, 224
    s_cmp_ge_u32 s2, 16
    s_cselect_b32 s4, s50, s48
    s_cselect_b32 s5, s51, s49
    """)
    srd(A, 8, 4, 0, D * F * 2)
    for j in range(14):
        A(f"buffer_load_dwordx4 {v(X+4*j,4)}, v3, s[8:11], s12 offen")
        if j < 13:
            A(f"s_add_u32 s12, s12, {32*3584:#x}")
    for i in range(8):
        A(f"v_mov_b32 v{S+i}, 0")
    for j in range(14):
        A(f"s_waitcnt vmcnt({13-j})")
        for q in range(4):
            A(f"""
            v_lshlrev_b32 v72, 16, v{X+4*j+q}
            v_and_b32 v73, 0xffff0000, v{X+4*j+q}
            v_pk_add_f32 {v(S+2*q,2)}, {v(S+2*q,2)}, v[72:73]
            """)
    A(f"""
    v_mul_u32_u24 v4, 464, v1
    v_lshl_add_u32 v4, v2, 5, v4
    ds_write_b128 v4, {v(S,4)}
    ds_write_b128 v4, {v(S+4,4)} offset:16
    v_and_b32 v5, 127, v0
    v_min_u32 v5, 111, v5                ; column
    v_lshrrev_b32 v6, 7, v0              ; part 0..3
    v_mul_u32_u24 v7, {8*464}, v6
    v_lshl_add_u32 v7, v5, 2, v7
    s_waitcnt lgkmcnt(0)
    s_barrier
    """)
    for i in range(8):
        A(f"ds_read_b32 v{X+i}, v7 offset:{464*i}")
    A("s_waitcnt lgkmcnt(0)")
    for st in (4, 2, 1):
        for i in range(st):
            A(f"v_add_f32 v{X+i}, v{X+i}, v{X+i+st}")
    A(f"""
    v_lshlrev_b32 v7, 9, v6
    v_lshl_add_u32 v7, v5, 2, v7
    ds_write_b32 v7, v{X} offset:16384
    v_lshlrev_b32 v7, 2, v5
    s_waitcnt lgkmcnt(0)
    s_barrier
    ds_read_b32 v{X}, v7 offset:16384
    ds_read_b32 v{X+1}, v7 offset:{16384+512}
    ds_read_b32 v{X+2}, v7 offset:{16384+1024}
    ds_read_b32 v{X+3}, v7 offset:{16384+1536}
    s_mul_i32 s12, s2, 448
    s_add_u32 s12, s12, {WS_CS:#x}
    s_waitcnt lgkmcnt(0)
    v_add_f32 v{X}, v{X}, v{X+1}
    v_add_f32 v{X+2}, v{X+2}, v{X+3}
    v_add_f32 v{X}, v{X}, v{X+2}
    v_cmp_gt_u32 vcc, 112, v0
    s_and_saveexec_b64 s[32:33], vcc
    s_cbranch_execz AUX_c
    buffer_store_dword v{X}, v7, s[60:63], s12 offen sc1
    """)
    A.label("AUX_c")
    A("s_mov_b64 exec, s[32:33]")
    stamp(A, 3)
    A(f"""
    v_and_b32 v2, 63, v0
    v_lshlrev_b32 v5, 7, v2
    s_and_b32 s28, s2, {NREP-1}
    s_mul_i32 s28, s28, {REPS}
    s_add_u32 s28, s28, {WS_F2:#x}
    s_cmp_lg_u32 s22, 0
    s_cbranch_scc1 AUX_w
    """)
    poll(A, "AUX_p2", "buffer_load_dwordx4 v[8:11], v5, s[60:63], s28 offen sc1", q4_ok(8), sleep=8)
    A(f"""
    s_cmp_lg_u32 s2, 0
    s_cbranch_scc1 AUX_w
    s_add_u32 s26, s41, 1
    v_mov_b32 v8, s26
    s_mov_b64 exec, 1
    buffer_store_dword v8, off, s[60:63], 0 sc1
    s_mov_b64 exec, -1
    """)
    A.label("AUX_w")
    A("""
    s_waitcnt vmcnt(0)
    s_barrier
    """)
    stamp(A, 4)
    S1, S2 = 40, 48
    A(f"""
    v_lshrrev_b32 v1, 3, v0              ; dgrp 0..63
    v_and_b32 v2, 7, v0
    v_lshlrev_b32 v3, 8, v1
    v_lshl_add_u32 v3, v2, 4, v3
    s_lshr_b32 s24, s2, 1
    s_mul_i32 s24, s24, {HTB}
    s_and_b32 s25, s2, 1
    s_lshl_b32 s25, s25, 7
    s_add_u32 s24, s24, s25
    s_add_u32 s24, s24, {WS_HT:#x}
    """)
    for i in range(7):
        A(f"buffer_load_dwordx4 {v(X+4*i,4)}, v3, s[60:63], s24 offen sc1")
        if i < 6:
            A(f"s_add_u32 s24, s24, 16384")
    for i in range(16):
        A(f"v_mov_b32 v{S1+i}, 0")
    for i in range(7):
        A(f"s_waitcnt vmcnt({6-i})")
        for q in range(4):
            A(f"""
            v_lshlrev_b32 v56, 16, v{X+4*i+q}
            v_and_b32 v57, 0xffff0000, v{X+4*i+q}
            v_pk_add_f32 {v(S1+2*q,2)}, {v(S1+2*q,2)}, v[56:57]
            v_pk_fma_f32 {v(S2+2*q,2)}, v[56:57], v[56:57], {v(S2+2*q,2)}
            """)
    A(f"""
    v_mul_u32_u24 v4, 528, v1
    v_lshl_add_u32 v4, v2, 5, v4
    ds_write_b128 v4, {v(S1,4)}
    ds_write_b128 v4, {v(S1+4,4)} offset:16
    ds_write_b128 v4, {v(S2,4)} offset:256
    ds_write_b128 v4, {v(S2+4,4)} offset:272
    v_and_b32 v5, 127, v0
    v_lshrrev_b32 v6, 7, v0
    v_mul_u32_u24 v7, {16*528}, v6
    v_lshl_add_u32 v7, v5, 2, v7
    s_waitcnt lgkmcnt(0)
    s_barrier
    """)
    for i in range(16):
        A(f"ds_read_b32 v{X+i}, v7 offset:{528*i}")
    A("s_waitcnt lgkmcnt(0)")
    for st in (8, 4, 2, 1):
        for i in range(st):
            A(f"v_add_f32 v{X+i}, v{X+i}, v{X+i+st}")
    A(f"""
    v_lshlrev_b32 v7, 2, v0
    ds_write_b32 v7, v{X} offset:{64*528}
    s_waitcnt lgkmcnt(0)
    s_barrier
    s_cmp_lg_u32 s22, 0
    s_cbranch_scc1 AUX_done
    """)
    for i in range(4):
        A(f"ds_read_b32 v{X+i}, v7 offset:{64*528 + 512*i}")
        A(f"ds_read_b32 v{X+4+i}, v7 offset:{64*528 + 512*i + 256}")
    A(f"""
    s_lshl_b32 s26, s2, 8
    s_add_u32 s27, s26, {WS_MEAN:#x}
    s_add_u32 s26, s26, {WS_R2:#x}
    s_waitcnt lgkmcnt(0)
    v_add_f32 v{X}, v{X}, v{X+1}
    v_add_f32 v{X+2}, v{X+2}, v{X+3}
    v_add_f32 v{X+4}, v{X+4}, v{X+5}
    v_add_f32 v{X+6}, v{X+6}, v{X+7}
    v_add_f32 v40, v{X}, v{X+2}
    v_add_f32 v41, v{X+4}, v{X+6}
    v_mul_f32 v40, 0x3b124925, v40       ; mean
    v_cvt_pk_bf16_f32 v42, v40, v40
    v_lshlrev_b32 v42, 16, v42
    buffer_store_dword v42, v7, s[60:63], s27 offen sc1
    v_mul_f32 v41, 0x3b124925, v41
    v_fma_f32 v41, -v40, v40, v41
    """)
    var_to_s(A, 41)
    A(f"""
    v_mul_f32 v41, v41, v41
    v_rcp_f32 v41, v41
    v_and_b32 v2, 63, v0
    buffer_store_dword v41, v7, s[60:63], s26 offen sc1
    s_waitcnt vmcnt(0)
    """)
    flag_set(A, WS_F3, "s2", 8, NREP, None)
    A.label("AUX_done")
    stamp_end(A)
    A("s_endpgm")


def gen_phase1(A):
    XU = 112
    A(f"""
    s_sub_u32 s3, s2, {NAUX}
    s_and_b32 s26, s3, 7
    s_mul_i32 s26, s26, 28
    s_lshr_b32 s27, s3, 3
    s_add_u32 s43, s26, s27              ; dpair
    s_lshl_b32 s27, s43, 10
    v_lshl_add_u32 v3, v0, 1, s27
    s_lshr_b32 s28, s22, 2               ; channel
    s_lshl_b32 s26, s43, 1
    s_add_u32 s26, s26, s28
    s_lshl_b32 s26, s26, 1
    v_mov_b32 v31, s26                   ; 2*d
    global_load_ushort v10, v31, s[16:17]
    global_load_ushort v4, v3, s[4:5]
    global_load_ushort v5, v3, s[6:7]
    global_load_ushort v6, v3, s[8:9]
    global_load_ushort v7, v3, s[10:11]
    global_load_ushort v8, v3, s[12:13]
    global_load_ushort v9, v3, s[14:15]
    global_load_ushort v29, v31, s[18:19]
    s_mul_i32 s31, s28, {KG_CH}
    s_lshl_b32 s26, s23, 8
    s_add_u32 m0, s31, s26
    v_mov_b32 v30, 0x00003f80
    ds_write_addtid_b32 v30
    ; tile ids for later phases
    s_and_b32 s24, s3, 3
    s_lshl_b32 s24, s24, 2
    s_bfe_u32 s25, s3, 0x20003
    s_add_u32 s24, s24, s25              ; tblk
    s_bfe_u32 s46, s3, 0x10002
    s_mul_i32 s25, s46, 7
    s_lshr_b32 s47, s3, 5                ; dblk
    s_add_u32 s25, s25, s47              ; fblk
    """)
    gen_p0(A, 1, 8)
    A(f"""
    s_add_u32 s58, s58, KG_TABLE-PC0
    s_addc_u32 s59, s59, 0
    v_lshlrev_b32 v18, 4, v0
    v_add_u32 v19, 8192, v18
    v_add_u32 v17, 16384, v18
    global_load_dwordx4 v[12:15], v17, s[58:59]
    global_load_dwordx4 v[20:23], v18, s[58:59]
    global_load_dwordx4 v[24:27], v19, s[58:59]
    """)
    stamp(A, 1)
    ACC = 32
    AR, AI = 44, 45
    BP, CP = 46, 48
    A2, B2 = 50, 51
    T0, T1 = 52, 54
    P = {r: 56 + 2 * (r - 1) for r in range(1, 8)}
    Z8, Q1 = 70, 72
    QA, QB = 74, 76
    BA, BB = 78, 80
    X0 = 82
    E0, E1, E2 = 86, 88, 90
    W0 = 92
    FR = 44
    A(f"""
    s_waitcnt vmcnt(10)
    v_lshlrev_b32 v28, 16, v10
    v_mul_f32 v28, 0x3fb8aa3b, v28
    v_exp_f32 v28, v28
    v_lshlrev_b32 v{AR}, 16, v4
    v_cvt_pk_bf16_f32 v28, v28, v28
    v_lshlrev_b32 v{AI}, 16, v5
    v_lshlrev_b32 v28, 16, v28           ; dt
    """)
    if "p0st" in OPT: stamp(A, 18)
    A(f"""
    v_mul_f32 v{A2}, v28, v{AR}
    v_mul_f32 v{B2}, v28, v{AI}
    v_mul_f32 v{A2}, 0x3fb8aa3b, v{A2}
    v_mul_f32 v{B2}, 0.15915494, v{B2}
    v_mul_f32 v{E1}, 0x41000000, v{A2}
    v_mul_f32 v{E1+1}, 0x41000000, v{B2}
    v_mul_f32 v{E2}, 0x43000000, v{A2}
    v_mul_f32 v{E2+1}, 0x43000000, v{B2}
    v_exp_f32 v{E0}, v{A2}
    v_fract_f32 v{E0+1}, v{B2}
    v_exp_f32 v{E1}, v{E1}
    v_fract_f32 v{E1+1}, v{E1+1}
    v_exp_f32 v{E2}, v{E2}
    v_fract_f32 v{E2+1}, v{E2+1}
    v_cos_f32 v{P[1]}, v{E0+1}
    v_sin_f32 v{P[1]+1}, v{E0+1}
    v_cos_f32 v{Z8}, v{E1+1}
    v_sin_f32 v{Z8+1}, v{E1+1}
    v_cos_f32 v{Q1}, v{E2+1}
    v_sin_f32 v{Q1+1}, v{E2+1}
    v_pk_mul_f32 {v(P[1],2)}, {v(P[1],2)}, {v(E0,2)} op_sel_hi:[1,0]
    v_pk_mul_f32 {v(Z8,2)}, {v(Z8,2)}, {v(E1,2)} op_sel_hi:[1,0]
    v_pk_mul_f32 {v(Q1,2)}, {v(Q1,2)}, {v(E2,2)} op_sel_hi:[1,0]
    """)
    rowof = {}
    for T in range(3):
        for g in range(4):
            for r in range(4):
                e = KALPHA[T][g] + [r, 128 * r, 2 * r][T]
                if e <= 2048:
                    rowof[e] = KG_TB[T] + 4 * g + r
    wsel = [0]

    def emit(row, reg, neg=""):
        w = W0 + wsel[0]; wsel[0] ^= 1
        A(f"v_cvt_pk_bf16_f32 v{w}, v{reg}, {neg}v{reg+1}")
        A(f"ds_write_addtid_b32 v{w} offset:{row*KG_ROW}")

    emitA = lambda e, reg: emit(rowof[e], reg)
    mulA = lambda d, x, y: cmul(A, d, x, y, T0)
    emitA(1, P[1])
    mulA(P[2], P[1], P[1]); emitA(2, P[2])
    mulA(P[3], P[2], P[1]); emitA(3, P[3])
    mulA(P[4], P[2], P[2]); emitA(4, P[4])
    mulA(P[5], P[4], P[1]); emitA(5, P[5])
    mulA(P[6], P[4], P[2]); emitA(6, P[6])
    mulA(P[7], P[4], P[3]); emitA(7, P[7])
    cur = Q1
    for i in range(1, 17):
        if i > 1:
            nxt = QA if cur != QA else QB
            mulA(nxt, cur, Q1)
            cur = nxt
        if i == int(OPT.get("f1at", 2)):
            gen_f1_publish(A, "P1_f1", younger=3)
            A(f"""
            s_cmp_lt_u32 s22, 4
            s_cbranch_scc1 P1_nowd
            s_cmp_eq_u32 s22, 7
            s_cbranch_scc1 P1_nowd
            v_min_u32 v16, 55, v2
            s_mul_i32 s28, s3, {56*128}
            v_lshl_add_u32 v16, v16, 7, s28
            s_cmp_eq_u32 s22, 4
            s_cselect_b32 s34, s48, s50
            s_cselect_b32 s35, s49, s51
            s_cmp_eq_u32 s22, 6
            s_cselect_b32 s34, s52, s34
            s_cselect_b32 s35, s53, s35
            """)
            if "nopf0" not in OPT:
                A("global_load_dword v128, v16, s[34:35]")
            A.label("P1_nowd")
            if "p0st" in OPT: stamp(A, 14)
        emitA(128 * i, cur)
        for r in {1: range(1, 8), 2: (2, 4, 6), 3: (2, 4, 6), 4: (4,), 5: (4,), 6: (4,), 7: (4,)}.get(i, ()):
            mulA(X0, cur, P[r])
            emitA(128 * i + r, X0)
    A(f"""
    s_lshr_b32 s28, s22, 2
    v_lshlrev_b32 v{BP}, 16, v6
    v_lshlrev_b32 v{BP+1}, 16, v7
    v_lshlrev_b32 v{CP}, 16, v8
    v_lshlrev_b32 v{CP+1}, 16, v9
    v_lshlrev_b32 v29, 16, v29
    v_and_b32 v4, 255, v0
    v_cmp_eq_u32 vcc, 0, v4
    """)
    cmul(A, BA, CP, BP, T0)
    A(f"""
    v_cndmask_b32 v29, 0, v29, vcc
    v_pk_mul_f32 {v(BA,2)}, {v(BA,2)}, v[28:29] op_sel_hi:[1,0]
    """)
    curb = BA
    for j in range(16):
        if j > 0:
            nxt = BB if curb == BA else BA
            cmul(A, nxt, curb, Z8, T1)
            curb = nxt
        emit(KG_TB[3] + j, curb, "-")
    EX = KL_BASE + 2 * KL_S - 8192 * 0
    EX = 122880
    A(f"""
    s_and_b32 s40, s2, {NREP-1}
    s_mul_i32 s40, s40, {REPS}
    v_and_b32 v5, 15, v2
    v_mul_u32_u24 v5, {KG_ROW}, v5
    v_lshrrev_b32 v6, 4, v2
    v_lshl_add_u32 v5, v6, 4, v5
    s_mul_i32 s26, s28, {KG_CH}
    s_lshl_b32 s27, s23, 8
    s_add_u32 s26, s26, s27
    v_add_u32 v5, s26, v5
    s_mul_i32 s29, s28, {CV_KC}
    s_add_u32 s29, s29, {CV_BASE}
    v_lshrrev_b32 v6, 4, v2
    v_mul_u32_u24 v6, {KG_ROW}, v6
    v_and_b32 v16, 15, v2
    v_lshl_add_u32 v6, v16, 4, v6
    v_add_u32 v16, s26, v6
    s_mul_i32 s26, s28, {KG_CH}
    s_mul_i32 s27, s23, {4*KG_ROW}
    s_add_u32 s26, s26, s27
    v_add_u32 v6, s26, v6
    s_waitcnt lgkmcnt(0)
    """)
    stamp(A, 3)
    items = []
    for ks in range(4):
        for q, T in enumerate((3, 0, 1, 2)):
            b = FR + 16 * ks + 4 * q
            items.append(('ds', f"ds_read_b128 {v(b,4)}, v5 offset:{KG_TB[T]*KG_ROW + ks*64}", R(b, 4)))
    for ks in range(4):
        for T in range(3):
            a, b = FR + 16 * ks + 4 + 4 * T, FR + 16 * ks
            c = "0" if ks == 0 else v(ACC + 4 * T, 4)
            items.append(('use', f"v_mfma_f32_16x16x32_bf16 {v(ACC+4*T,4)}, {v(a,4)}, {v(b,4)}, {c}", R(a, 4) + R(b, 4)))
    Sched().run(items, A)
    A(f"""
    s_nop 5
    v_add_f32 v{ACC}, v{ACC}, v29
    ds_write_b128 v16, {v(ACC,4)}
    ds_write_b128 v16, {v(ACC+4,4)} offset:{4*KG_ROW}
    ds_write_b128 v16, {v(ACC+8,4)} offset:{8*KG_ROW}
    s_waitcnt lgkmcnt(0)
    s_barrier                            ; Ba
    """)
    if "p0st" in OPT: stamp(A, 15)
    A(f"""
    s_cmp_eq_u32 s23, 3
    s_cbranch_scc1 P1_nomm
    ds_read_b128 {v(FR,4)}, v6
    ds_read_b128 {v(FR+4,4)}, v6 offset:256
    ds_read_b128 {v(FR+8,4)}, v6 offset:512
    ds_read_b128 {v(FR+12,4)}, v6 offset:768
    s_waitcnt vmcnt(2) lgkmcnt(2)
    v_pk_add_f32 {v(FR,2)}, {v(FR,2)}, {v(FR+4,2)}
    v_pk_add_f32 {v(FR+2,2)}, {v(FR+2,2)}, {v(FR+6,2)}
    s_waitcnt lgkmcnt(0)
    v_pk_add_f32 {v(FR+8,2)}, {v(FR+8,2)}, {v(FR+12,2)}
    v_pk_add_f32 {v(FR+10,2)}, {v(FR+10,2)}, {v(FR+14,2)}
    v_pk_add_f32 {v(FR,2)}, {v(FR,2)}, {v(FR+8,2)}
    v_pk_add_f32 {v(FR+2,2)}, {v(FR+2,2)}, {v(FR+10,2)}
    ds_write_b32 v12, v{FR}
    ds_write_b32 v13, v{FR+1}
    ds_write_b32 v14, v{FR+2}
    ds_write_b32 v15, v{FR+3}
    """)
    A.label("P1_nomm")
    A(f"""
    s_lshr_b32 s30, s43, 2
    s_mul_i32 s30, s30, {XUS}
    s_and_b32 s26, s43, 3
    s_lshl_b32 s26, s26, 5
    s_add_u32 s30, s30, s26
    s_add_u32 s30, s30, {WS_XU:#x}
    v_lshl_add_u32 v7, v4, 4, s29
    s_mul_i32 s26, s23, {CV_KS-4}
    s_add_u32 s26, s26, s29
    s_add_u32 s26, s26, 4096
    v_lshl_add_u32 v16, v2, 2, s26
    s_add_u32 s27, s23, 12
    v_mov_b32 v8, 0
    v_mov_b32 v9, 0
    v_mov_b32 v10, 0
    v_mov_b32 v11, 0
    s_sub_u32 s26, s22, 4
    s_cmp_lt_u32 s26, 3
    s_cbranch_scc1 P1_tw1
    s_waitcnt vmcnt(0)
    """)
    A.label("P1_tw1")
    A(f"""
    s_waitcnt vmcnt(1) lgkmcnt(0)
    s_barrier                            ; Bb
    """)
    if "p0st" in OPT: stamp(A, 16)
    items = [('ds', f"ds_read_b32 v{FR+e}, v{20+e}", [FR + e]) for e in range(8)]
    items += [('op', "v_cmp_gt_u32 vcc, s27, v2"), ('op', "s_and_saveexec_b64 s[32:33], vcc"),
              ('ds', "ds_write_b32 v16, v8", []), ('op', "s_mov_b64 exec, s[32:33]")]
    for q in range(4):
        items.append(('use', f"v_cvt_pk_bf16_f32 v{32+q}, v{FR+2*q}, v{FR+2*q+1}", R(FR + 2 * q, 2)))
    Sched().run(items, A)
    XU = 112
    U0 = 448
    A(f"""
    v_mov_b32 v36, v33
    v_mov_b32 v37, v34
    s_barrier
    """)
    if "p0st" in OPT: stamp(A, 17)
    A(f"""
    ds_write_b128 v7, v[32:35]
    ds_write_b64 v7, v[32:33] offset:{2*CV_KS - 8}
    ds_write_b64 v7, v[34:35] offset:{2*CV_KS}
    ds_write_b32 v7, v32 offset:{CV_KS - 4}
    ds_write_b64 v7, v[36:37] offset:{CV_KS}
    ds_write_b32 v7, v35 offset:{CV_KS + 8}
    ds_write_b32 v7, v32 offset:{3*CV_KS - 12}
    ds_write_b64 v7, v[36:37] offset:{3*CV_KS - 8}
    ds_write_b32 v7, v35 offset:{3*CV_KS}
    ; u pads: wave -> (ch = w>>2... only c<2): 28 chunks + 2 bytes
    s_mul_i32 s26, s28, {CV_UD}
    s_mul_i32 s27, s23, {CV_US}
    s_add_u32 s26, s26, s27
    s_add_u32 s26, s26, {CV_UX}
    v_lshl_add_u32 v16, v2, 4, s26
    v_mov_b32 v17, s26
    s_cmp_lt_u32 s23, 2
    s_cselect_b32 s32, 0x0fffffff, 0
    s_mov_b32 s33, 0
    s_mov_b64 exec, s[32:33]
    s_cbranch_execz P1_nz
    ds_write_b128 v16, v[8:11]
    s_cmp_eq_u32 s23, 1
    s_cbranch_scc0 P1_nz
    ds_write_b16 v17, v8 offset:448
    """)
    A.label("P1_nz")
    A(f"""
    s_mov_b64 exec, -1
    v_and_b32 v17, 1, v0
    v_mul_u32_u24 v7, {CV_UD}, v17
    v_lshrrev_b32 v16, 1, v0             ; tb8
    v_lshl_add_u32 v7, v16, 4, v7
    v_add_u32 v7, {CV_UX}, v7
    v_lshlrev_b32 v18, 6, v16
    v_lshlrev_b32 v16, 7, v16
    v_lshl_add_u32 v16, v17, 4, v16
    s_mov_b32 s26, {WS_ST1:#x}
    v_and_b32 v5, 7, v2
    v_lshlrev_b32 v5, 7, v5
    s_lshl_b32 s31, s22, 10
    s_add_u32 s31, s31, s40
    s_add_u32 s31, s31, {WS_F1:#x}
    """)
    stamp(A, 2)
    poll(A, "P1_f", "buffer_load_dwordx4 v[8:11], v5, s[60:63], s31 offen sc1", q4_ok(8), sleep=2)
    stamp(A, 4)
    A(f"""
    buffer_load_dwordx4 {v(XU,4)}, v16, s[60:63], s30 offen sc1
    buffer_load_dwordx4 v[132:135], v18, s[60:63], s26 offen sc1
    buffer_load_dwordx4 v[136:139], v18, s[60:63], s26 offen offset:16 sc1
    buffer_load_dwordx4 v[140:143], v18, s[60:63], s26 offen offset:32 sc1
    buffer_load_dwordx4 v[144:147], v18, s[60:63], s26 offen offset:48 sc1
    """)


def gen_xu_store(A):
    XU, U0 = 112, 448
    u = XU + 4
    A(f"""
    s_waitcnt vmcnt(4)
    ds_write_b128 v7, {v(XU,4)} offset:{CV_XOFF}
    """)
    for i in range(4):
        A(f"""
        v_lshlrev_b32 v{148+2*i}, 16, v{XU+i}
        v_and_b32 v{149+2*i}, 0xffff0000, v{XU+i}
        """)
    A("s_waitcnt vmcnt(2)")
    for i in range(4):
        A(f"v_pk_add_f32 {v(148+2*i,2)}, {v(148+2*i,2)}, {v(132+2*i,2)} neg_lo:[0,1] neg_hi:[0,1]")
    for i in range(4):
        A(f"v_cvt_pk_bf16_f32 v{u+i}, v{148+2*i}, v{149+2*i}")
    for i in range(4):
        A(f"""
        v_lshlrev_b32 v{148+2*i}, 16, v{u+i}
        v_and_b32 v{149+2*i}, 0xffff0000, v{u+i}
        """)
    A("s_waitcnt vmcnt(0)")
    for i in range(4):
        A(f"v_pk_mul_f32 {v(148+2*i,2)}, {v(148+2*i,2)}, {v(140+2*i,2)}")
    for i in range(4):
        A(f"v_cvt_pk_bf16_f32 v{u+i}, v{148+2*i}, v{149+2*i}")
    A(f"""
    v_cvt_pk_bf16_f32 v44, v149, v150
    v_cvt_pk_bf16_f32 v46, v151, v152
    v_cvt_pk_bf16_f32 v47, v153, v154
    ds_write_b128 v7, {v(u,4)} offset:{U0}
    ds_write_b16 v7, v{u} offset:{U0 + CV_US + 2}
    ds_write_b32 v7, v44 offset:{U0 + CV_US + 4}
    ds_write_b64 v7, v[46:47] offset:{U0 + CV_US + 8}
    ds_write_b16_d16_hi v7, v{u+3} offset:{U0 + CV_US + 16}
    """)
    stamp(A, 5)


def gen_conv(A):
    XR, ACC, FP = 12, 20, 40
    A(f"""
    v_and_b32 v4, 15, v2                 ; i / n
    v_lshrrev_b32 v5, 4, v2              ; g
    s_lshr_b32 s28, s22, 1               ; dsel
    s_and_b32 s30, s22, 1                ; role
    s_mul_i32 s27, s28, {CV_KC}
    s_add_u32 s27, s27, {CV_BASE}
    v_and_b32 v36, 3, v4
    v_sub_u32 v36, 3, v36
    v_mul_u32_u24 v36, {CV_KS}, v36
    v_lshrrev_b32 v37, 2, v4
    v_sub_u32 v37, v5, v37
    v_lshl_add_u32 v36, v37, 4, v36
    v_add_u32 v36, {4080 - 512*7}, v36
    v_add_u32 v36, s27, v36              ; F addr
    s_mul_i32 s27, s28, {CV_UD}
    s_add_u32 s27, s27, {CV_UX}
    v_and_b32 v37, 1, v4
    v_sub_u32 v37, 1, v37
    v_mul_u32_u24 v37, {CV_US}, v37
    v_lshrrev_b32 v38, 1, v4
    v_lshl_add_u32 v37, v38, 6, v37
    v_lshl_add_u32 v37, v5, 4, v37
    v_add_u32 v37, 448, v37
    v_add_u32 v37, s27, v37              ; G addr
    v_lshlrev_b32 v6, 7, v5
    v_lshl_add_u32 v6, v4, 2, v6
    s_add_u32 s26, s27, {CV_XOFF}
    v_add_u32 v6, s26, v6
    v_lshl_add_u32 v39, v2, 4, s26
    v_mul_u32_u24 v38, {HTB}, v5
    v_lshl_add_u32 v38, v4, 4, v38
    s_lshl_b32 s33, s43, 1
    s_add_u32 s33, s33, s28
    s_lshl_b32 s33, s33, 8
    s_add_u32 s33, s33, {WS_HT:#x}         ; HT + d*256
    """)
    gen_xu_store(A)
    A("""
    s_waitcnt lgkmcnt(0)
    s_barrier                            ; Bc
    """)
    stamp(A, 6)
    A("""
    s_cmp_eq_u32 s30, 0
    s_cbranch_scc0 CV_roleB
    """)
    for role, tiles in ((0, (7, 6, 1, 0)), (1, (5, 4, 3, 2))):
        if role == 1:
            A.label("CV_roleB")
        nf = max(tiles) + 1

        def reads(base):
            out = []
            for a in range(nf):
                out.append(('ds', f"ds_read_b128 {v(base+4*a,4)}, v36 offset:{512*(7-a)}", R(base + 4 * a, 4)))
                out.append(('ds', f"ds_read_b128 {v(base+32+4*a,4)}, v37 offset:{512*a}", R(base + 32 + 4 * a, 4)))
            return out

        def mfmas(base):
            pairs = [(a, c - a, q) for q, c in enumerate(tiles) for a in range(c + 1)]
            pairs.sort(key=lambda p: (max(p[0], p[1]), p[2]))
            return [('use', f"v_mfma_f32_16x16x32_bf16 {v(ACC+4*q,4)}, {v(base+32+4*b,4)}, {v(base+4*a,4)}, {v(ACC+4*q,4)}",
                     R(base + 32 + 4 * b, 4) + R(base + 4 * a, 4)) for a, b, q in pairs]

        def step(cur, nxt):
            it = [('op', "v_subrev_u32 v36, 64, v36"), ('op', "v_subrev_u32 v37, 64, v37")]
            rs = reads(nxt)
            i = 0
            for m in mfmas(cur):
                it.append(m)
                if i < len(rs):
                    it.append(rs[i]); i += 1
            return it + rs[i:]

        for q, c in enumerate(tiles):
            A(f"ds_read2_b32 {v(XR+2*q,2)}, v6 offset0:{0} offset1:16" if c == 0 else
              f"ds_read_b32 v{XR+2*q}, v6 offset:{512*c}\nds_read_b32 v{XR+2*q+1}, v6 offset:{512*c+64}")
        A("s_waitcnt lgkmcnt(0)")
        S = Sched()
        S.run(reads(FP), A)
        for q in range(4):
            A(f"""
            v_lshlrev_b32 v{ACC+4*q}, 16, v{XR+2*q}
            v_and_b32 v{ACC+4*q+1}, 0xffff0000, v{XR+2*q}
            v_lshlrev_b32 v{ACC+4*q+2}, 16, v{XR+2*q+1}
            v_and_b32 v{ACC+4*q+3}, 0xffff0000, v{XR+2*q+1}
            """)
        A("s_mov_b32 s36, 4")
        A.label(f"CV_loop{role}")
        S.run(step(FP, FP + 64) + step(FP + 64, FP), A)
        A(f"""
        s_sub_u32 s36, s36, 1
        s_cmp_lg_u32 s36, 0
        s_cbranch_scc1 CV_loop{role}
        s_nop 6
        """)
        for q, c in enumerate(tiles):
            A(f"""
            v_cvt_pk_bf16_f32 v{XR+2*q}, v{ACC+4*q}, v{ACC+4*q+1}
            v_cvt_pk_bf16_f32 v{XR+2*q+1}, v{ACC+4*q+2}, v{ACC+4*q+3}
            ds_write_b32 v6, v{XR+2*q} offset:{512*c}
            ds_write_b32 v6, v{XR+2*q+1} offset:{512*c+64}
            """)
        A(f"""
        s_add_u32 s34, s33, {2*tiles[1]*HTB:#x}
        s_add_u32 s35, s33, {2*tiles[3]*HTB:#x}
        s_waitcnt lgkmcnt(0)
        ds_read_b128 v[20:23], v39 offset:{512*tiles[1]}
        ds_read_b128 v[24:27], v39 offset:{512*tiles[3]}
        """)
        if role == 0:
            A("s_branch CV_out")
    A.label("CV_out")
    A(f"""
    s_waitcnt lgkmcnt(1)
    buffer_store_dwordx4 v[20:23], v38, s[60:63], s34 offen sc1
    s_waitcnt lgkmcnt(0)
    buffer_store_dwordx4 v[24:27], v38, s[60:63], s35 offen sc1
    """)
    stamp(A, 7)


def gen_consumer(A):
    _late[0] = True
    gen_conv(A)
    ACC = 24
    FP = 152
    acc = lambda m, tt: ACC + 16 * (m * 4 + tt)
    A(f"""
    v_lshrrev_b32 v4, 5, v2              ; h
    v_bfe_u32 v3, v2, 2, 2               ; r
    v_lshl_add_u32 v5, v4, 2, v3
    v_lshlrev_b32 v5, 8, v5
    v_bfe_u32 v6, v2, 4, 1
    v_lshl_add_u32 v5, v6, 5, v5
    v_and_b32 v6, 3, v2
    v_lshl_add_u32 v5, v6, 3, v5
    v_xor_b32 v6, s23, v3
    v_lshl_add_u32 v8, v6, 6, v5
    s_mov_b32 s33, 0
    """)
    A("""
    s_xor_b32 s37, s46, 1
    s_lshl_b32 s37, s37, 1
    v_xor_b32 v7, s37, v3
    """)
    for tt in range(4):
        A(f"""
        v_xor_b32 v6, {tt}, v7
        v_lshl_add_u32 v{9+tt}, v6, 6, v5
        """)
    A(f"""
    v_lshlrev_b32 v18, 7, v2
    v_mov_b32 v19, v3
    s_waitcnt vmcnt(0)
    s_barrier                            ; BH
    s_cmp_lg_u32 s22, 0
    s_cbranch_scc1 C_nf2
    """)
    flag_set(A, WS_F2, "s2", 64, NREP, None)
    A("s_nop 1")
    A("v_mov_b32 v3, v19")
    A.label("C_nf2")
    stamp(A, 8)
    for i in range(128):
        A(f"v_mov_b32 v{ACC+i}, 0")
    A(f"""
    s_add_u32 s28, s40, {WS_F2:#x}
    s_cmp_lg_u32 s22, 0
    s_cbranch_scc1 C_f2_got
    """)
    poll(A, "C_f2", f"buffer_load_dwordx4 {v(FP,4)}, v18, s[60:63], s28 offen sc1", q4_ok(FP))
    A("s_barrier                            ; BS")
    stamp(A, 9)

    def fa(base, kk, m): return base + 24 * kk + 4 * m
    def fb(base, kk, tt): return base + 24 * kk + 8 + 4 * tt

    def reads(base):
        out = []
        for kk in range(2):
            for kind, i in [('b', 0), ('a', 0), ('a', 1), ('b', 1), ('b', 2), ('b', 3)]:
                for j in range(2):
                    if kind == 'a':
                        d = fa(base, kk, i) + 2 * j
                        out.append(('ds', f"ds_read_b64_tr_b16 {v(d,2)}, v13 offset:{8192*(i+1) + 4096*kk + 2048*j}", R(d, 2)))
                    else:
                        d = fb(base, kk, i) + 2 * j
                        out.append(('ds', f"ds_read_b64_tr_b16 {v(d,2)}, v{14+i} offset:{4096*kk + 2048*j}", R(d, 2)))
        return out

    def addr_setup():
        return [('op', t) for t in f"""v_add_u32 v13, s33, v8
            v_add_u32 v14, s33, v9
            v_add_u32 v15, s33, v10
            v_add_u32 v16, s33, v11
            v_add_u32 v17, s33, v12
            s_add_u32 s33, s33, {G1_STAGE}
            s_cmp_eq_u32 s33, {G1_SLOTS*G1_STAGE}
            s_cselect_b32 s33, 0, s33""".split("\n")]

    def step(cur, nxt, bar):
        ms = []
        for kk in range(2):
            for tt in range(4):
                for m in range(2):
                    a, b = fa(cur, kk, m), fb(cur, kk, tt)
                    ms.append(('use', f"v_mfma_f32_32x32x16_bf16 {v(acc(m,tt),16)}, {v(a,4)}, {v(b,4)}, {v(acc(m,tt),16)}", R(a, 4) + R(b, 4)))
        rs = reads(nxt)
        ad = addr_setup()
        it = [ms[0]] + ad[:4] + [ms[1]] + ad[4:]
        if bar:
            it += [ms[2], ('drain',), ('op', "s_barrier")]
            rest = ms[3:]
        else:
            rest = ms[2:]
        i = 0
        for m in rest:
            it.append(m)
            for _ in range(2):
                if i < len(rs):
                    it.append(rs[i]); i += 1
        return it + rs[i:]

    S = Sched()
    S.run(addr_setup(), A)
    A("s_barrier                            ; B0")
    stamp(A, 10)
    S.run(reads(FP), A)
    A("s_mov_b32 s36, 7")
    A.label("C_loop3")
    S.run(step(FP, FP + 48, True) + step(FP + 48, FP, False), A)
    A(f"""
    s_sub_u32 s36, s36, 1
    s_cmp_lg_u32 s36, 0
    s_cbranch_scc1 C_loop3
    """)
    stamp(A, 11)
    CS, M, O = FP, FP + 32, FP + 40
    A(f"""
    s_lshl_b32 s26, s23, 7
    v_lshl_add_u32 v6, v4, 4, s26
    v_add_u32 v6, {G1_X}, v6
    v_and_b32 v7, 31, v2
    v_lshlrev_b32 v7, 2, v7
    v_add_u32 v7, {G1_X+1024}, v7
    s_lshl_b32 s26, s37, 7
    v_add_u32 v7, s26, v7
    v_xor_b32 v1, 256, v7
    s_waitcnt lgkmcnt(0)
    """)
    for tt in range(4):
        A(f"ds_read_b32 v{M+2*tt}, v{7 if tt < 2 else 1} offset:{128*(tt&1)}")
    for q in range(4):
        for m in range(2):
            A(f"ds_read_b128 {v(CS+16*m+4*q,4)}, v6 offset:{512*m + 32*q}")
    A(f"""
    s_lshl_b32 s26, s24, 2
    s_add_u32 s26, s26, s37
    s_mul_i32 s26, s26, {HAT}
    s_mul_i32 s38, s37, {2*HAT}
    s_sub_u32 s38, {HAT}, s38
    s_lshl_b32 s29, s25, 3
    s_lshl_b32 s30, s23, 1
    s_add_u32 s29, s29, s30
    s_lshl_b32 s29, s29, 10
    s_add_u32 s26, s26, s29
    s_add_u32 s26, s26, {WS_HA:#x}
    v_lshlrev_b32 v6, 4, v2
    s_waitcnt lgkmcnt(0)
    s_barrier
    """)
    stamp(A, 14)
    for tt in range(4):
        for q in range(4):
            g_, u_ = acc(0, tt) + 4 * q, acc(1, tt) + 4 * q
            o = O + 8 * (tt & 1) + 2 * q
            for h in range(2):
                A(f"v_pk_fma_f32 {v(g_+2*h,2)}, {v(CS+4*q+2*h,2)}, {v(M+2*tt,2)}, {v(g_+2*h,2)} op_sel_hi:[1,0,1] neg_lo:[0,1,0] neg_hi:[0,1,0]")
                A(f"v_pk_fma_f32 {v(u_+2*h,2)}, {v(CS+16+4*q+2*h,2)}, {v(M+2*tt,2)}, {v(u_+2*h,2)} op_sel_hi:[1,0,1] neg_lo:[0,1,0] neg_hi:[0,1,0]")
            for i in range(4):
                A(f"v_max_f32 v{g_+i}, 0, v{g_+i}")
            for h in range(2):
                A(f"v_pk_mul_f32 {v(g_+2*h,2)}, {v(g_+2*h,2)}, {v(u_+2*h,2)}")
            for h in range(2):
                A(f"v_cvt_pk_bf16_f32 v{o+h}, v{g_+2*h}, v{g_+2*h+1}")
            if q & 1:
                A(f"buffer_store_dwordx4 {v(o-2,4)}, v6, s[60:63], s26 offen offset:{1024*(q>>1)} sc1")
        if tt < 3:
            A(f"s_add_u32 s26, s26, {HAT if tt != 1 else 's38'}")
    stamp(A, 15)
    ACC4, AF, BF, NB = 16, 80, 160, 6
    A(f"""
    v_lshl_add_u32 v5, v4, 2, v3
    v_lshlrev_b32 v5, 7, v5
    v_bfe_u32 v7, v2, 4, 1
    v_lshl_add_u32 v5, v7, 5, v5
    v_and_b32 v7, 3, v2
    v_lshl_add_u32 v5, v7, 3, v5
    v_lshrrev_b32 v3, 1, v3
    s_lshl_b32 s28, s23, 12
    v_lshl_add_u32 v8, v3, 6, v5
    v_add_u32 v8, s28, v8
    v_xor_b32 v9, 64, v8
    v_add_u32 v10, 0x10000, v8
    v_add_u32 v11, 0x10000, v9
    v_add_u32 v12, 0x20000, v8
    v_add_u32 v13, 0x20000, v9
    s_and_b32 s26, s23, 1
    s_lshr_b32 s27, s23, 1
    v_xor_b32 v7, s26, v3
    v_lshl_add_u32 v14, v7, 6, v5
    s_lshl_b32 s28, s27, 12
    s_add_u32 s28, s28, {P4_X}
    v_add_u32 v14, s28, v14
    s_lshl_b32 s28, s24, 1
    s_add_u32 s28, s28, s46
    s_lshl_b32 s28, s28, 1
    s_mul_i32 s30, s28, {HAT}
    s_lshl_b32 s28, s23, 11
    s_add_u32 s30, s30, s28
    s_add_u32 s38, s30, {WS_HA:#x}
    s_add_u32 s39, s25, 1
    s_cmp_eq_u32 s39, 14
    s_cselect_b32 s39, 0, s39
    s_lshl_b32 s39, s39, 13
    s_add_u32 s30, s38, s39
    s_add_u32 s31, s30, {HAT}
    s_lshl_b32 s34, s24, 9
    s_add_u32 s34, s34, {WS_F4:#x}
    s_and_b32 s28, s25, 3
    s_lshl_b32 s28, s28, 7
    s_lshr_b32 s32, s25, 2
    s_lshl_b32 s32, s32, 2
    s_add_u32 s28, s28, s32
    s_add_u32 s28, s28, s34
    v_mov_b32 v7, s42
    v_mul_u32_u24 v1, {2*128+12}, v2
    s_cmp_lt_u32 s25, 2
    s_cselect_b32 s32, 3, 1
    s_mov_b32 s33, 0
    v_and_b32 v15, 3, v2
    v_lshlrev_b32 v15, 7, v15
    """)
    for i in range(64):
        A(f"v_mov_b32 v{ACC4+i}, 0")
    A(f"""
    s_waitcnt vmcnt(0)
    s_barrier                            ; BX
    s_cmp_lg_u32 s23, 0
    s_cbranch_scc1 C_nf4
    s_mov_b64 exec, s[32:33]
    buffer_store_dword v7, v1, s[60:63], s28 offen sc1
    s_mov_b64 exec, -1
    """)
    A.label("C_nf4")
    stamp(A, 12)

    def ardsl(st, base):
        sl = st % 9
        out = []
        for kk in range(2):
            for dt in range(2):
                for j in range(2):
                    off = sl * 16384 + 2048 * kk + 1024 * j
                    reg = 8 + dt + 2 * (off >> 16)
                    d = base + 8 * kk + 4 * dt + 2 * j
                    out.append(('ds', f"ds_read_b64_tr_b16 {v(d,2)}, v{reg} offset:{off & 0xffff}", R(d, 2)))
        return out

    def bbuf(st): return BF + 16 * ((st + 2) % NB)

    def mf(st, kk, dt, tt):
        a = AF + 16 * (st % 5) + 8 * kk + 4 * dt
        b = bbuf(st) + (8 * tt + 4 * kk if st == 0 else 8 * kk + 4 * tt)
        c = ACC4 + 16 * (2 * dt + tt)
        return ('use', f"v_mfma_f32_32x32x16_bf16 {v(c,16)}, {v(a,4)}, {v(b,4)}, {v(c,16)}", R(a, 4))

    assert bbuf(0) == O
    S = Sched()
    for st in range(5):
        S.run(ardsl(st, AF + 16 * st), A)
    S.run([mf(0, kk, dt, tt) for kk in range(2) for dt in range(2) for tt in range(2)], A)
    A(f"""
    s_waitcnt lgkmcnt(0)
    s_barrier                            ; BY
    """)
    S = Sched()
    S.run(ardsl(5, AF), A)
    A(f"""
    s_cmp_lg_u32 s23, 0
    s_cbranch_scc1 C_f4_got
    """)
    poll(A, "C_f4", f"buffer_load_dwordx4 {v(BF,4)}, v15, s[60:63], s34 offen sc1", q4_ok(BF))

    def bl(i):
        st, kk, tt = i // 4, (i // 2) % 2, i % 2
        out = [('op', f"buffer_load_dwordx4 {v(bbuf(st)+8*kk+4*tt,4)}, v6, s[60:63], s{30+tt} offen offset:{1024*kk} sc1")]
        if i % 4 == 3:
            out += [('op', x) for x in f"""s_add_u32 s39, s39, 8192
            s_cmp_eq_u32 s39, {14*8192}
            s_cselect_b32 s39, 0, s39
            s_add_u32 s30, s38, s39
            s_add_u32 s31, s30, {HAT}""".split("\n")]
        return out

    A("s_barrier                            ; BZ")
    if STAMP: S.q = []
    stamp(A, 13)
    issued = 4 + 4 * int(OPT.get("b0", 3))
    for i in range(4, issued):
        S.run(bl(i), A)
    stamp(A, 16)
    for st in range(1, 14):
        if st == 2:
            stamp(A, 17); S.q = []
        items = []
        for kk in range(2):
            items.append(('op', f"s_waitcnt vmcnt({issued - (4*st + 2*kk + 2)})"))
            for dt in range(2):
                for tt in range(2):
                    items.append(mf(st, kk, dt, tt))
                    if issued < 56 and issued < 4 * (st + NB):
                        items += bl(issued); issued += 1
        S.run(items, A)
        if st + 5 < 14:
            S.run(ardsl(st + 5, AF + 16 * (st % 5)), A)
        if st == 9:
            A("s_waitcnt lgkmcnt(0)")
            S.q = []
            A("s_barrier                            ; BR")
    stamp(A, 18)
    A("s_nop 7")
    for w in range(4):
        if w < 3:
            A(f"s_cmp_lg_u32 s23, {w}")
            A(f"s_cbranch_scc1 C_x{w+1}")
        for i in range(1, 4):
            dst = (w + i) & 3
            for q in range(4):
                A(f"ds_write_b128 v6, {v(ACC4+16*dst+4*q,4)} offset:{dst*12288 + (i-1)*4096 + q*1024}")
        if w:
            for r in range(16):
                A(f"v_mov_b32 v{ACC4+r}, v{ACC4+16*w+r}")
        if w < 3:
            A("s_branch C_xd")
            A.label(f"C_x{w+1}")
    A.label("C_xd")
    srd(A, 8, 54, 0, L * D * 2)
    FR = 160
    A(f"""
    s_mul_i32 s28, s23, 12288
    v_add_u32 v5, s28, v6
    v_and_b32 v6, 31, v2
    s_lshl_b32 s28, s26, 7
    v_lshl_add_u32 v7, v6, 2, s28
    v_add_u32 v7, {P4_X+8192}, v7
    ds_read_b32 v196, v7
    """)
    for q in range(4):
        A(f"ds_read_b64_tr_b16 {v(FR+2*q,2)}, v14 offset:{1024*q}")
    A(f"""
    v_mul_u32_u24 v6, 896, v6
    v_lshl_add_u32 v6, v4, 4, v6
    s_lshl_b32 s28, s24, 1
    s_add_u32 s28, s28, s46
    s_lshl_b32 s28, s28, 1
    s_add_u32 s28, s28, s26
    s_mul_i32 s29, s28, {32*896}
    s_lshl_b32 s30, s47, 7
    s_add_u32 s29, s29, s30
    s_lshl_b32 s30, s27, 6
    s_add_u32 s29, s29, s30
    s_waitcnt lgkmcnt(0)
    s_barrier                            ; BE
    """)
    stamp(A, 19)
    PR = 80
    items = []
    for q in range(4):
        for i in range(3):
            d = PR + 16 * i + 4 * q
            items.append(('ds', f"ds_read_b128 {v(d,4)}, v5 offset:{i*4096 + q*1024}", R(d, 4)))
    O = FR + 8
    for q in range(4):
        for h in range(2):
            a = ACC4 + 4 * q + 2 * h
            p0, p1, p2 = (PR + 16 * i + 4 * q + 2 * h for i in range(3))
            items.append(('use', f"v_pk_add_f32 {v(p0,2)}, {v(p0,2)}, {v(p1,2)}", R(p0, 2) + R(p1, 2)))
            items.append(('use', f"v_pk_add_f32 {v(a,2)}, {v(a,2)}, {v(p2,2)}", R(p2, 2)))
            for ln in f"""v_lshlrev_b32 v198, 16, v{FR+2*q+h}
            v_pk_add_f32 {v(a,2)}, {v(a,2)}, {v(p0,2)}
            v_and_b32 v199, 0xffff0000, v{FR+2*q+h}
            v_pk_mul_f32 {v(a,2)}, {v(a,2)}, v[196:197] op_sel_hi:[1,0]
            v_cvt_pk_bf16_f32 v200, v{a}, v{a+1}
            v_lshlrev_b32 v{a}, 16, v200
            v_and_b32 v{a+1}, 0xffff0000, v200
            v_pk_add_f32 {v(a,2)}, {v(a,2)}, v[198:199]
            v_cvt_pk_bf16_f32 v{O+2*q+h}, v{a}, v{a+1}""".split("\n"):
                items.append(('op', ln))
        if q & 1:
            o = O + 2 * (q - 1)
            for ln in f"""s_nop 1
            v_permlane32_swap_b32 v{o}, v{o+2}
            v_permlane32_swap_b32 v{o+1}, v{o+3}
            buffer_store_dwordx4 {v(o,4)}, v6, s[8:11], s29 offen offset:{32*(q>>1)}""".split("\n"):
                items.append(('op', ln))
    Sched().run(items, A)
    stamp_end(A)
    A("s_endpgm")


def gen_loader(A):
    A.label("LOADER")
    WD = 32
    gen_xu_store(A)
    A("""
    s_waitcnt lgkmcnt(0)
    s_barrier                            ; Bc
    """)
    stamp(A, 6)
    A(f"""
    v_lshrrev_b32 v4, 5, v2              ; h
    v_lshrrev_b32 v9, 4, v2
    v_lshlrev_b32 v10, 2, v9
    v_and_b32 v11, 15, v2
    v_xor_b32 v10, v10, v11
    s_lshl_b32 s26, s23, 3
    v_add_u32 v9, s26, v9
    v_lshlrev_b32 v11, 8, v9
    v_lshl_add_u32 v11, v10, 4, v11
    v_mul_u32_u24 v12, 3584, v9
    v_lshl_add_u32 v12, v10, 4, v12
    s_lshl_b32 s26, s25, 8
    v_add_u32 v12, s26, v12
    v_add_u32 v13, {4*3584-1024}, v12
    s_lshl_b32 s27, s23, 11              ; q*2048
    s_mov_b32 s29, 0                     ; W soffset
    s_mul_i32 s30, s24, {HTB}
    s_add_u32 s30, s30, {WS_HT:#x}         ; h soffset
    v_and_b32 v14, 31, v2
    v_lshlrev_b32 v14, 4, v14
    v_mul_u32_u24 v15, {F*4}, v4
    v_add_u32 v14, v14, v15
    v_lshrrev_b32 v3, 3, v2
    v_and_b32 v5, 7, v2
    s_lshl_b32 s28, s23, 5
    v_add_u32 v6, s28, v3
    v_mul_u32_u24 v16, 896, v6
    v_lshl_add_u32 v16, v5, 4, v16
    s_lshl_b32 s28, s47, 7
    v_add_u32 v16, s28, v16
    v_bfe_u32 v7, v2, 4, 1
    v_lshlrev_b32 v7, 2, v7
    v_xor_b32 v7, v7, v5
    v_lshlrev_b32 v24, 7, v6
    v_lshl_add_u32 v24, v7, 4, v24
    v_add_u32 v25, 0x10000, v24
    v_add_u32 v26, 0x20000, v24
    s_lshl_b32 s28, s23, 4
    v_add_u32 v6, s28, v3
    v_lshlrev_b32 v18, 8, v6
    v_lshl_add_u32 v18, v7, 4, v18
    v_add_u32 v19, 1024, v18
    v_lshlrev_b32 v20, 2, v2
    v_and_b32 v21, 7, v2
    v_lshlrev_b32 v21, 7, v21
    s_add_u32 s38, s40, {WS_F3:#x}
    s_mul_i32 s35, s25, {128*896:#x}
    """)
    srd(A, 4, 48, 0, D * F * 2)
    srd(A, 8, 50, 0, D * F * 2)
    srd(A, 12, 52, 0, D * F * 2)
    V = VM(A)
    V.q = []

    def wdma(st):
        base = (st % G1_SLOTS) * G1_STAGE
        A(f"s_add_u32 m0, s27, {base+8192}")
        A("s_nop 0")
        V.op("buffer_load_dwordx4 v12, s[4:7], s29 offen lds", ("s", st))
        V.op("buffer_load_dwordx4 v13, s[4:7], s29 offen offset:1024 lds", ("s", st))
        A(f"s_add_u32 m0, s27, {base+16384}")
        A("s_nop 0")
        V.op("buffer_load_dwordx4 v12, s[8:11], s29 offen lds", ("s", st))
        V.op("buffer_load_dwordx4 v13, s[8:11], s29 offen offset:1024 lds", ("s", st))
        A(f"s_add_u32 s29, s29, {32*3584:#x}")

    def hdma(st):
        base = (st % G1_SLOTS) * G1_STAGE
        A(f"s_add_u32 m0, s27, {base}")
        A("s_nop 0")
        V.op("buffer_load_dwordx4 v11, s[60:63], s30 offen sc1 lds", ("s", st))
        V.op("buffer_load_dwordx4 v11, s[60:63], s30 offen offset:1024 sc1 lds", ("s", st))
        A("s_add_u32 s30, s30, 8192")

    wdn = [0]

    def wdload(n):
        for _ in range(n):
            i = wdn[0]
            V.op(f"buffer_load_dwordx4 {v(WD+4*i,4)}, v16, s[12:15], s35 offen", ("w", i // 4))
            if i % 4 != 3:
                A("s_add_u32 s35, s35, 7168")
            else:
                A(f"""
                s_add_u32 s35, s35, {128*896 - 3*7168:#x}
                s_cmp_eq_u32 s35, {14*128*896:#x}
                s_cselect_b32 s35, 0, s35
                """)
            wdn[0] += 1

    def wdwrite(st):
        off = (st % 9) * 16384
        for i in range(4):
            A(f"ds_write_b128 v{24 + (off >> 16)}, {v(WD+16*st+4*i,4)} offset:{(off & 0xffff) + 1024*i}")

    for st in range(4):
        wdma(st)
    wdload(int(OPT.get("n0", 24)))
    stamp(A, 7)
    A("s_barrier                            ; BH")
    stamp(A, 8)
    V.wait(("s", 3), ("w", 1))
    wdma(4); wdma(5)
    wdload(int(OPT.get("n1", 0)))
    A("s_barrier                            ; BS")
    stamp(A, 9)
    A(f"s_setprio {OPT.get('prio3', 1)}")
    for st in range(6):
        hdma(st)
    V.wait(("s", 0))
    A("s_barrier                            ; B0")
    stamp(A, 10)
    WSCH = [int(x) for x in OPT.get("wsch", "4.4.1.1.1.5.8.8").split(".")]
    wdload(min(WSCH[0], 56 - wdn[0]))
    V.wait(("s", 1), ("s", 2))
    nxt = 6
    for b in range(1, 8):
        A(f"s_barrier                            ; B{b}")
        while nxt < 14 and nxt <= 2 * b + 4:
            hdma(nxt); wdma(nxt); nxt += 1
        if b == 5:
            V.op("buffer_load_dwordx4 v[28:31], v21, s[60:63], s38 offen sc1", "f3")
        if b == 6:
            V.wait("f3")
            A(q4_ok(28))
            A("s_cbranch_scc1 L_f3_got")
            poll(A, "L_f3", "buffer_load_dwordx4 v[28:31], v21, s[60:63], s38 offen sc1", q4_ok(28))
            A(f"""
            s_lshl_b32 s26, s25, 9
            s_add_u32 s26, s26, {WS_CS:#x}
            s_mov_b32 m0, {G1_X}
            s_lshl_b32 s28, s24, 9
            """)
            V.op("buffer_load_dwordx4 v14, s[60:63], s26 offen sc1 lds", "x")
            A(f"""
            s_and_b32 s26, s23, 1
            s_lshl_b32 s26, s26, 8
            s_add_u32 s28, s28, s26
            s_add_u32 s28, s28, {WS_MEAN:#x}
            s_add_u32 m0, s26, {G1_X+1024}
            s_lshl_b32 s31, s24, 1
            """)
            V.op("buffer_load_dword v20, s[60:63], s28 offen sc1 lds", "x")
            A(f"""
            s_add_u32 s31, s31, s46
            s_lshl_b32 s31, s31, 8
            s_add_u32 s31, s31, {WS_R2:#x}
            s_mov_b32 m0, {P4_X+8192}
            s_mul_i32 s34, s24, {HTB}
            """)
            V.op("buffer_load_dword v20, s[60:63], s31 offen sc1 lds", "x")
            A(f"""
            s_lshl_b32 s28, s46, 7
            s_add_u32 s34, s34, s28
            s_lshl_b32 s28, s47, 14
            s_add_u32 s34, s34, s28
            s_add_u32 s34, s34, {WS_HT:#x}
            s_add_u32 m0, s27, {P4_X}
            s_nop 0
            """)
            V.op("buffer_load_dwordx4 v18, s[60:63], s34 offen sc1 lds", "x")
            V.op("buffer_load_dwordx4 v19, s[60:63], s34 offen offset:1024 sc1 lds", "x")
        wdload(min(WSCH[b], 56 - wdn[0]))
        if b < 6:
            V.wait(("s", 2 * b + 1), ("s", 2 * b + 2))
        if b == 6:
            V.wait("x")
    stamp(A, 11)
    A("s_setprio 0")
    A("s_barrier                            ; B8")
    assert wdn[0] == 56
    for st in range(9):
        V.wait(("w", st))
        wdwrite(st)
    V.drain("lgkmcnt(0)")
    A("s_barrier                            ; BX")
    stamp(A, 12)
    A("s_barrier                            ; BY")
    for st in range(9, 14):
        wdwrite(st)
    A("s_waitcnt lgkmcnt(0)")
    A("s_barrier                            ; BZ")
    stamp(A, 13)
    if "hapf" in OPT:
        A(f"""
        v_subrev_u32 v3, 256, v0
        s_lshl_b32 s28, s47, 8
        v_add_u32 v3, s28, v3                ; 0..1791
        v_and_b32 v5, 1, v3
        v_mul_u32_u24 v5, {HAT}, v5
        v_lshrrev_b32 v3, 1, v3
        v_lshl_add_u32 v3, v3, 7, v5
        s_lshl_b32 s28, s24, 1
        s_add_u32 s28, s28, s46
        s_mul_i32 s28, s28, {2*HAT}
        s_add_u32 s28, s28, {WS_HA:#x}
        buffer_load_dword v5, v3, s[60:63], s28 offen sc1
        """)
    A("s_barrier                            ; BR")
    A("s_barrier                            ; BE")
    stamp_end(A)
    A("s_endpgm")


def main(path):
    ref = open(f"cdna_kernels/{NAME}.s.ref").read().split("\n")
    head = [l for l in ref if l.startswith(";") and "@launch" not in l]
    A = Asm()
    for l in head:
        A.raw(l)
    A.raw(f"; @launch grid=({GRID},1,1) block=(512,1,1) lds={LDS}")
    A.raw('.amdgcn_target "amdgcn-amd-amdhsa--gfx950"')
    A.raw(".text")
    A.raw(f".globl {KNAME}")
    A.raw(".p2align 8")
    A.raw(f".type {KNAME},@function")
    A.label(KNAME)
    A(f"""
    s_cmp_ge_u32 s2, {GRID}
    s_cbranch_scc1 EXIT
    s_load_dwordx16 s[4:19], s[0:1], {KA['A_re']}
    s_load_dwordx2 s[44:45], s[0:1], {KA['x']}
    s_load_dwordx8 s[48:55], s[0:1], {KA['Wg']}
    s_load_dwordx4 s[64:67], s[0:1], {KA['dbg']}
    s_getpc_b64 s[58:59]
    """)
    A.label("PC0")
    A(f"""
    s_lshr_b32 s22, s2, 3
    s_mul_i32 s22, s22, {NPF*128}
    v_subrev_u32 v1, 448, v0
    v_cmp_gt_u32 vcc, {NPF}, v1
    v_lshl_add_u32 v1, v1, 7, s22
    v_min_u32 v1, TABLE_END-PC0-4, v1
    s_and_saveexec_b64 s[24:25], vcc
    s_cbranch_execz PF_skip
    global_load_dword v127, v1, s[58:59]
    """)
    A.label("PF_skip")
    A(f"""
    s_mov_b64 exec, s[24:25]
    v_lshrrev_b32 v1, 6, v0
    v_and_b32 v2, 63, v0                 ; lane
    s_nop 0
    v_readfirstlane_b32 s22, v1          ; wave
    """)
    stamp_begin(A)
    A(f"""
    s_waitcnt lgkmcnt(0)
    s_and_b32 s23, s22, 3
    s_mov_b32 s20, s66
    s_mov_b32 s21, s67
    s_mov_b32 s60, s66
    s_mov_b32 s61, s67
    s_mov_b32 s62, {WS_USED:#x}
    s_mov_b32 s63, 0x00020000
    """)
    gen_p0_loads(A)
    A(f"""
    s_cmp_lt_u32 s2, {NAUX}
    s_cbranch_scc1 AUX
    """)
    gen_phase1(A)
    A("""
    s_cmp_ge_u32 s22, 4
    s_cbranch_scc1 LOADER
    """)
    gen_consumer(A)
    gen_loader(A)
    gen_aux(A)
    A.label("EXIT")
    A("s_endpgm")
    A.label("CODE_END")
    kg_table(A)
    A.raw(f""".section .rodata,"a"
.p2align 6
.amdhsa_kernel {KNAME}
  .amdhsa_next_free_vgpr 256
  .amdhsa_next_free_sgpr 100
  .amdhsa_accum_offset 256
  .amdhsa_group_segment_fixed_size 0
  .amdhsa_kernarg_size 128
  .amdhsa_user_sgpr_count 2
  .amdhsa_user_sgpr_kernarg_segment_ptr 1
  .amdhsa_system_sgpr_workgroup_id_x 1
.end_amdhsa_kernel
""")
    open(path, "w").write(A.text())


if __name__ == "__main__":
    main(sys.argv[1] if len(sys.argv) > 1 else f"km.s")
```

```python
import sys, os

NAME = "sequential_preLN__ssm_conv_s4__glu_gated_reglu__prompt"
KNAME = NAME + "_kernel"
L, D, N, F = 2048, 448, 256, 1792

WS_EPOCH = 0x0000000
WS_ST1 = 0x0004000
WS_CS = 0x0010000
WS_R2 = 0x0020000
WS_MEAN = 0x0030000
NREP = 4
REPS = 64 * 128 + 128
WS_F1 = 0x0040000
WS_F2 = 0x0050000
WS_F3 = 0x0060000
WS_F4 = 0x0070000
WS_XU = 0x0800000
WS_HT = 0x0100000
WS_HA = 0x1000000
WS_DBG = 0x2000000
WS_SIZE = 0x10000000
WS_USED = 0x1800000
HTB = D * 256 + int(os.environ.get("HPAD", "256"))
XUS = 32768 + int(os.environ.get("XPAD", "256"))
HAT = 112 * 1024

KA = dict(x=0, A_re=8, A_im=16, B_re=24, B_im=32, C_re=40, C_im=48, log_dt=56, Dskip=64,
          B_x=72, Wg=80, Wu=88, Wd=96, out=104, dbg=112, ws=120)
STAMP = os.environ.get("STAMP", "0") == "1"
OPT = dict(kv.split("=") for kv in os.environ.get("OPT", "").split(",") if kv)
NSTAMP = 22


class Asm:
    def __init__(self):
        self.lines = []

    def __call__(self, s):
        for ln in s.strip("\n").split("\n"):
            ln = ln.strip()
            if ln:
                self.lines.append("    " + ln)

    def label(self, n):
        self.lines.append(n + ":")

    def raw(self, s):
        self.lines.append(s)

    def text(self):
        return "\n".join(self.lines) + "\n"


def v(a, n=1):
    return f"v{a}" if n == 1 else f"v[{a}:{a+n-1}]"


def s(a, n=1):
    return f"s{a}" if n == 1 else f"s[{a}:{a+n-1}]"


def R(a, n):
    return list(range(a, a + n))


def cmul(A, d, x, y, t):
    A(f"v_pk_mul_f32 {v(t,2)}, {v(x,2)}, {v(y,2)} op_sel:[0,0] op_sel_hi:[1,0]")
    A(f"v_pk_fma_f32 {v(d,2)}, {v(x,2)}, {v(y,2)}, {v(t,2)} op_sel:[1,1,0] op_sel_hi:[0,1,1] neg_lo:[1,0,0]")


def srd(A, sd, sbase, off, nbytes):
    if off:
        A(f"s_add_u32 {s(sd)}, {s(sbase)}, {off:#x}")
        A(f"s_addc_u32 {s(sd+1)}, {s(sbase+1)}, 0")
    else:
        A(f"s_mov_b32 {s(sd)}, {s(sbase)}")
        A(f"s_mov_b32 {s(sd+1)}, {s(sbase+1)}")
    A(f"s_mov_b32 {s(sd+2)}, {nbytes:#x}")
    A(f"s_mov_b32 {s(sd+3)}, 0x00020000")


_late = [False]
def stamp(A, i):
    if STAMP and not ('p0st' in OPT and _late[0] and 14 <= i <= 19):
        A("s_memtime s[68:69]")
        A("s_waitcnt lgkmcnt(0)")
        A(f"s_mov_b32 s{72+i}, s68")


def stamp_begin(A):
    if STAMP:
        for i in range(NSTAMP):
            A(f"s_mov_b32 s{72+i}, 0")
        A("s_memrealtime s[68:69]")
        A("s_waitcnt lgkmcnt(0)")
        A("s_mov_b32 s70, s68")
        stamp(A, 0)


def stamp_end(A):
    if not STAMP:
        return
    stamp(A, NSTAMP - 2)
    A("s_waitcnt vmcnt(0)")
    stamp(A, NSTAMP - 1)
    A(f"""
    s_memrealtime s[68:69]
    s_waitcnt lgkmcnt(0)
    s_add_u32 s96, s20, {WS_DBG:#x}
    s_addc_u32 s97, s21, 0
    s_mov_b32 s98, 0x100000
    s_mov_b32 s99, 0x00020000
    v_lshrrev_b32 v1, 6, v0
    s_lshl_b32 s71, s2, 3
    v_add_u32 v1, s71, v1
    v_lshlrev_b32 v1, 7, v1
    """)
    for i in range(NSTAMP):
        A(f"v_mov_b32 v2, s{72+i}")
        A(f"buffer_store_dword v2, v1, s[96:99], 0 offen offset:{4*i}")
    if "spin" in OPT:
        n = len(A.lines)
        A(f"""
        s_cmp_lg_u32 s2, 100
        s_cbranch_scc1 SPN{n}
        s_cmp_lg_u32 s22, 0
        s_cbranch_scc1 SPN{n}
        s_memrealtime s[94:95]
        s_waitcnt lgkmcnt(0)
        ; realtime ticks per ... use cycle stamps: wait 2*(stamp_i - stamp_0) cycles
        s_sub_u32 s69, s{72+int(OPT['spin'])}, s72
        s_lshl_b32 s69, s69, 1
        s_memtime s[94:95]
        s_waitcnt lgkmcnt(0)
        s_add_u32 s69, s69, s94
        """)
        A.label(f"SPL{n}")
        A(f"""
        s_sleep 4
        s_memtime s[94:95]
        s_waitcnt lgkmcnt(0)
        s_sub_u32 s95, s94, s69
        s_cmp_lt_i32 s95, 0
        s_cbranch_scc1 SPL{n}
        """)
        A.label(f"SPN{n}")
    if "rspin" in OPT:
        n = len(A.lines)
        A(f"""
        s_cmp_lg_u32 s2, {OPT['rspin']}
        s_cbranch_scc1 SPN{n}
        s_cmp_lg_u32 s22, 0
        s_cbranch_scc1 SPN{n}
        s_sub_u32 s69, s68, s70
        s_lshl_b32 s69, s69, 1
        s_add_u32 s69, s69, s68
        """)
        A.label(f"SPL{n}")
        A(f"""
        s_sleep 4
        s_memrealtime s[94:95]
        s_waitcnt lgkmcnt(0)
        s_sub_u32 s95, s94, s69
        s_cmp_lt_i32 s95, 0
        s_cbranch_scc1 SPL{n}
        """)
        A.label(f"SPN{n}")
    if "dbg" in OPT:
        n = len(A.lines)
        A(f"""
        s_cmp_lg_u32 s2, {OPT['dbg']}
        s_cbranch_scc1 DBG{n}
        s_cmp_lg_u32 s22, 0
        s_cbranch_scc1 DBG{n}
        s_mov_b32 s92, s64
        s_mov_b32 s93, s65
        s_mov_b32 s94, 256
        s_mov_b32 s95, 0x00020000
        s_sub_u32 s69, s68, s70
        v_mov_b32 v2, s69
        buffer_store_dword v2, off, s[92:95], 0
        """)
        for i in range(1, NSTAMP):
            A(f"s_sub_u32 s69, s{72+i}, s72")
            A(f"v_mov_b32 v2, s69")
            A(f"buffer_store_dword v2, off, s[92:95], 0 offset:{4*i}")
        A.label(f"DBG{n}")
    A("v_mov_b32 v2, s68")
    A("buffer_store_dword v2, v1, s[96:99], 0 offen offset:124")
    A("v_mov_b32 v2, s70")
    A("buffer_store_dword v2, v1, s[96:99], 0 offen offset:120")


class Sched:
    def __init__(self):
        self.q = []

    def run(self, items, emit):
        for it in items:
            if it[0] == 'ds':
                emit(it[1])
                self.q.append(set(it[2]))
            elif it[0] == 'use':
                need = -1
                for i, d in enumerate(self.q):
                    if d & set(it[2]):
                        need = i
                if need >= 0:
                    n = min(len(self.q) - 1 - need, 15)
                    emit(f"s_waitcnt lgkmcnt({n})")
                    self.q = self.q[len(self.q) - n:] if n else []
                emit(it[1])
            elif it[0] == 'drain':
                emit("s_waitcnt lgkmcnt(0)")
                self.q = []
            else:
                emit(it[1])


class VM:
    def __init__(self, A):
        self.A = A
        self.q = []

    def op(self, text, tag):
        self.A(text)
        self.q.append(tag)
        assert len(self.q) <= 63, "too many outstanding vmem ops"

    def wait(self, *tags, extra=""):
        need = -1
        for i, t in enumerate(self.q):
            if t in tags:
                need = i
        if need >= 0:
            n = len(self.q) - 1 - need
            self.A(f"s_waitcnt vmcnt({n}) {extra}")
            self.q = self.q[len(self.q) - n:] if n else []
        elif extra:
            self.A(f"s_waitcnt {extra}")

    def drain(self, extra=""):
        self.A(f"s_waitcnt vmcnt(0) {extra}")
        self.q = []


def poll(A, name, load, okcode, cnt=36, sleep=1):
    A(f"s_mov_b32 s{cnt}, 0x40000")
    A.label(f"{name}_poll")
    A(load)
    A("s_waitcnt vmcnt(0)")
    A(okcode)
    A(f"""
    s_cbranch_scc1 {name}_got
    s_sub_u32 s{cnt}, s{cnt}, 1
    s_cmp_eq_u32 s{cnt}, 0
    s_cbranch_scc1 {name}_got
    s_sleep {sleep}
    s_branch {name}_poll
    """)
    A.label(f"{name}_got")


def flag_set(A, region, idx_sgpr, nline, nrep, after):
    A(f"""
    s_lshr_b32 s28, {idx_sgpr}, 2
    s_lshl_b32 s28, s28, 7
    s_and_b32 s32, {idx_sgpr}, 3
    s_lshl_b32 s32, s32, 2
    s_add_u32 s28, s28, s32
    s_add_u32 s28, s28, {region:#x}
    v_mul_u32_u24 v1, {REPS}, v2
    v_mov_b32 v3, s42
    s_mov_b64 exec, {(1<<nrep)-1}
    buffer_store_dword v3, v1, s[60:63], s28 offen sc1
    s_mov_b64 exec, -1
    """)


def q4_ok(r):
    return (f"v_xor_b32 v{r}, s42, v{r}\nv_xor_b32 v{r+1}, s42, v{r+1}\nv_xor_b32 v{r+2}, s42, v{r+2}\nv_xor_b32 v{r+3}, s42, v{r+3}\n"
            f"v_or3_b32 v{r}, v{r}, v{r+1}, v{r+2}\nv_or_b32 v{r}, v{r}, v{r+3}\nv_cmp_eq_u32 vcc, 0, v{r}\ns_nop 3\ns_cmp_eq_u64 vcc, exec")


def reduce64(A, regs, tmp, mid=None):
    for ctl in ("quad_perm:[1,0,3,2]", "quad_perm:[2,3,0,1]", "row_half_mirror", "row_mirror"):
        A("s_nop 0")
        for r in regs:
            A(f"v_add_f32_dpp v{r}, v{r}, v{r} {ctl} row_mask:0xf bank_mask:0xf")
    if mid: A(mid)
    for sw in ("v_permlane16_swap_b32", "v_permlane32_swap_b32"):
        for i, r in enumerate(regs):
            A(f"v_mov_b32 v{tmp+i}, v{r}")
        A("s_nop 1")
        for i, r in enumerate(regs):
            A(f"{sw} v{r}, v{tmp+i}")
        for i, r in enumerate(regs):
            A(f"v_add_f32 v{r}, v{r}, v{tmp+i}")


def reduce8(A, r):
    A(f"""
    s_nop 1
    v_add_f32_dpp v{r}, v{r}, v{r} quad_perm:[1,0,3,2] row_mask:0xf bank_mask:0xf
    s_nop 1
    v_add_f32_dpp v{r}, v{r}, v{r} quad_perm:[2,3,0,1] row_mask:0xf bank_mask:0xf
    s_nop 1
    v_add_f32_dpp v{r}, v{r}, v{r} row_half_mirror row_mask:0xf bank_mask:0xf
    """)


def var_to_s(A, r):
    A(f"""
    v_max_f32 v{r}, 0, v{r}
    v_cvt_pk_bf16_f32 v{r}, v{r}, v{r}
    v_lshlrev_b32 v{r}, 16, v{r}
    v_add_f32 v{r}, 0x3727c5ac, v{r}
    v_cvt_pk_bf16_f32 v{r}, v{r}, v{r}
    v_lshlrev_b32 v{r}, 16, v{r}
    v_sqrt_f32 v{r}, v{r}
    s_nop 0
    v_cvt_pk_bf16_f32 v{r}, v{r}, v{r}
    v_lshlrev_b32 v{r}, 16, v{r}
    """)


NAUX, NMAIN = 32, 224
GRID = 256
KG_ROW = 1056
KG_CH = 57 * KG_ROW
KG_TB = {0: 0, 1: 16, 3: 32, 2: 48}
KL_S = 8704
KPOS = lambda l: (l & 7) * 272 + (l >> 3)
KALPHA = [[0, 4, 128, 132], [512, 516, 1024, 1536], [256, 384, 2048, 2049]]
CV_BASE = 98304 + 64
CV_KS = 4160
CV_US = 4576
CV_KC = 4 * CV_KS
CV_UX = CV_BASE + 2 * CV_KC + 64
CV_XOFF = 2 * CV_US
CV_UD = CV_XOFF + 4096
KL_BASE = CV_UX
G1_STAGE = 24576
G1_SLOTS = 6
G1_X = G1_SLOTS * G1_STAGE
P4_SLOT = [0, 3, 4, 5, 6, 7, 8, 1, 2, 0, 3, 4, 5, 6]
P4_X = 149504
WD_EARLY = int(OPT.get("wde", 32))
LDS = 158208
assert CV_UX + 2 * CV_UD <= LDS and P4_X + 8192 + 256 <= LDS


def bf16_round_int(l):
    if l <= 256:
        return l
    sh = l.bit_length() - 8
    q, r = l >> sh, l & ((1 << sh) - 1)
    half = 1 << (sh - 1)
    if r > half or (r == half and (q & 1)):
        q += 1
    return q << sh


def kg_table(A):
    A.raw(".p2align 6")
    A.raw(".type KG_TABLE,@object")
    A.label("KG_TABLE")
    rows = []
    for tid in range(512):
        w, lane = tid >> 6, tid & 63
        ch, o = tid >> 8, tid & 255
        j, g = lane & 15, lane >> 4
        T = min(w & 3, 2)
        vals = [KL_BASE + ch * KL_S + 4 * KPOS(bf16_round_int(2047 - 8 * o - e)) for e in range(8)]
        vals += [KL_BASE + ch * KL_S + 4 * (KPOS(KALPHA[T][g] + [r, 128 * r, 2 * r][T]) + j) for r in range(4)]
        rows.append(vals)
    for part in range(3):
        for tid in range(512):
            A.raw(".long " + ", ".join(str(x) for x in rows[tid][4 * part:4 * part + 4]))
    A.raw(".size KG_TABLE, 24576")
    A.label("TABLE_END")


P0_LDS = 122880
NPF = 13


def gen_p0_loads(A):
    A(f"""
    s_lshl_b32 s26, s2, 3
    s_add_u32 s26, s26, s22              ; row
    s_mul_i32 s26, s26, 896
    v_lshl_add_u32 v1, v2, 4, s26
    v_mov_b32 v96, 0
    v_mov_b32 v97, 0
    v_mov_b32 v98, 0
    v_mov_b32 v99, 0
    s_mov_b32 s32, -1
    s_mov_b32 s33, 0x00ffffff
    s_mov_b64 exec, s[32:33]
    global_load_dwordx4 v[96:99], v1, s[44:45]
    s_mov_b64 exec, 1
    buffer_load_dword v126, off, s[60:63], 0 sc1
    s_mov_b64 exec, -1
    """)


def gen_p0(A, uid, younger=0):
    X = 96
    A(f"""
    s_mov_b32 s26, 0x3f803f80
    v_mov_b32 v104, 0
    v_mov_b32 v105, 0
    s_mul_i32 s27, s22, 928
    s_add_u32 s27, s27, {P0_LDS}
    v_lshl_add_u32 v116, v2, 4, s27
    v_bfe_u32 v117, v2, 2, 2             ; r
    v_mul_u32_u24 v117, 928, v117
    v_and_b32 v118, 3, v2
    v_lshl_add_u32 v117, v118, 3, v117
    v_lshrrev_b32 v118, 4, v2            ; g
    v_lshl_add_u32 v117, v118, 5, v117
    s_min_u32 s34, s22, 6
    s_lshl_b32 s27, s34, 7
    s_add_u32 s27, s27, {P0_LDS}
    v_add_u32 v117, s27, v117
    v_lshrrev_b32 v118, 3, v2
    v_mul_u32_u24 v118, {XUS}, v118
    v_and_b32 v119, 7, v2
    v_lshl_add_u32 v118, v119, 4, v118
    s_mul_i32 s34, s34, {8*XUS}
    s_lshl_b32 s35, s2, 7
    s_add_u32 s34, s34, s35
    s_add_u32 s34, s34, {WS_XU:#x}
    s_lshl_b32 s35, s2, 6
    s_lshl_b32 s27, s22, 2
    s_add_u32 s35, s35, s27
    s_add_u32 s35, s35, {WS_ST1:#x}
    v_lshlrev_b32 v119, 5, v2
    s_waitcnt vmcnt({younger+1})
    s_mov_b64 exec, s[32:33]
    ds_write_b128 v116, {v(X,4)}
    s_mov_b64 exec, -1
    """)
    for i in range(4):
        A(f"v_dot2c_f32_bf16 v104, s26, v{X+i}")
        A(f"v_dot2c_f32_bf16 v105, v{X+i}, v{X+i}")
    A(f"""
    s_waitcnt lgkmcnt(0)
    s_barrier                            ; Bp
    ds_read_b64_tr_b16 v[100:101], v117
    ds_read_b64_tr_b16 v[102:103], v117 offset:{4*928}
    """)
    reduce64(A, [104, 105], 120, mid=f"s_waitcnt lgkmcnt(0)\nbuffer_store_dwordx4 v[100:103], v118, s[60:63], s34 offen sc1")
    A(f"""
    v_mul_f32 v104, 0x3b124925, v104     ; mean
    v_mul_f32 v105, 0x3b124925, v105
    v_fma_f32 v105, -v104, v104, v105
    v_cvt_pk_bf16_f32 v120, v104, v104
    v_lshlrev_b32 v120, 16, v120         ; m_bf
    """)
    var_to_s(A, 105)
    A(f"""
    v_rcp_f32 v121, v105
    v_cmp_eq_u32 vcc, 0, v2
    s_mov_b64 exec, 3
    s_nop 0
    v_cndmask_b32 v120, v121, v120, vcc
    buffer_store_dword v120, v119, s[60:63], s35 offen sc1
    s_mov_b64 exec, -1
    """)


def gen_f1_publish(A, name, also_f2=False, younger=0):
    A(f"""
    s_waitcnt vmcnt({younger})
    v_readfirstlane_b32 s41, v126        ; epoch
    s_barrier                            ; Bq
    s_mul_i32 s42, s41, 0x9e3779b1
    s_add_u32 s42, s42, 0x7f4a7c15
    s_cmp_lg_u32 s22, 0
    s_cbranch_scc1 {name}
    """)
    flag_set(A, WS_F1, "s2", 64, NREP, None)
    if also_f2:
        flag_set(A, WS_F2, "s2", 64, NREP, None)
    A.label(name)


def gen_aux(A):
    _late[0] = False
    A.label("AUX")
    X = 8
    gen_p0(A, 0)
    stamp(A, 1)
    gen_f1_publish(A, "AUX_f1", True)
    stamp(A, 2)
    S = 64
    A(f"""
    v_min_u32 v7, 447, v0
    v_mul_u32_u24 v1, 0x124a, v7
    v_lshrrev_b32 v1, 16, v1             ; rg
    v_mul_u32_u24 v2, 14, v1
    v_sub_u32 v2, v7, v2                 ; chunk
    v_mul_u32_u24 v3, 3584, v1
    v_lshl_add_u32 v3, v2, 4, v3
    s_and_b32 s26, s2, 15
    s_mul_i32 s12, s26, 224
    s_cmp_ge_u32 s2, 16
    s_cselect_b32 s4, s50, s48
    s_cselect_b32 s5, s51, s49
    """)
    srd(A, 8, 4, 0, D * F * 2)
    for j in range(14):
        A(f"buffer_load_dwordx4 {v(X+4*j,4)}, v3, s[8:11], s12 offen")
        if j < 13:
            A(f"s_add_u32 s12, s12, {32*3584:#x}")
    for i in range(8):
        A(f"v_mov_b32 v{S+i}, 0")
    for j in range(14):
        A(f"s_waitcnt vmcnt({13-j})")
        for q in range(4):
            A(f"""
            v_lshlrev_b32 v72, 16, v{X+4*j+q}
            v_and_b32 v73, 0xffff0000, v{X+4*j+q}
            v_pk_add_f32 {v(S+2*q,2)}, {v(S+2*q,2)}, v[72:73]
            """)
    A(f"""
    v_mul_u32_u24 v4, 464, v1
    v_lshl_add_u32 v4, v2, 5, v4
    ds_write_b128 v4, {v(S,4)}
    ds_write_b128 v4, {v(S+4,4)} offset:16
    v_and_b32 v5, 127, v0
    v_min_u32 v5, 111, v5                ; column
    v_lshrrev_b32 v6, 7, v0              ; part 0..3
    v_mul_u32_u24 v7, {8*464}, v6
    v_lshl_add_u32 v7, v5, 2, v7
    s_waitcnt lgkmcnt(0)
    s_barrier
    """)
    for i in range(8):
        A(f"ds_read_b32 v{X+i}, v7 offset:{464*i}")
    A("s_waitcnt lgkmcnt(0)")
    for st in (4, 2, 1):
        for i in range(st):
            A(f"v_add_f32 v{X+i}, v{X+i}, v{X+i+st}")
    A(f"""
    v_lshlrev_b32 v7, 9, v6
    v_lshl_add_u32 v7, v5, 2, v7
    ds_write_b32 v7, v{X} offset:16384
    v_lshlrev_b32 v7, 2, v5
    s_waitcnt lgkmcnt(0)
    s_barrier
    ds_read_b32 v{X}, v7 offset:16384
    ds_read_b32 v{X+1}, v7 offset:{16384+512}
    ds_read_b32 v{X+2}, v7 offset:{16384+1024}
    ds_read_b32 v{X+3}, v7 offset:{16384+1536}
    s_mul_i32 s12, s2, 448
    s_add_u32 s12, s12, {WS_CS:#x}
    s_waitcnt lgkmcnt(0)
    v_add_f32 v{X}, v{X}, v{X+1}
    v_add_f32 v{X+2}, v{X+2}, v{X+3}
    v_add_f32 v{X}, v{X}, v{X+2}
    v_cmp_gt_u32 vcc, 112, v0
    s_and_saveexec_b64 s[32:33], vcc
    s_cbranch_execz AUX_c
    buffer_store_dword v{X}, v7, s[60:63], s12 offen sc1
    """)
    A.label("AUX_c")
    A("s_mov_b64 exec, s[32:33]")
    stamp(A, 3)
    A(f"""
    v_and_b32 v2, 63, v0
    v_lshlrev_b32 v5, 7, v2
    s_and_b32 s28, s2, {NREP-1}
    s_mul_i32 s28, s28, {REPS}
    s_add_u32 s28, s28, {WS_F2:#x}
    s_cmp_lg_u32 s22, 0
    s_cbranch_scc1 AUX_w
    """)
    poll(A, "AUX_p2", "buffer_load_dwordx4 v[8:11], v5, s[60:63], s28 offen sc1", q4_ok(8), sleep=8)
    A(f"""
    s_cmp_lg_u32 s2, 0
    s_cbranch_scc1 AUX_w
    s_add_u32 s26, s41, 1
    v_mov_b32 v8, s26
    s_mov_b64 exec, 1
    buffer_store_dword v8, off, s[60:63], 0 sc1
    s_mov_b64 exec, -1
    """)
    A.label("AUX_w")
    A("""
    s_waitcnt vmcnt(0)
    s_barrier
    """)
    stamp(A, 4)
    S1, S2 = 40, 48
    A(f"""
    v_lshrrev_b32 v1, 3, v0              ; dgrp 0..63
    v_and_b32 v2, 7, v0
    v_lshlrev_b32 v3, 8, v1
    v_lshl_add_u32 v3, v2, 4, v3
    s_lshr_b32 s24, s2, 1
    s_mul_i32 s24, s24, {HTB}
    s_and_b32 s25, s2, 1
    s_lshl_b32 s25, s25, 7
    s_add_u32 s24, s24, s25
    s_add_u32 s24, s24, {WS_HT:#x}
    """)
    for i in range(7):
        A(f"buffer_load_dwordx4 {v(X+4*i,4)}, v3, s[60:63], s24 offen sc1")
        if i < 6:
            A(f"s_add_u32 s24, s24, 16384")
    for i in range(16):
        A(f"v_mov_b32 v{S1+i}, 0")
    for i in range(7):
        A(f"s_waitcnt vmcnt({6-i})")
        for q in range(4):
            A(f"""
            v_lshlrev_b32 v56, 16, v{X+4*i+q}
            v_and_b32 v57, 0xffff0000, v{X+4*i+q}
            v_pk_add_f32 {v(S1+2*q,2)}, {v(S1+2*q,2)}, v[56:57]
            v_pk_fma_f32 {v(S2+2*q,2)}, v[56:57], v[56:57], {v(S2+2*q,2)}
            """)
    A(f"""
    v_mul_u32_u24 v4, 528, v1
    v_lshl_add_u32 v4, v2, 5, v4
    ds_write_b128 v4, {v(S1,4)}
    ds_write_b128 v4, {v(S1+4,4)} offset:16
    ds_write_b128 v4, {v(S2,4)} offset:256
    ds_write_b128 v4, {v(S2+4,4)} offset:272
    v_and_b32 v5, 127, v0
    v_lshrrev_b32 v6, 7, v0
    v_mul_u32_u24 v7, {16*528}, v6
    v_lshl_add_u32 v7, v5, 2, v7
    s_waitcnt lgkmcnt(0)
    s_barrier
    """)
    for i in range(16):
        A(f"ds_read_b32 v{X+i}, v7 offset:{528*i}")
    A("s_waitcnt lgkmcnt(0)")
    for st in (8, 4, 2, 1):
        for i in range(st):
            A(f"v_add_f32 v{X+i}, v{X+i}, v{X+i+st}")
    A(f"""
    v_lshlrev_b32 v7, 2, v0
    ds_write_b32 v7, v{X} offset:{64*528}
    s_waitcnt lgkmcnt(0)
    s_barrier
    s_cmp_lg_u32 s22, 0
    s_cbranch_scc1 AUX_done
    """)
    for i in range(4):
        A(f"ds_read_b32 v{X+i}, v7 offset:{64*528 + 512*i}")
        A(f"ds_read_b32 v{X+4+i}, v7 offset:{64*528 + 512*i + 256}")
    A(f"""
    s_lshl_b32 s26, s2, 8
    s_add_u32 s27, s26, {WS_MEAN:#x}
    s_add_u32 s26, s26, {WS_R2:#x}
    s_waitcnt lgkmcnt(0)
    v_add_f32 v{X}, v{X}, v{X+1}
    v_add_f32 v{X+2}, v{X+2}, v{X+3}
    v_add_f32 v{X+4}, v{X+4}, v{X+5}
    v_add_f32 v{X+6}, v{X+6}, v{X+7}
    v_add_f32 v40, v{X}, v{X+2}
    v_add_f32 v41, v{X+4}, v{X+6}
    v_mul_f32 v40, 0x3b124925, v40       ; mean
    v_cvt_pk_bf16_f32 v42, v40, v40
    v_lshlrev_b32 v42, 16, v42
    buffer_store_dword v42, v7, s[60:63], s27 offen sc1
    v_mul_f32 v41, 0x3b124925, v41
    v_fma_f32 v41, -v40, v40, v41
    """)
    var_to_s(A, 41)
    A(f"""
    v_mul_f32 v41, v41, v41
    v_rcp_f32 v41, v41
    v_and_b32 v2, 63, v0
    buffer_store_dword v41, v7, s[60:63], s26 offen sc1
    s_waitcnt vmcnt(0)
    """)
    flag_set(A, WS_F3, "s2", 8, NREP, None)
    A.label("AUX_done")
    stamp_end(A)
    A("s_endpgm")


def gen_phase1(A):
    XU = 112
    A(f"""
    s_sub_u32 s3, s2, {NAUX}
    s_and_b32 s26, s3, 7
    s_mul_i32 s26, s26, 28
    s_lshr_b32 s27, s3, 3
    s_add_u32 s43, s26, s27              ; dpair
    s_lshl_b32 s27, s43, 10
    v_lshl_add_u32 v3, v0, 1, s27
    s_lshr_b32 s28, s22, 2               ; channel
    s_lshl_b32 s26, s43, 1
    s_add_u32 s26, s26, s28
    s_lshl_b32 s26, s26, 1
    v_mov_b32 v31, s26                   ; 2*d
    global_load_ushort v10, v31, s[16:17]
    global_load_ushort v4, v3, s[4:5]
    global_load_ushort v5, v3, s[6:7]
    global_load_ushort v6, v3, s[8:9]
    global_load_ushort v7, v3, s[10:11]
    global_load_ushort v8, v3, s[12:13]
    global_load_ushort v9, v3, s[14:15]
    global_load_ushort v29, v31, s[18:19]
    s_mul_i32 s31, s28, {KG_CH}
    s_lshl_b32 s26, s23, 8
    s_add_u32 m0, s31, s26
    v_mov_b32 v30, 0x00003f80
    ds_write_addtid_b32 v30
    ; tile ids for later phases
    s_and_b32 s24, s3, 3
    s_lshl_b32 s24, s24, 2
    s_bfe_u32 s25, s3, 0x20003
    s_add_u32 s24, s24, s25              ; tblk
    s_bfe_u32 s46, s3, 0x10002
    s_mul_i32 s25, s46, 7
    s_lshr_b32 s47, s3, 5                ; dblk
    s_add_u32 s25, s25, s47              ; fblk
    """)
    gen_p0(A, 1, 8)
    A(f"""
    s_add_u32 s58, s58, KG_TABLE-PC0
    s_addc_u32 s59, s59, 0
    v_lshlrev_b32 v18, 4, v0
    v_add_u32 v19, 8192, v18
    v_add_u32 v17, 16384, v18
    global_load_dwordx4 v[12:15], v17, s[58:59]
    global_load_dwordx4 v[20:23], v18, s[58:59]
    global_load_dwordx4 v[24:27], v19, s[58:59]
    """)
    stamp(A, 1)
    ACC = 32
    AR, AI = 44, 45
    BP, CP = 46, 48
    A2, B2 = 50, 51
    T0, T1 = 52, 54
    P = {r: 56 + 2 * (r - 1) for r in range(1, 8)}
    Z8, Q1 = 70, 72
    QA, QB = 74, 76
    BA, BB = 78, 80
    X0 = 82
    E0, E1, E2 = 86, 88, 90
    W0 = 92
    FR = 44
    A(f"""
    s_waitcnt vmcnt(10)
    v_lshlrev_b32 v28, 16, v10
    v_mul_f32 v28, 0x3fb8aa3b, v28
    v_exp_f32 v28, v28
    v_lshlrev_b32 v{AR}, 16, v4
    v_cvt_pk_bf16_f32 v28, v28, v28
    v_lshlrev_b32 v{AI}, 16, v5
    v_lshlrev_b32 v28, 16, v28           ; dt
    """)
    if "p0st" in OPT: stamp(A, 18)
    A(f"""
    v_mul_f32 v{A2}, v28, v{AR}
    v_mul_f32 v{B2}, v28, v{AI}
    v_mul_f32 v{A2}, 0x3fb8aa3b, v{A2}
    v_mul_f32 v{B2}, 0.15915494, v{B2}
    v_mul_f32 v{E1}, 0x41000000, v{A2}
    v_mul_f32 v{E1+1}, 0x41000000, v{B2}
    v_mul_f32 v{E2}, 0x43000000, v{A2}
    v_mul_f32 v{E2+1}, 0x43000000, v{B2}
    v_exp_f32 v{E0}, v{A2}
    v_fract_f32 v{E0+1}, v{B2}
    v_exp_f32 v{E1}, v{E1}
    v_fract_f32 v{E1+1}, v{E1+1}
    v_exp_f32 v{E2}, v{E2}
    v_fract_f32 v{E2+1}, v{E2+1}
    v_cos_f32 v{P[1]}, v{E0+1}
    v_sin_f32 v{P[1]+1}, v{E0+1}
    v_cos_f32 v{Z8}, v{E1+1}
    v_sin_f32 v{Z8+1}, v{E1+1}
    v_cos_f32 v{Q1}, v{E2+1}
    v_sin_f32 v{Q1+1}, v{E2+1}
    v_pk_mul_f32 {v(P[1],2)}, {v(P[1],2)}, {v(E0,2)} op_sel_hi:[1,0]
    v_pk_mul_f32 {v(Z8,2)}, {v(Z8,2)}, {v(E1,2)} op_sel_hi:[1,0]
    v_pk_mul_f32 {v(Q1,2)}, {v(Q1,2)}, {v(E2,2)} op_sel_hi:[1,0]
    """)
    rowof = {}
    for T in range(3):
        for g in range(4):
            for r in range(4):
                e = KALPHA[T][g] + [r, 128 * r, 2 * r][T]
                if e <= 2048:
                    rowof[e] = KG_TB[T] + 4 * g + r
    wsel = [0]

    def emit(row, reg, neg=""):
        w = W0 + wsel[0]; wsel[0] ^= 1
        A(f"v_cvt_pk_bf16_f32 v{w}, v{reg}, {neg}v{reg+1}")
        A(f"ds_write_addtid_b32 v{w} offset:{row*KG_ROW}")

    emitA = lambda e, reg: emit(rowof[e], reg)
    mulA = lambda d, x, y: cmul(A, d, x, y, T0)
    emitA(1, P[1])
    mulA(P[2], P[1], P[1]); emitA(2, P[2])
    mulA(P[3], P[2], P[1]); emitA(3, P[3])
    mulA(P[4], P[2], P[2]); emitA(4, P[4])
    mulA(P[5], P[4], P[1]); emitA(5, P[5])
    mulA(P[6], P[4], P[2]); emitA(6, P[6])
    mulA(P[7], P[4], P[3]); emitA(7, P[7])
    cur = Q1
    for i in range(1, 17):
        if i > 1:
            nxt = QA if cur != QA else QB
            mulA(nxt, cur, Q1)
            cur = nxt
        if i == int(OPT.get("f1at", 2)):
            gen_f1_publish(A, "P1_f1", younger=3)
            A(f"""
            s_cmp_lt_u32 s22, 4
            s_cbranch_scc1 P1_nowd
            s_cmp_eq_u32 s22, 7
            s_cbranch_scc1 P1_nowd
            v_min_u32 v16, 55, v2
            s_mul_i32 s28, s3, {56*128}
            v_lshl_add_u32 v16, v16, 7, s28
            s_cmp_eq_u32 s22, 4
            s_cselect_b32 s34, s48, s50
            s_cselect_b32 s35, s49, s51
            s_cmp_eq_u32 s22, 6
            s_cselect_b32 s34, s52, s34
            s_cselect_b32 s35, s53, s35
            """)
            if "nopf0" not in OPT:
                A("global_load_dword v128, v16, s[34:35]")
            A.label("P1_nowd")
            if "p0st" in OPT: stamp(A, 14)
        emitA(128 * i, cur)
        for r in {1: range(1, 8), 2: (2, 4, 6), 3: (2, 4, 6), 4: (4,), 5: (4,), 6: (4,), 7: (4,)}.get(i, ()):
            mulA(X0, cur, P[r])
            emitA(128 * i + r, X0)
    A(f"""
    s_lshr_b32 s28, s22, 2
    v_lshlrev_b32 v{BP}, 16, v6
    v_lshlrev_b32 v{BP+1}, 16, v7
    v_lshlrev_b32 v{CP}, 16, v8
    v_lshlrev_b32 v{CP+1}, 16, v9
    v_lshlrev_b32 v29, 16, v29
    v_and_b32 v4, 255, v0
    v_cmp_eq_u32 vcc, 0, v4
    """)
    cmul(A, BA, CP, BP, T0)
    A(f"""
    v_cndmask_b32 v29, 0, v29, vcc
    v_pk_mul_f32 {v(BA,2)}, {v(BA,2)}, v[28:29] op_sel_hi:[1,0]
    """)
    curb = BA
    for j in range(16):
        if j > 0:
            nxt = BB if curb == BA else BA
            cmul(A, nxt, curb, Z8, T1)
            curb = nxt
        emit(KG_TB[3] + j, curb, "-")
    EX = KL_BASE + 2 * KL_S - 8192 * 0
    EX = 122880
    A(f"""
    s_and_b32 s40, s2, {NREP-1}
    s_mul_i32 s40, s40, {REPS}
    v_and_b32 v5, 15, v2
    v_mul_u32_u24 v5, {KG_ROW}, v5
    v_lshrrev_b32 v6, 4, v2
    v_lshl_add_u32 v5, v6, 4, v5
    s_mul_i32 s26, s28, {KG_CH}
    s_lshl_b32 s27, s23, 8
    s_add_u32 s26, s26, s27
    v_add_u32 v5, s26, v5
    s_mul_i32 s29, s28, {CV_KC}
    s_add_u32 s29, s29, {CV_BASE}
    v_lshrrev_b32 v6, 4, v2
    v_mul_u32_u24 v6, {KG_ROW}, v6
    v_and_b32 v16, 15, v2
    v_lshl_add_u32 v6, v16, 4, v6
    v_add_u32 v16, s26, v6
    s_mul_i32 s26, s28, {KG_CH}
    s_mul_i32 s27, s23, {4*KG_ROW}
    s_add_u32 s26, s26, s27
    v_add_u32 v6, s26, v6
    s_waitcnt lgkmcnt(0)
    """)
    stamp(A, 3)
    items = []
    for ks in range(4):
        for q, T in enumerate((3, 0, 1, 2)):
            b = FR + 16 * ks + 4 * q
            items.append(('ds', f"ds_read_b128 {v(b,4)}, v5 offset:{KG_TB[T]*KG_ROW + ks*64}", R(b, 4)))
    for ks in range(4):
        for T in range(3):
            a, b = FR + 16 * ks + 4 + 4 * T, FR + 16 * ks
            c = "0" if ks == 0 else v(ACC + 4 * T, 4)
            items.append(('use', f"v_mfma_f32_16x16x32_bf16 {v(ACC+4*T,4)}, {v(a,4)}, {v(b,4)}, {c}", R(a, 4) + R(b, 4)))
    Sched().run(items, A)
    A(f"""
    s_nop 5
    v_add_f32 v{ACC}, v{ACC}, v29
    ds_write_b128 v16, {v(ACC,4)}
    ds_write_b128 v16, {v(ACC+4,4)} offset:{4*KG_ROW}
    ds_write_b128 v16, {v(ACC+8,4)} offset:{8*KG_ROW}
    s_waitcnt lgkmcnt(0)
    s_barrier                            ; Ba
    """)
    if "p0st" in OPT: stamp(A, 15)
    A(f"""
    s_cmp_eq_u32 s23, 3
    s_cbranch_scc1 P1_nomm
    ds_read_b128 {v(FR,4)}, v6
    ds_read_b128 {v(FR+4,4)}, v6 offset:256
    ds_read_b128 {v(FR+8,4)}, v6 offset:512
    ds_read_b128 {v(FR+12,4)}, v6 offset:768
    s_waitcnt vmcnt(2) lgkmcnt(2)
    v_pk_add_f32 {v(FR,2)}, {v(FR,2)}, {v(FR+4,2)}
    v_pk_add_f32 {v(FR+2,2)}, {v(FR+2,2)}, {v(FR+6,2)}
    s_waitcnt lgkmcnt(0)
    v_pk_add_f32 {v(FR+8,2)}, {v(FR+8,2)}, {v(FR+12,2)}
    v_pk_add_f32 {v(FR+10,2)}, {v(FR+10,2)}, {v(FR+14,2)}
    v_pk_add_f32 {v(FR,2)}, {v(FR,2)}, {v(FR+8,2)}
    v_pk_add_f32 {v(FR+2,2)}, {v(FR+2,2)}, {v(FR+10,2)}
    ds_write_b32 v12, v{FR}
    ds_write_b32 v13, v{FR+1}
    ds_write_b32 v14, v{FR+2}
    ds_write_b32 v15, v{FR+3}
    """)
    A.label("P1_nomm")
    A(f"""
    s_lshr_b32 s30, s43, 2
    s_mul_i32 s30, s30, {XUS}
    s_and_b32 s26, s43, 3
    s_lshl_b32 s26, s26, 5
    s_add_u32 s30, s30, s26
    s_add_u32 s30, s30, {WS_XU:#x}
    v_lshl_add_u32 v7, v4, 4, s29
    s_mul_i32 s26, s23, {CV_KS-4}
    s_add_u32 s26, s26, s29
    s_add_u32 s26, s26, 4096
    v_lshl_add_u32 v16, v2, 2, s26
    s_add_u32 s27, s23, 12
    v_mov_b32 v8, 0
    v_mov_b32 v9, 0
    v_mov_b32 v10, 0
    v_mov_b32 v11, 0
    s_sub_u32 s26, s22, 4
    s_cmp_lt_u32 s26, 3
    s_cbranch_scc1 P1_tw1
    s_waitcnt vmcnt(0)
    """)
    A.label("P1_tw1")
    A(f"""
    s_waitcnt vmcnt(1) lgkmcnt(0)
    s_barrier                            ; Bb
    """)
    if "p0st" in OPT: stamp(A, 16)
    items = [('ds', f"ds_read_b32 v{FR+e}, v{20+e}", [FR + e]) for e in range(8)]
    items += [('op', "v_cmp_gt_u32 vcc, s27, v2"), ('op', "s_and_saveexec_b64 s[32:33], vcc"),
              ('ds', "ds_write_b32 v16, v8", []), ('op', "s_mov_b64 exec, s[32:33]")]
    for q in range(4):
        items.append(('use', f"v_cvt_pk_bf16_f32 v{32+q}, v{FR+2*q}, v{FR+2*q+1}", R(FR + 2 * q, 2)))
    Sched().run(items, A)
    XU = 112
    U0 = 448
    A(f"""
    v_mov_b32 v36, v33
    v_mov_b32 v37, v34
    s_barrier
    """)
    if "p0st" in OPT: stamp(A, 17)
    A(f"""
    ds_write_b128 v7, v[32:35]
    ds_write_b64 v7, v[32:33] offset:{2*CV_KS - 8}
    ds_write_b64 v7, v[34:35] offset:{2*CV_KS}
    ds_write_b32 v7, v32 offset:{CV_KS - 4}
    ds_write_b64 v7, v[36:37] offset:{CV_KS}
    ds_write_b32 v7, v35 offset:{CV_KS + 8}
    ds_write_b32 v7, v32 offset:{3*CV_KS - 12}
    ds_write_b64 v7, v[36:37] offset:{3*CV_KS - 8}
    ds_write_b32 v7, v35 offset:{3*CV_KS}
    ; u pads: wave -> (ch = w>>2... only c<2): 28 chunks + 2 bytes
    s_mul_i32 s26, s28, {CV_UD}
    s_mul_i32 s27, s23, {CV_US}
    s_add_u32 s26, s26, s27
    s_add_u32 s26, s26, {CV_UX}
    v_lshl_add_u32 v16, v2, 4, s26
    v_mov_b32 v17, s26
    s_cmp_lt_u32 s23, 2
    s_cselect_b32 s32, 0x0fffffff, 0
    s_mov_b32 s33, 0
    s_mov_b64 exec, s[32:33]
    s_cbranch_execz P1_nz
    ds_write_b128 v16, v[8:11]
    s_cmp_eq_u32 s23, 1
    s_cbranch_scc0 P1_nz
    ds_write_b16 v17, v8 offset:448
    """)
    A.label("P1_nz")
    A(f"""
    s_mov_b64 exec, -1
    v_and_b32 v17, 1, v0
    v_mul_u32_u24 v7, {CV_UD}, v17
    v_lshrrev_b32 v16, 1, v0             ; tb8
    v_lshl_add_u32 v7, v16, 4, v7
    v_add_u32 v7, {CV_UX}, v7
    v_lshlrev_b32 v18, 6, v16
    v_lshlrev_b32 v16, 7, v16
    v_lshl_add_u32 v16, v17, 4, v16
    s_mov_b32 s26, {WS_ST1:#x}
    v_and_b32 v5, 7, v2
    v_lshlrev_b32 v5, 7, v5
    s_lshl_b32 s31, s22, 10
    s_add_u32 s31, s31, s40
    s_add_u32 s31, s31, {WS_F1:#x}
    """)
    stamp(A, 2)
    poll(A, "P1_f", "buffer_load_dwordx4 v[8:11], v5, s[60:63], s31 offen sc1", q4_ok(8), sleep=2)
    stamp(A, 4)
    A(f"""
    buffer_load_dwordx4 {v(XU,4)}, v16, s[60:63], s30 offen sc1
    buffer_load_dwordx4 v[132:135], v18, s[60:63], s26 offen sc1
    buffer_load_dwordx4 v[136:139], v18, s[60:63], s26 offen offset:16 sc1
    buffer_load_dwordx4 v[140:143], v18, s[60:63], s26 offen offset:32 sc1
    buffer_load_dwordx4 v[144:147], v18, s[60:63], s26 offen offset:48 sc1
    """)


def gen_xu_store(A):
    XU, U0 = 112, 448
    u = XU + 4
    A(f"""
    s_waitcnt vmcnt(4)
    ds_write_b128 v7, {v(XU,4)} offset:{CV_XOFF}
    """)
    for i in range(4):
        A(f"""
        v_lshlrev_b32 v{148+2*i}, 16, v{XU+i}
        v_and_b32 v{149+2*i}, 0xffff0000, v{XU+i}
        """)
    A("s_waitcnt vmcnt(2)")
    for i in range(4):
        A(f"v_pk_add_f32 {v(148+2*i,2)}, {v(148+2*i,2)}, {v(132+2*i,2)} neg_lo:[0,1] neg_hi:[0,1]")
    for i in range(4):
        A(f"v_cvt_pk_bf16_f32 v{u+i}, v{148+2*i}, v{149+2*i}")
    for i in range(4):
        A(f"""
        v_lshlrev_b32 v{148+2*i}, 16, v{u+i}
        v_and_b32 v{149+2*i}, 0xffff0000, v{u+i}
        """)
    A("s_waitcnt vmcnt(0)")
    for i in range(4):
        A(f"v_pk_mul_f32 {v(148+2*i,2)}, {v(148+2*i,2)}, {v(140+2*i,2)}")
    for i in range(4):
        A(f"v_cvt_pk_bf16_f32 v{u+i}, v{148+2*i}, v{149+2*i}")
    A(f"""
    v_cvt_pk_bf16_f32 v44, v149, v150
    v_cvt_pk_bf16_f32 v46, v151, v152
    v_cvt_pk_bf16_f32 v47, v153, v154
    ds_write_b128 v7, {v(u,4)} offset:{U0}
    ds_write_b16 v7, v{u} offset:{U0 + CV_US + 2}
    ds_write_b32 v7, v44 offset:{U0 + CV_US + 4}
    ds_write_b64 v7, v[46:47] offset:{U0 + CV_US + 8}
    ds_write_b16_d16_hi v7, v{u+3} offset:{U0 + CV_US + 16}
    """)
    stamp(A, 5)


def gen_conv(A):
    XR, ACC, FP = 12, 20, 40
    A(f"""
    v_and_b32 v4, 15, v2                 ; i / n
    v_lshrrev_b32 v5, 4, v2              ; g
    s_lshr_b32 s28, s22, 1               ; dsel
    s_and_b32 s30, s22, 1                ; role
    s_mul_i32 s27, s28, {CV_KC}
    s_add_u32 s27, s27, {CV_BASE}
    v_and_b32 v36, 3, v4
    v_sub_u32 v36, 3, v36
    v_mul_u32_u24 v36, {CV_KS}, v36
    v_lshrrev_b32 v37, 2, v4
    v_sub_u32 v37, v5, v37
    v_lshl_add_u32 v36, v37, 4, v36
    v_add_u32 v36, {4080 - 512*7}, v36
    v_add_u32 v36, s27, v36              ; F addr
    s_mul_i32 s27, s28, {CV_UD}
    s_add_u32 s27, s27, {CV_UX}
    v_and_b32 v37, 1, v4
    v_sub_u32 v37, 1, v37
    v_mul_u32_u24 v37, {CV_US}, v37
    v_lshrrev_b32 v38, 1, v4
    v_lshl_add_u32 v37, v38, 6, v37
    v_lshl_add_u32 v37, v5, 4, v37
    v_add_u32 v37, 448, v37
    v_add_u32 v37, s27, v37              ; G addr
    v_lshlrev_b32 v6, 7, v5
    v_lshl_add_u32 v6, v4, 2, v6
    s_add_u32 s26, s27, {CV_XOFF}
    v_add_u32 v6, s26, v6
    v_lshl_add_u32 v39, v2, 4, s26
    v_mul_u32_u24 v38, {HTB}, v5
    v_lshl_add_u32 v38, v4, 4, v38
    s_lshl_b32 s33, s43, 1
    s_add_u32 s33, s33, s28
    s_lshl_b32 s33, s33, 8
    s_add_u32 s33, s33, {WS_HT:#x}         ; HT + d*256
    """)
    gen_xu_store(A)
    A("""
    s_waitcnt lgkmcnt(0)
    s_barrier                            ; Bc
    """)
    stamp(A, 6)
    A("""
    s_cmp_eq_u32 s30, 0
    s_cbranch_scc0 CV_roleB
    """)
    for role, tiles in ((0, (7, 6, 1, 0)), (1, (5, 4, 3, 2))):
        if role == 1:
            A.label("CV_roleB")
        nf = max(tiles) + 1

        def reads(base):
            out = []
            for a in range(nf):
                out.append(('ds', f"ds_read_b128 {v(base+4*a,4)}, v36 offset:{512*(7-a)}", R(base + 4 * a, 4)))
                out.append(('ds', f"ds_read_b128 {v(base+32+4*a,4)}, v37 offset:{512*a}", R(base + 32 + 4 * a, 4)))
            return out

        def mfmas(base):
            pairs = [(a, c - a, q) for q, c in enumerate(tiles) for a in range(c + 1)]
            pairs.sort(key=lambda p: (max(p[0], p[1]), p[2]))
            return [('use', f"v_mfma_f32_16x16x32_bf16 {v(ACC+4*q,4)}, {v(base+32+4*b,4)}, {v(base+4*a,4)}, {v(ACC+4*q,4)}",
                     R(base + 32 + 4 * b, 4) + R(base + 4 * a, 4)) for a, b, q in pairs]

        def step(cur, nxt):
            it = [('op', "v_subrev_u32 v36, 64, v36"), ('op', "v_subrev_u32 v37, 64, v37")]
            rs = reads(nxt)
            i = 0
            for m in mfmas(cur):
                it.append(m)
                if i < len(rs):
                    it.append(rs[i]); i += 1
            return it + rs[i:]

        for q, c in enumerate(tiles):
            A(f"ds_read2_b32 {v(XR+2*q,2)}, v6 offset0:{0} offset1:16" if c == 0 else
              f"ds_read_b32 v{XR+2*q}, v6 offset:{512*c}\nds_read_b32 v{XR+2*q+1}, v6 offset:{512*c+64}")
        A("s_waitcnt lgkmcnt(0)")
        S = Sched()
        S.run(reads(FP), A)
        for q in range(4):
            A(f"""
            v_lshlrev_b32 v{ACC+4*q}, 16, v{XR+2*q}
            v_and_b32 v{ACC+4*q+1}, 0xffff0000, v{XR+2*q}
            v_lshlrev_b32 v{ACC+4*q+2}, 16, v{XR+2*q+1}
            v_and_b32 v{ACC+4*q+3}, 0xffff0000, v{XR+2*q+1}
            """)
        A("s_mov_b32 s36, 4")
        A.label(f"CV_loop{role}")
        S.run(step(FP, FP + 64) + step(FP + 64, FP), A)
        A(f"""
        s_sub_u32 s36, s36, 1
        s_cmp_lg_u32 s36, 0
        s_cbranch_scc1 CV_loop{role}
        s_nop 6
        """)
        for q, c in enumerate(tiles):
            A(f"""
            v_cvt_pk_bf16_f32 v{XR+2*q}, v{ACC+4*q}, v{ACC+4*q+1}
            v_cvt_pk_bf16_f32 v{XR+2*q+1}, v{ACC+4*q+2}, v{ACC+4*q+3}
            ds_write_b32 v6, v{XR+2*q} offset:{512*c}
            ds_write_b32 v6, v{XR+2*q+1} offset:{512*c+64}
            """)
        A(f"""
        s_add_u32 s34, s33, {2*tiles[1]*HTB:#x}
        s_add_u32 s35, s33, {2*tiles[3]*HTB:#x}
        s_waitcnt lgkmcnt(0)
        ds_read_b128 v[20:23], v39 offset:{512*tiles[1]}
        ds_read_b128 v[24:27], v39 offset:{512*tiles[3]}
        """)
        if role == 0:
            A("s_branch CV_out")
    A.label("CV_out")
    A(f"""
    s_waitcnt lgkmcnt(1)
    buffer_store_dwordx4 v[20:23], v38, s[60:63], s34 offen sc1
    s_waitcnt lgkmcnt(0)
    buffer_store_dwordx4 v[24:27], v38, s[60:63], s35 offen sc1
    """)
    stamp(A, 7)


def gen_consumer(A):
    _late[0] = True
    gen_conv(A)
    ACC = 24
    FP = 152
    acc = lambda m, tt: ACC + 16 * (m * 4 + tt)
    A(f"""
    v_lshrrev_b32 v4, 5, v2              ; h
    v_bfe_u32 v3, v2, 2, 2               ; r
    v_lshl_add_u32 v5, v4, 2, v3
    v_lshlrev_b32 v5, 8, v5
    v_bfe_u32 v6, v2, 4, 1
    v_lshl_add_u32 v5, v6, 5, v5
    v_and_b32 v6, 3, v2
    v_lshl_add_u32 v5, v6, 3, v5
    v_xor_b32 v6, s23, v3
    v_lshl_add_u32 v8, v6, 6, v5
    s_mov_b32 s33, 0
    """)
    A("""
    s_xor_b32 s37, s46, 1
    s_lshl_b32 s37, s37, 1
    v_xor_b32 v7, s37, v3
    """)
    for tt in range(4):
        A(f"""
        v_xor_b32 v6, {tt}, v7
        v_lshl_add_u32 v{9+tt}, v6, 6, v5
        """)
    A(f"""
    v_lshlrev_b32 v18, 7, v2
    v_mov_b32 v19, v3
    s_waitcnt vmcnt(0)
    s_barrier                            ; BH
    s_cmp_lg_u32 s22, 0
    s_cbranch_scc1 C_nf2
    """)
    flag_set(A, WS_F2, "s2", 64, NREP, None)
    A("s_nop 1")
    A("v_mov_b32 v3, v19")
    A.label("C_nf2")
    stamp(A, 8)
    for i in range(128):
        A(f"v_mov_b32 v{ACC+i}, 0")
    A(f"""
    s_add_u32 s28, s40, {WS_F2:#x}
    s_cmp_lg_u32 s22, 0
    s_cbranch_scc1 C_f2_got
    """)
    poll(A, "C_f2", f"buffer_load_dwordx4 {v(FP,4)}, v18, s[60:63], s28 offen sc1", q4_ok(FP))
    A("s_barrier                            ; BS")
    stamp(A, 9)

    def fa(base, kk, m): return base + 24 * kk + 4 * m
    def fb(base, kk, tt): return base + 24 * kk + 8 + 4 * tt

    def reads(base):
        out = []
        for kk in range(2):
            for kind, i in [('b', 0), ('a', 0), ('a', 1), ('b', 1), ('b', 2), ('b', 3)]:
                for j in range(2):
                    if kind == 'a':
                        d = fa(base, kk, i) + 2 * j
                        out.append(('ds', f"ds_read_b64_tr_b16 {v(d,2)}, v13 offset:{8192*(i+1) + 4096*kk + 2048*j}", R(d, 2)))
                    else:
                        d = fb(base, kk, i) + 2 * j
                        out.append(('ds', f"ds_read_b64_tr_b16 {v(d,2)}, v{14+i} offset:{4096*kk + 2048*j}", R(d, 2)))
        return out

    def addr_setup():
        return [('op', t) for t in f"""v_add_u32 v13, s33, v8
            v_add_u32 v14, s33, v9
            v_add_u32 v15, s33, v10
            v_add_u32 v16, s33, v11
            v_add_u32 v17, s33, v12
            s_add_u32 s33, s33, {G1_STAGE}
            s_cmp_eq_u32 s33, {G1_SLOTS*G1_STAGE}
            s_cselect_b32 s33, 0, s33""".split("\n")]

    def step(cur, nxt, bar):
        ms = []
        for kk in range(2):
            for tt in range(4):
                for m in range(2):
                    a, b = fa(cur, kk, m), fb(cur, kk, tt)
                    ms.append(('use', f"v_mfma_f32_32x32x16_bf16 {v(acc(m,tt),16)}, {v(a,4)}, {v(b,4)}, {v(acc(m,tt),16)}", R(a, 4) + R(b, 4)))
        rs = reads(nxt)
        ad = addr_setup()
        it = [ms[0]] + ad[:4] + [ms[1]] + ad[4:]
        if bar:
            it += [ms[2], ('drain',), ('op', "s_barrier")]
            rest = ms[3:]
        else:
            rest = ms[2:]
        i = 0
        for m in rest:
            it.append(m)
            for _ in range(2):
                if i < len(rs):
                    it.append(rs[i]); i += 1
        return it + rs[i:]

    S = Sched()
    S.run(addr_setup(), A)
    A("s_barrier                            ; B0")
    stamp(A, 10)
    S.run(reads(FP), A)
    A("s_mov_b32 s36, 7")
    A.label("C_loop3")
    S.run(step(FP, FP + 48, True) + step(FP + 48, FP, False), A)
    A(f"""
    s_sub_u32 s36, s36, 1
    s_cmp_lg_u32 s36, 0
    s_cbranch_scc1 C_loop3
    """)
    stamp(A, 11)
    CS, M, O = FP, FP + 32, FP + 40
    A(f"""
    s_lshl_b32 s26, s23, 7
    v_lshl_add_u32 v6, v4, 4, s26
    v_add_u32 v6, {G1_X}, v6
    v_and_b32 v7, 31, v2
    v_lshlrev_b32 v7, 2, v7
    v_add_u32 v7, {G1_X+1024}, v7
    s_lshl_b32 s26, s37, 7
    v_add_u32 v7, s26, v7
    v_xor_b32 v1, 256, v7
    s_waitcnt lgkmcnt(0)
    """)
    for tt in range(4):
        A(f"ds_read_b32 v{M+2*tt}, v{7 if tt < 2 else 1} offset:{128*(tt&1)}")
    for q in range(4):
        for m in range(2):
            A(f"ds_read_b128 {v(CS+16*m+4*q,4)}, v6 offset:{512*m + 32*q}")
    A(f"""
    s_lshl_b32 s26, s24, 2
    s_add_u32 s26, s26, s37
    s_mul_i32 s26, s26, {HAT}
    s_mul_i32 s38, s37, {2*HAT}
    s_sub_u32 s38, {HAT}, s38
    s_lshl_b32 s29, s25, 3
    s_lshl_b32 s30, s23, 1
    s_add_u32 s29, s29, s30
    s_lshl_b32 s29, s29, 10
    s_add_u32 s26, s26, s29
    s_add_u32 s26, s26, {WS_HA:#x}
    v_lshlrev_b32 v6, 4, v2
    s_waitcnt lgkmcnt(0)
    s_barrier
    """)
    stamp(A, 14)
    for tt in range(4):
        for q in range(4):
            g_, u_ = acc(0, tt) + 4 * q, acc(1, tt) + 4 * q
            o = O + 8 * (tt & 1) + 2 * q
            for h in range(2):
                A(f"v_pk_fma_f32 {v(g_+2*h,2)}, {v(CS+4*q+2*h,2)}, {v(M+2*tt,2)}, {v(g_+2*h,2)} op_sel_hi:[1,0,1] neg_lo:[0,1,0] neg_hi:[0,1,0]")
                A(f"v_pk_fma_f32 {v(u_+2*h,2)}, {v(CS+16+4*q+2*h,2)}, {v(M+2*tt,2)}, {v(u_+2*h,2)} op_sel_hi:[1,0,1] neg_lo:[0,1,0] neg_hi:[0,1,0]")
            for i in range(4):
                A(f"v_max_f32 v{g_+i}, 0, v{g_+i}")
            for h in range(2):
                A(f"v_pk_mul_f32 {v(g_+2*h,2)}, {v(g_+2*h,2)}, {v(u_+2*h,2)}")
            for h in range(2):
                A(f"v_cvt_pk_bf16_f32 v{o+h}, v{g_+2*h}, v{g_+2*h+1}")
            if q & 1:
                A(f"buffer_store_dwordx4 {v(o-2,4)}, v6, s[60:63], s26 offen offset:{1024*(q>>1)} sc1")
        if tt < 3:
            A(f"s_add_u32 s26, s26, {HAT if tt != 1 else 's38'}")
    stamp(A, 15)
    ACC4, AF, BF, NB = 16, 80, 160, 6
    A(f"""
    v_lshl_add_u32 v5, v4, 2, v3
    v_lshlrev_b32 v5, 7, v5
    v_bfe_u32 v7, v2, 4, 1
    v_lshl_add_u32 v5, v7, 5, v5
    v_and_b32 v7, 3, v2
    v_lshl_add_u32 v5, v7, 3, v5
    v_lshrrev_b32 v3, 1, v3
    s_lshl_b32 s28, s23, 12
    v_lshl_add_u32 v8, v3, 6, v5
    v_add_u32 v8, s28, v8
    v_xor_b32 v9, 64, v8
    v_add_u32 v10, 0x10000, v8
    v_add_u32 v11, 0x10000, v9
    v_add_u32 v12, 0x20000, v8
    v_add_u32 v13, 0x20000, v9
    s_and_b32 s26, s23, 1
    s_lshr_b32 s27, s23, 1
    v_xor_b32 v7, s26, v3
    v_lshl_add_u32 v14, v7, 6, v5
    s_lshl_b32 s28, s27, 12
    s_add_u32 s28, s28, {P4_X}
    v_add_u32 v14, s28, v14
    s_lshl_b32 s28, s24, 1
    s_add_u32 s28, s28, s46
    s_lshl_b32 s28, s28, 1
    s_mul_i32 s30, s28, {HAT}
    s_lshl_b32 s28, s23, 11
    s_add_u32 s30, s30, s28
    s_add_u32 s38, s30, {WS_HA:#x}
    s_add_u32 s39, s25, 1
    s_cmp_eq_u32 s39, 14
    s_cselect_b32 s39, 0, s39
    s_lshl_b32 s39, s39, 13
    s_add_u32 s30, s38, s39
    s_add_u32 s31, s30, {HAT}
    s_lshl_b32 s34, s24, 9
    s_add_u32 s34, s34, {WS_F4:#x}
    s_and_b32 s28, s25, 3
    s_lshl_b32 s28, s28, 7
    s_lshr_b32 s32, s25, 2
    s_lshl_b32 s32, s32, 2
    s_add_u32 s28, s28, s32
    s_add_u32 s28, s28, s34
    v_mov_b32 v7, s42
    v_mul_u32_u24 v1, {2*128+12}, v2
    s_cmp_lt_u32 s25, 2
    s_cselect_b32 s32, 3, 1
    s_mov_b32 s33, 0
    v_and_b32 v15, 3, v2
    v_lshlrev_b32 v15, 7, v15
    """)
    for i in range(64):
        A(f"v_mov_b32 v{ACC4+i}, 0")
    A(f"""
    s_waitcnt vmcnt(0)
    s_barrier                            ; BX
    s_cmp_lg_u32 s23, 0
    s_cbranch_scc1 C_nf4
    s_mov_b64 exec, s[32:33]
    buffer_store_dword v7, v1, s[60:63], s28 offen sc1
    s_mov_b64 exec, -1
    """)
    A.label("C_nf4")
    stamp(A, 12)

    def ardsl(st, base):
        sl = st % 9
        out = []
        for kk in range(2):
            for dt in range(2):
                for j in range(2):
                    off = sl * 16384 + 2048 * kk + 1024 * j
                    reg = 8 + dt + 2 * (off >> 16)
                    d = base + 8 * kk + 4 * dt + 2 * j
                    out.append(('ds', f"ds_read_b64_tr_b16 {v(d,2)}, v{reg} offset:{off & 0xffff}", R(d, 2)))
        return out

    def bbuf(st): return BF + 16 * ((st + 2) % NB)

    def mf(st, kk, dt, tt):
        a = AF + 16 * (st % 5) + 8 * kk + 4 * dt
        b = bbuf(st) + (8 * tt + 4 * kk if st == 0 else 8 * kk + 4 * tt)
        c = ACC4 + 16 * (2 * dt + tt)
        return ('use', f"v_mfma_f32_32x32x16_bf16 {v(c,16)}, {v(a,4)}, {v(b,4)}, {v(c,16)}", R(a, 4))

    assert bbuf(0) == O
    S = Sched()
    for st in range(5):
        S.run(ardsl(st, AF + 16 * st), A)
    S.run([mf(0, kk, dt, tt) for kk in range(2) for dt in range(2) for tt in range(2)], A)
    A(f"""
    s_waitcnt lgkmcnt(0)
    s_barrier                            ; BY
    """)
    S = Sched()
    S.run(ardsl(5, AF), A)
    A(f"""
    s_cmp_lg_u32 s23, 0
    s_cbranch_scc1 C_f4_got
    """)
    poll(A, "C_f4", f"buffer_load_dwordx4 {v(BF,4)}, v15, s[60:63], s34 offen sc1", q4_ok(BF))

    def bl(i):
        st, kk, tt = i // 4, (i // 2) % 2, i % 2
        out = [('op', f"buffer_load_dwordx4 {v(bbuf(st)+8*kk+4*tt,4)}, v6, s[60:63], s{30+tt} offen offset:{1024*kk} sc1")]
        if i % 4 == 3:
            out += [('op', x) for x in f"""s_add_u32 s39, s39, 8192
            s_cmp_eq_u32 s39, {14*8192}
            s_cselect_b32 s39, 0, s39
            s_add_u32 s30, s38, s39
            s_add_u32 s31, s30, {HAT}""".split("\n")]
        return out

    A("s_barrier                            ; BZ")
    if STAMP: S.q = []
    stamp(A, 13)
    issued = 4 + 4 * int(OPT.get("b0", 3))
    for i in range(4, issued):
        S.run(bl(i), A)
    stamp(A, 16)
    for st in range(1, 14):
        if st == 2:
            stamp(A, 17); S.q = []
        items = []
        for kk in range(2):
            items.append(('op', f"s_waitcnt vmcnt({issued - (4*st + 2*kk + 2)})"))
            for dt in range(2):
                for tt in range(2):
                    items.append(mf(st, kk, dt, tt))
                    if issued < 56 and issued < 4 * (st + NB):
                        items += bl(issued); issued += 1
        S.run(items, A)
        if st + 5 < 14:
            S.run(ardsl(st + 5, AF + 16 * (st % 5)), A)
        if st == 9:
            A("s_waitcnt lgkmcnt(0)")
            S.q = []
            A("s_barrier                            ; BR")
    stamp(A, 18)
    A("s_nop 7")
    for w in range(4):
        if w < 3:
            A(f"s_cmp_lg_u32 s23, {w}")
            A(f"s_cbranch_scc1 C_x{w+1}")
        for i in range(1, 4):
            dst = (w + i) & 3
            for q in range(4):
                A(f"ds_write_b128 v6, {v(ACC4+16*dst+4*q,4)} offset:{dst*12288 + (i-1)*4096 + q*1024}")
        if w:
            for r in range(16):
                A(f"v_mov_b32 v{ACC4+r}, v{ACC4+16*w+r}")
        if w < 3:
            A("s_branch C_xd")
            A.label(f"C_x{w+1}")
    A.label("C_xd")
    srd(A, 8, 54, 0, L * D * 2)
    FR = 160
    A(f"""
    s_mul_i32 s28, s23, 12288
    v_add_u32 v5, s28, v6
    v_and_b32 v6, 31, v2
    s_lshl_b32 s28, s26, 7
    v_lshl_add_u32 v7, v6, 2, s28
    v_add_u32 v7, {P4_X+8192}, v7
    ds_read_b32 v196, v7
    """)
    for q in range(4):
        A(f"ds_read_b64_tr_b16 {v(FR+2*q,2)}, v14 offset:{1024*q}")
    A(f"""
    v_mul_u32_u24 v6, 896, v6
    v_lshl_add_u32 v6, v4, 4, v6
    s_lshl_b32 s28, s24, 1
    s_add_u32 s28, s28, s46
    s_lshl_b32 s28, s28, 1
    s_add_u32 s28, s28, s26
    s_mul_i32 s29, s28, {32*896}
    s_lshl_b32 s30, s47, 7
    s_add_u32 s29, s29, s30
    s_lshl_b32 s30, s27, 6
    s_add_u32 s29, s29, s30
    s_waitcnt lgkmcnt(0)
    s_barrier                            ; BE
    """)
    stamp(A, 19)
    PR = 80
    items = []
    for q in range(4):
        for i in range(3):
            d = PR + 16 * i + 4 * q
            items.append(('ds', f"ds_read_b128 {v(d,4)}, v5 offset:{i*4096 + q*1024}", R(d, 4)))
    O = FR + 8
    for q in range(4):
        for h in range(2):
            a = ACC4 + 4 * q + 2 * h
            p0, p1, p2 = (PR + 16 * i + 4 * q + 2 * h for i in range(3))
            items.append(('use', f"v_pk_add_f32 {v(p0,2)}, {v(p0,2)}, {v(p1,2)}", R(p0, 2) + R(p1, 2)))
            items.append(('use', f"v_pk_add_f32 {v(a,2)}, {v(a,2)}, {v(p2,2)}", R(p2, 2)))
            for ln in f"""v_lshlrev_b32 v198, 16, v{FR+2*q+h}
            v_pk_add_f32 {v(a,2)}, {v(a,2)}, {v(p0,2)}
            v_and_b32 v199, 0xffff0000, v{FR+2*q+h}
            v_pk_mul_f32 {v(a,2)}, {v(a,2)}, v[196:197] op_sel_hi:[1,0]
            v_cvt_pk_bf16_f32 v200, v{a}, v{a+1}
            v_lshlrev_b32 v{a}, 16, v200
            v_and_b32 v{a+1}, 0xffff0000, v200
            v_pk_add_f32 {v(a,2)}, {v(a,2)}, v[198:199]
            v_cvt_pk_bf16_f32 v{O+2*q+h}, v{a}, v{a+1}""".split("\n"):
                items.append(('op', ln))
        if q & 1:
            o = O + 2 * (q - 1)
            for ln in f"""s_nop 1
            v_permlane32_swap_b32 v{o}, v{o+2}
            v_permlane32_swap_b32 v{o+1}, v{o+3}
            buffer_store_dwordx4 {v(o,4)}, v6, s[8:11], s29 offen offset:{32*(q>>1)}""".split("\n"):
                items.append(('op', ln))
    Sched().run(items, A)
    stamp_end(A)
    A("s_endpgm")


def gen_loader(A):
    A.label("LOADER")
    WD = 32
    gen_xu_store(A)
    A("""
    s_waitcnt lgkmcnt(0)
    s_barrier                            ; Bc
    """)
    stamp(A, 6)
    A(f"""
    v_lshrrev_b32 v4, 5, v2              ; h
    v_lshrrev_b32 v9, 4, v2
    v_lshlrev_b32 v10, 2, v9
    v_and_b32 v11, 15, v2
    v_xor_b32 v10, v10, v11
    s_lshl_b32 s26, s23, 3
    v_add_u32 v9, s26, v9
    v_lshlrev_b32 v11, 8, v9
    v_lshl_add_u32 v11, v10, 4, v11
    v_mul_u32_u24 v12, 3584, v9
    v_lshl_add_u32 v12, v10, 4, v12
    s_lshl_b32 s26, s25, 8
    v_add_u32 v12, s26, v12
    v_add_u32 v13, {4*3584-1024}, v12
    s_lshl_b32 s27, s23, 11              ; q*2048
    s_mov_b32 s29, 0                     ; W soffset
    s_mul_i32 s30, s24, {HTB}
    s_add_u32 s30, s30, {WS_HT:#x}         ; h soffset
    v_and_b32 v14, 31, v2
    v_lshlrev_b32 v14, 4, v14
    v_mul_u32_u24 v15, {F*4}, v4
    v_add_u32 v14, v14, v15
    v_lshrrev_b32 v3, 3, v2
    v_and_b32 v5, 7, v2
    s_lshl_b32 s28, s23, 5
    v_add_u32 v6, s28, v3
    v_mul_u32_u24 v16, 896, v6
    v_lshl_add_u32 v16, v5, 4, v16
    s_lshl_b32 s28, s47, 7
    v_add_u32 v16, s28, v16
    v_bfe_u32 v7, v2, 4, 1
    v_lshlrev_b32 v7, 2, v7
    v_xor_b32 v7, v7, v5
    v_lshlrev_b32 v24, 7, v6
    v_lshl_add_u32 v24, v7, 4, v24
    v_add_u32 v25, 0x10000, v24
    v_add_u32 v26, 0x20000, v24
    s_lshl_b32 s28, s23, 4
    v_add_u32 v6, s28, v3
    v_lshlrev_b32 v18, 8, v6
    v_lshl_add_u32 v18, v7, 4, v18
    v_add_u32 v19, 1024, v18
    v_lshlrev_b32 v20, 2, v2
    v_and_b32 v21, 7, v2
    v_lshlrev_b32 v21, 7, v21
    s_add_u32 s38, s40, {WS_F3:#x}
    s_mul_i32 s35, s25, {128*896:#x}
    """)
    srd(A, 4, 48, 0, D * F * 2)
    srd(A, 8, 50, 0, D * F * 2)
    srd(A, 12, 52, 0, D * F * 2)
    V = VM(A)
    V.q = []

    def wdma(st):
        base = (st % G1_SLOTS) * G1_STAGE
        A(f"s_add_u32 m0, s27, {base+8192}")
        A("s_nop 0")
        V.op("buffer_load_dwordx4 v12, s[4:7], s29 offen lds", ("s", st))
        V.op("buffer_load_dwordx4 v13, s[4:7], s29 offen offset:1024 lds", ("s", st))
        A(f"s_add_u32 m0, s27, {base+16384}")
        A("s_nop 0")
        V.op("buffer_load_dwordx4 v12, s[8:11], s29 offen lds", ("s", st))
        V.op("buffer_load_dwordx4 v13, s[8:11], s29 offen offset:1024 lds", ("s", st))
        A(f"s_add_u32 s29, s29, {32*3584:#x}")

    def hdma(st):
        base = (st % G1_SLOTS) * G1_STAGE
        A(f"s_add_u32 m0, s27, {base}")
        A("s_nop 0")
        V.op("buffer_load_dwordx4 v11, s[60:63], s30 offen sc1 lds", ("s", st))
        V.op("buffer_load_dwordx4 v11, s[60:63], s30 offen offset:1024 sc1 lds", ("s", st))
        A("s_add_u32 s30, s30, 8192")

    wdn = [0]

    def wdload(n):
        for _ in range(n):
            i = wdn[0]
            V.op(f"buffer_load_dwordx4 {v(WD+4*i,4)}, v16, s[12:15], s35 offen", ("w", i // 4))
            if i % 4 != 3:
                A("s_add_u32 s35, s35, 7168")
            else:
                A(f"""
                s_add_u32 s35, s35, {128*896 - 3*7168:#x}
                s_cmp_eq_u32 s35, {14*128*896:#x}
                s_cselect_b32 s35, 0, s35
                """)
            wdn[0] += 1

    def wdwrite(st):
        off = (st % 9) * 16384
        for i in range(4):
            A(f"ds_write_b128 v{24 + (off >> 16)}, {v(WD+16*st+4*i,4)} offset:{(off & 0xffff) + 1024*i}")

    for st in range(4):
        wdma(st)
    wdload(int(OPT.get("n0", 24)))
    stamp(A, 7)
    A("s_barrier                            ; BH")
    stamp(A, 8)
    V.wait(("s", 3), ("w", 1))
    wdma(4); wdma(5)
    wdload(int(OPT.get("n1", 0)))
    A("s_barrier                            ; BS")
    stamp(A, 9)
    A(f"s_setprio {OPT.get('prio3', 1)}")
    for st in range(6):
        hdma(st)
    V.wait(("s", 0))
    A("s_barrier                            ; B0")
    stamp(A, 10)
    WSCH = [int(x) for x in OPT.get("wsch", "4.4.1.1.1.5.8.8").split(".")]
    wdload(min(WSCH[0], 56 - wdn[0]))
    V.wait(("s", 1), ("s", 2))
    nxt = 6
    for b in range(1, 8):
        A(f"s_barrier                            ; B{b}")
        while nxt < 14 and nxt <= 2 * b + 4:
            hdma(nxt); wdma(nxt); nxt += 1
        if b == 5:
            V.op("buffer_load_dwordx4 v[28:31], v21, s[60:63], s38 offen sc1", "f3")
        if b == 6:
            V.wait("f3")
            A(q4_ok(28))
            A("s_cbranch_scc1 L_f3_got")
            poll(A, "L_f3", "buffer_load_dwordx4 v[28:31], v21, s[60:63], s38 offen sc1", q4_ok(28))
            A(f"""
            s_lshl_b32 s26, s25, 9
            s_add_u32 s26, s26, {WS_CS:#x}
            s_mov_b32 m0, {G1_X}
            s_lshl_b32 s28, s24, 9
            """)
            V.op("buffer_load_dwordx4 v14, s[60:63], s26 offen sc1 lds", "x")
            A(f"""
            s_and_b32 s26, s23, 1
            s_lshl_b32 s26, s26, 8
            s_add_u32 s28, s28, s26
            s_add_u32 s28, s28, {WS_MEAN:#x}
            s_add_u32 m0, s26, {G1_X+1024}
            s_lshl_b32 s31, s24, 1
            """)
            V.op("buffer_load_dword v20, s[60:63], s28 offen sc1 lds", "x")
            A(f"""
            s_add_u32 s31, s31, s46
            s_lshl_b32 s31, s31, 8
            s_add_u32 s31, s31, {WS_R2:#x}
            s_mov_b32 m0, {P4_X+8192}
            s_mul_i32 s34, s24, {HTB}
            """)
            V.op("buffer_load_dword v20, s[60:63], s31 offen sc1 lds", "x")
            A(f"""
            s_lshl_b32 s28, s46, 7
            s_add_u32 s34, s34, s28
            s_lshl_b32 s28, s47, 14
            s_add_u32 s34, s34, s28
            s_add_u32 s34, s34, {WS_HT:#x}
            s_add_u32 m0, s27, {P4_X}
            s_nop 0
            """)
            V.op("buffer_load_dwordx4 v18, s[60:63], s34 offen sc1 lds", "x")
            V.op("buffer_load_dwordx4 v19, s[60:63], s34 offen offset:1024 sc1 lds", "x")
        wdload(min(WSCH[b], 56 - wdn[0]))
        if b < 6:
            V.wait(("s", 2 * b + 1), ("s", 2 * b + 2))
        if b == 6:
            V.wait("x")
    stamp(A, 11)
    A("s_setprio 0")
    A("s_barrier                            ; B8")
    assert wdn[0] == 56
    for st in range(9):
        V.wait(("w", st))
        wdwrite(st)
    V.drain("lgkmcnt(0)")
    A("s_barrier                            ; BX")
    stamp(A, 12)
    A("s_barrier                            ; BY")
    for st in range(9, 14):
        wdwrite(st)
    A("s_waitcnt lgkmcnt(0)")
    A("s_barrier                            ; BZ")
    stamp(A, 13)
    if "hapf" in OPT:
        A(f"""
        v_subrev_u32 v3, 256, v0
        s_lshl_b32 s28, s47, 8
        v_add_u32 v3, s28, v3                ; 0..1791
        v_and_b32 v5, 1, v3
        v_mul_u32_u24 v5, {HAT}, v5
        v_lshrrev_b32 v3, 1, v3
        v_lshl_add_u32 v3, v3, 7, v5
        s_lshl_b32 s28, s24, 1
        s_add_u32 s28, s28, s46
        s_mul_i32 s28, s28, {2*HAT}
        s_add_u32 s28, s28, {WS_HA:#x}
        buffer_load_dword v5, v3, s[60:63], s28 offen sc1
        """)
    A("s_barrier                            ; BR")
    A("s_barrier                            ; BE")
    stamp_end(A)
    A("s_endpgm")


def main(path):
    ref = open(f"cdna_kernels/{NAME}.s.ref").read().split("\n")
    head = [l for l in ref if l.startswith(";") and "@launch" not in l]
    A = Asm()
    for l in head:
        A.raw(l)
    A.raw(f"; @launch grid=({GRID},1,1) block=(512,1,1) lds={LDS}")
    A.raw('.amdgcn_target "amdgcn-amd-amdhsa--gfx950"')
    A.raw(".text")
    A.raw(f".globl {KNAME}")
    A.raw(".p2align 8")
    A.raw(f".type {KNAME},@function")
    A.label(KNAME)
    A(f"""
    s_cmp_ge_u32 s2, {GRID}
    s_cbranch_scc1 EXIT
    s_load_dwordx16 s[4:19], s[0:1], {KA['A_re']}
    s_load_dwordx2 s[44:45], s[0:1], {KA['x']}
    s_load_dwordx8 s[48:55], s[0:1], {KA['Wg']}
    s_load_dwordx4 s[64:67], s[0:1], {KA['dbg']}
    s_getpc_b64 s[58:59]
    """)
    A.label("PC0")
    A(f"""
    s_lshr_b32 s22, s2, 3
    s_mul_i32 s22, s22, {NPF*128}
    v_subrev_u32 v1, 448, v0
    v_cmp_gt_u32 vcc, {NPF}, v1
    v_lshl_add_u32 v1, v1, 7, s22
    v_min_u32 v1, TABLE_END-PC0-4, v1
    s_and_saveexec_b64 s[24:25], vcc
    s_cbranch_execz PF_skip
    global_load_dword v127, v1, s[58:59]
    """)
    A.label("PF_skip")
    A(f"""
    s_mov_b64 exec, s[24:25]
    v_lshrrev_b32 v1, 6, v0
    v_and_b32 v2, 63, v0                 ; lane
    s_nop 0
    v_readfirstlane_b32 s22, v1          ; wave
    """)
    stamp_begin(A)
    A(f"""
    s_waitcnt lgkmcnt(0)
    s_and_b32 s23, s22, 3
    s_mov_b32 s20, s66
    s_mov_b32 s21, s67
    s_mov_b32 s60, s66
    s_mov_b32 s61, s67
    s_mov_b32 s62, {WS_USED:#x}
    s_mov_b32 s63, 0x00020000
    """)
    gen_p0_loads(A)
    A(f"""
    s_cmp_lt_u32 s2, {NAUX}
    s_cbranch_scc1 AUX
    """)
    gen_phase1(A)
    A("""
    s_cmp_ge_u32 s22, 4
    s_cbranch_scc1 LOADER
    """)
    gen_consumer(A)
    gen_loader(A)
    gen_aux(A)
    A.label("EXIT")
    A("s_endpgm")
    A.label("CODE_END")
    kg_table(A)
    A.raw(f""".section .rodata,"a"
.p2align 6
.amdhsa_kernel {KNAME}
  .amdhsa_next_free_vgpr 256
  .amdhsa_next_free_sgpr 100
  .amdhsa_accum_offset 256
  .amdhsa_group_segment_fixed_size 0
  .amdhsa_kernarg_size 128
  .amdhsa_user_sgpr_count 2
  .amdhsa_user_sgpr_kernarg_segment_ptr 1
  .amdhsa_system_sgpr_workgroup_id_x 1
.end_amdhsa_kernel
""")
    open(path, "w").write(A.text())


if __name__ == "__main__":
    main(sys.argv[1] if len(sys.argv) > 1 else f"km.s")
```

```python
import sys, os

NAME = "sequential_preLN__ssm_conv_s4__glu_gated_reglu__prompt"
KNAME = NAME + "_kernel"
L, D, N, F = 2048, 448, 256, 1792

WS_EPOCH = 0x0000000
WS_ST1 = 0x0004000
WS_CS = 0x0010000
WS_R2 = 0x0020000
WS_MEAN = 0x0030000
NREP = 4
REPS = 64 * 128 + 128
WS_F1 = 0x0040000
WS_F2 = 0x0050000
WS_F3 = 0x0060000
WS_F4 = 0x0070000
WS_XU = 0x0800000
WS_HT = 0x0100000
WS_HA = 0x1000000
WS_DBG = 0x2000000
WS_SIZE = 0x10000000
WS_USED = 0x1800000
HTB = D * 256 + int(os.environ.get("HPAD", "256"))
XUS = 32768 + int(os.environ.get("XPAD", "256"))
HAT = 112 * 1024

KA = dict(x=0, A_re=8, A_im=16, B_re=24, B_im=32, C_re=40, C_im=48, log_dt=56, Dskip=64,
          B_x=72, Wg=80, Wu=88, Wd=96, out=104, dbg=112, ws=120)
STAMP = os.environ.get("STAMP", "0") == "1"
OPT = dict(kv.split("=") for kv in os.environ.get("OPT", "").split(",") if kv)
NSTAMP = 22


class Asm:
    def __init__(self):
        self.lines = []

    def __call__(self, s):
        for ln in s.strip("\n").split("\n"):
            ln = ln.strip()
            if ln:
                self.lines.append("    " + ln)

    def label(self, n):
        self.lines.append(n + ":")

    def raw(self, s):
        self.lines.append(s)

    def text(self):
        return "\n".join(self.lines) + "\n"


def v(a, n=1):
    return f"v{a}" if n == 1 else f"v[{a}:{a+n-1}]"


def s(a, n=1):
    return f"s{a}" if n == 1 else f"s[{a}:{a+n-1}]"


def R(a, n):
    return list(range(a, a + n))


def cmul(A, d, x, y, t):
    A(f"v_pk_mul_f32 {v(t,2)}, {v(x,2)}, {v(y,2)} op_sel:[0,0] op_sel_hi:[1,0]")
    A(f"v_pk_fma_f32 {v(d,2)}, {v(x,2)}, {v(y,2)}, {v(t,2)} op_sel:[1,1,0] op_sel_hi:[0,1,1] neg_lo:[1,0,0]")


def srd(A, sd, sbase, off, nbytes):
    if off:
        A(f"s_add_u32 {s(sd)}, {s(sbase)}, {off:#x}")
        A(f"s_addc_u32 {s(sd+1)}, {s(sbase+1)}, 0")
    else:
        A(f"s_mov_b32 {s(sd)}, {s(sbase)}")
        A(f"s_mov_b32 {s(sd+1)}, {s(sbase+1)}")
    A(f"s_mov_b32 {s(sd+2)}, {nbytes:#x}")
    A(f"s_mov_b32 {s(sd+3)}, 0x00020000")


_late = [False]
def stamp(A, i):
    if STAMP and not ('p0st' in OPT and _late[0] and 14 <= i <= 19):
        A("s_memtime s[68:69]")
        A("s_waitcnt lgkmcnt(0)")
        A(f"s_mov_b32 s{72+i}, s68")


def stamp_begin(A):
    if STAMP:
        for i in range(NSTAMP):
            A(f"s_mov_b32 s{72+i}, 0")
        A("s_memrealtime s[68:69]")
        A("s_waitcnt lgkmcnt(0)")
        A("s_mov_b32 s70, s68")
        stamp(A, 0)


def stamp_end(A):
    if not STAMP:
        return
    stamp(A, NSTAMP - 2)
    A("s_waitcnt vmcnt(0)")
    stamp(A, NSTAMP - 1)
    A(f"""
    s_memrealtime s[68:69]
    s_waitcnt lgkmcnt(0)
    s_add_u32 s96, s20, {WS_DBG:#x}
    s_addc_u32 s97, s21, 0
    s_mov_b32 s98, 0x100000
    s_mov_b32 s99, 0x00020000
    v_lshrrev_b32 v1, 6, v0
    s_lshl_b32 s71, s2, 3
    v_add_u32 v1, s71, v1
    v_lshlrev_b32 v1, 7, v1
    """)
    for i in range(NSTAMP):
        A(f"v_mov_b32 v2, s{72+i}")
        A(f"buffer_store_dword v2, v1, s[96:99], 0 offen offset:{4*i}")
    if "spin" in OPT:
        n = len(A.lines)
        A(f"""
        s_cmp_lg_u32 s2, 100
        s_cbranch_scc1 SPN{n}
        s_cmp_lg_u32 s22, 0
        s_cbranch_scc1 SPN{n}
        s_memrealtime s[94:95]
        s_waitcnt lgkmcnt(0)
        ; realtime ticks per ... use cycle stamps: wait 2*(stamp_i - stamp_0) cycles
        s_sub_u32 s69, s{72+int(OPT['spin'])}, s72
        s_lshl_b32 s69, s69, 1
        s_memtime s[94:95]
        s_waitcnt lgkmcnt(0)
        s_add_u32 s69, s69, s94
        """)
        A.label(f"SPL{n}")
        A(f"""
        s_sleep 4
        s_memtime s[94:95]
        s_waitcnt lgkmcnt(0)
        s_sub_u32 s95, s94, s69
        s_cmp_lt_i32 s95, 0
        s_cbranch_scc1 SPL{n}
        """)
        A.label(f"SPN{n}")
    if "rspin" in OPT:
        n = len(A.lines)
        A(f"""
        s_cmp_lg_u32 s2, {OPT['rspin']}
        s_cbranch_scc1 SPN{n}
        s_cmp_lg_u32 s22, 0
        s_cbranch_scc1 SPN{n}
        s_sub_u32 s69, s68, s70
        s_lshl_b32 s69, s69, 1
        s_add_u32 s69, s69, s68
        """)
        A.label(f"SPL{n}")
        A(f"""
        s_sleep 4
        s_memrealtime s[94:95]
        s_waitcnt lgkmcnt(0)
        s_sub_u32 s95, s94, s69
        s_cmp_lt_i32 s95, 0
        s_cbranch_scc1 SPL{n}
        """)
        A.label(f"SPN{n}")
    if "dbg" in OPT:
        n = len(A.lines)
        A(f"""
        s_cmp_lg_u32 s2, {OPT['dbg']}
        s_cbranch_scc1 DBG{n}
        s_cmp_lg_u32 s22, 0
        s_cbranch_scc1 DBG{n}
        s_mov_b32 s92, s64
        s_mov_b32 s93, s65
        s_mov_b32 s94, 256
        s_mov_b32 s95, 0x00020000
        s_sub_u32 s69, s68, s70
        v_mov_b32 v2, s69
        buffer_store_dword v2, off, s[92:95], 0
        """)
        for i in range(1, NSTAMP):
            A(f"s_sub_u32 s69, s{72+i}, s72")
            A(f"v_mov_b32 v2, s69")
            A(f"buffer_store_dword v2, off, s[92:95], 0 offset:{4*i}")
        A.label(f"DBG{n}")
    A("v_mov_b32 v2, s68")
    A("buffer_store_dword v2, v1, s[96:99], 0 offen offset:124")
    A("v_mov_b32 v2, s70")
    A("buffer_store_dword v2, v1, s[96:99], 0 offen offset:120")


class Sched:
    def __init__(self):
        self.q = []

    def run(self, items, emit):
        for it in items:
            if it[0] == 'ds':
                emit(it[1])
                self.q.append(set(it[2]))
            elif it[0] == 'use':
                need = -1
                for i, d in enumerate(self.q):
                    if d & set(it[2]):
                        need = i
                if need >= 0:
                    n = min(len(self.q) - 1 - need, 15)
                    emit(f"s_waitcnt lgkmcnt({n})")
                    self.q = self.q[len(self.q) - n:] if n else []
                emit(it[1])
            elif it[0] == 'drain':
                emit("s_waitcnt lgkmcnt(0)")
                self.q = []
            else:
                emit(it[1])


class VM:
    def __init__(self, A):
        self.A = A
        self.q = []

    def op(self, text, tag):
        self.A(text)
        self.q.append(tag)
        assert len(self.q) <= 63, "too many outstanding vmem ops"

    def wait(self, *tags, extra=""):
        need = -1
        for i, t in enumerate(self.q):
            if t in tags:
                need = i
        if need >= 0:
            n = len(self.q) - 1 - need
            self.A(f"s_waitcnt vmcnt({n}) {extra}")
            self.q = self.q[len(self.q) - n:] if n else []
        elif extra:
            self.A(f"s_waitcnt {extra}")

    def drain(self, extra=""):
        self.A(f"s_waitcnt vmcnt(0) {extra}")
        self.q = []


def poll(A, name, load, okcode, cnt=36, sleep=1):
    A(f"s_mov_b32 s{cnt}, 0x40000")
    A.label(f"{name}_poll")
    A(load)
    A("s_waitcnt vmcnt(0)")
    A(okcode)
    A(f"""
    s_cbranch_scc1 {name}_got
    s_sub_u32 s{cnt}, s{cnt}, 1
    s_cmp_eq_u32 s{cnt}, 0
    s_cbranch_scc1 {name}_got
    s_sleep {sleep}
    s_branch {name}_poll
    """)
    A.label(f"{name}_got")


def flag_set(A, region, idx_sgpr, nline, nrep, after):
    A(f"""
    s_lshr_b32 s28, {idx_sgpr}, 2
    s_lshl_b32 s28, s28, 7
    s_and_b32 s32, {idx_sgpr}, 3
    s_lshl_b32 s32, s32, 2
    s_add_u32 s28, s28, s32
    s_add_u32 s28, s28, {region:#x}
    v_mul_u32_u24 v1, {REPS}, v2
    v_mov_b32 v3, s42
    s_mov_b64 exec, {(1<<nrep)-1}
    buffer_store_dword v3, v1, s[60:63], s28 offen sc1
    s_mov_b64 exec, -1
    """)


def q4_ok(r):
    return (f"v_xor_b32 v{r}, s42, v{r}\nv_xor_b32 v{r+1}, s42, v{r+1}\nv_xor_b32 v{r+2}, s42, v{r+2}\nv_xor_b32 v{r+3}, s42, v{r+3}\n"
            f"v_or3_b32 v{r}, v{r}, v{r+1}, v{r+2}\nv_or_b32 v{r}, v{r}, v{r+3}\nv_cmp_eq_u32 vcc, 0, v{r}\ns_nop 3\ns_cmp_eq_u64 vcc, exec")


def reduce64(A, regs, tmp, mid=None):
    for ctl in ("quad_perm:[1,0,3,2]", "quad_perm:[2,3,0,1]", "row_half_mirror", "row_mirror"):
        A("s_nop 0")
        for r in regs:
            A(f"v_add_f32_dpp v{r}, v{r}, v{r} {ctl} row_mask:0xf bank_mask:0xf")
    if mid: A(mid)
    for sw in ("v_permlane16_swap_b32", "v_permlane32_swap_b32"):
        for i, r in enumerate(regs):
            A(f"v_mov_b32 v{tmp+i}, v{r}")
        A("s_nop 1")
        for i, r in enumerate(regs):
            A(f"{sw} v{r}, v{tmp+i}")
        for i, r in enumerate(regs):
            A(f"v_add_f32 v{r}, v{r}, v{tmp+i}")


def reduce8(A, r):
    A(f"""
    s_nop 1
    v_add_f32_dpp v{r}, v{r}, v{r} quad_perm:[1,0,3,2] row_mask:0xf bank_mask:0xf
    s_nop 1
    v_add_f32_dpp v{r}, v{r}, v{r} quad_perm:[2,3,0,1] row_mask:0xf bank_mask:0xf
    s_nop 1
    v_add_f32_dpp v{r}, v{r}, v{r} row_half_mirror row_mask:0xf bank_mask:0xf
    """)


def var_to_s(A, r):
    A(f"""
    v_max_f32 v{r}, 0, v{r}
    v_cvt_pk_bf16_f32 v{r}, v{r}, v{r}
    v_lshlrev_b32 v{r}, 16, v{r}
    v_add_f32 v{r}, 0x3727c5ac, v{r}
    v_cvt_pk_bf16_f32 v{r}, v{r}, v{r}
    v_lshlrev_b32 v{r}, 16, v{r}
    v_sqrt_f32 v{r}, v{r}
    s_nop 0
    v_cvt_pk_bf16_f32 v{r}, v{r}, v{r}
    v_lshlrev_b32 v{r}, 16, v{r}
    """)


NAUX, NMAIN = 32, 224
GRID = 256
KG_ROW = 1056
KG_CH = 57 * KG_ROW
KG_TB = {0: 0, 1: 16, 3: 32, 2: 48}
KL_S = 8704
KPOS = lambda l: (l & 7) * 272 + (l >> 3)
KALPHA = [[0, 4, 128, 132], [512, 516, 1024, 1536], [256, 384, 2048, 2049]]
CV_BASE = 98304 + 64
CV_KS = 4160
CV_US = 4576
CV_KC = 4 * CV_KS
CV_UX = CV_BASE + 2 * CV_KC + 64
CV_XOFF = 2 * CV_US
CV_UD = CV_XOFF + 4096
KL_BASE = CV_UX
G1_STAGE = 24576
G1_SLOTS = 6
G1_X = G1_SLOTS * G1_STAGE
P4_SLOT = [0, 3, 4, 5, 6, 7, 8, 1, 2, 0, 3, 4, 5, 6]
P4_X = 149504
WD_EARLY = int(OPT.get("wde", 32))
LDS = 158208
assert CV_UX + 2 * CV_UD <= LDS and P4_X + 8192 + 256 <= LDS


def bf16_round_int(l):
    if l <= 256:
        return l
    sh = l.bit_length() - 8
    q, r = l >> sh, l & ((1 << sh) - 1)
    half = 1 << (sh - 1)
    if r > half or (r == half and (q & 1)):
        q += 1
    return q << sh


def kg_table(A):
    A.raw(".p2align 6")
    A.raw(".type KG_TABLE,@object")
    A.label("KG_TABLE")
    rows = []
    for tid in range(512):
        w, lane = tid >> 6, tid & 63
        ch, o = tid >> 8, tid & 255
        j, g = lane & 15, lane >> 4
        T = min(w & 3, 2)
        vals = [KL_BASE + ch * KL_S + 4 * KPOS(bf16_round_int(2047 - 8 * o - e)) for e in range(8)]
        vals += [KL_BASE + ch * KL_S + 4 * (KPOS(KALPHA[T][g] + [r, 128 * r, 2 * r][T]) + j) for r in range(4)]
        rows.append(vals)
    for part in range(3):
        for tid in range(512):
            A.raw(".long " + ", ".join(str(x) for x in rows[tid][4 * part:4 * part + 4]))
    A.raw(".size KG_TABLE, 24576")
    A.label("TABLE_END")


P0_LDS = 122880
NPF = 13


def gen_p0_loads(A):
    A(f"""
    s_lshl_b32 s26, s2, 3
    s_add_u32 s26, s26, s22              ; row
    s_mul_i32 s26, s26, 896
    v_lshl_add_u32 v1, v2, 4, s26
    v_mov_b32 v96, 0
    v_mov_b32 v97, 0
    v_mov_b32 v98, 0
    v_mov_b32 v99, 0
    s_mov_b32 s32, -1
    s_mov_b32 s33, 0x00ffffff
    s_mov_b64 exec, s[32:33]
    global_load_dwordx4 v[96:99], v1, s[44:45]
    s_mov_b64 exec, 1
    buffer_load_dword v126, off, s[60:63], 0 sc1
    s_mov_b64 exec, -1
    """)


def gen_p0(A, uid, younger=0):
    X = 96
    A(f"""
    s_mov_b32 s26, 0x3f803f80
    v_mov_b32 v104, 0
    v_mov_b32 v105, 0
    s_mul_i32 s27, s22, 928
    s_add_u32 s27, s27, {P0_LDS}
    v_lshl_add_u32 v116, v2, 4, s27
    v_bfe_u32 v117, v2, 2, 2             ; r
    v_mul_u32_u24 v117, 928, v117
    v_and_b32 v118, 3, v2
    v_lshl_add_u32 v117, v118, 3, v117
    v_lshrrev_b32 v118, 4, v2            ; g
    v_lshl_add_u32 v117, v118, 5, v117
    s_min_u32 s34, s22, 6
    s_lshl_b32 s27, s34, 7
    s_add_u32 s27, s27, {P0_LDS}
    v_add_u32 v117, s27, v117
    v_lshrrev_b32 v118, 3, v2
    v_mul_u32_u24 v118, {XUS}, v118
    v_and_b32 v119, 7, v2
    v_lshl_add_u32 v118, v119, 4, v118
    s_mul_i32 s34, s34, {8*XUS}
    s_lshl_b32 s35, s2, 7
    s_add_u32 s34, s34, s35
    s_add_u32 s34, s34, {WS_XU:#x}
    s_lshl_b32 s35, s2, 6
    s_lshl_b32 s27, s22, 2
    s_add_u32 s35, s35, s27
    s_add_u32 s35, s35, {WS_ST1:#x}
    v_lshlrev_b32 v119, 5, v2
    s_waitcnt vmcnt({younger+1})
    s_mov_b64 exec, s[32:33]
    ds_write_b128 v116, {v(X,4)}
    s_mov_b64 exec, -1
    """)
    for i in range(4):
        A(f"v_dot2c_f32_bf16 v104, s26, v{X+i}")
        A(f"v_dot2c_f32_bf16 v105, v{X+i}, v{X+i}")
    A(f"""
    s_waitcnt lgkmcnt(0)
    s_barrier                            ; Bp
    ds_read_b64_tr_b16 v[100:101], v117
    ds_read_b64_tr_b16 v[102:103], v117 offset:{4*928}
    """)
    reduce64(A, [104, 105], 120, mid=f"s_waitcnt lgkmcnt(0)\nbuffer_store_dwordx4 v[100:103], v118, s[60:63], s34 offen sc1")
    A(f"""
    v_mul_f32 v104, 0x3b124925, v104     ; mean
    v_mul_f32 v105, 0x3b124925, v105
    v_fma_f32 v105, -v104, v104, v105
    v_cvt_pk_bf16_f32 v120, v104, v104
    v_lshlrev_b32 v120, 16, v120         ; m_bf
    """)
    var_to_s(A, 105)
    A(f"""
    v_rcp_f32 v121, v105
    v_cmp_eq_u32 vcc, 0, v2
    s_mov_b64 exec, 3
    s_nop 0
    v_cndmask_b32 v120, v121, v120, vcc
    buffer_store_dword v120, v119, s[60:63], s35 offen sc1
    s_mov_b64 exec, -1
    """)


def gen_f1_publish(A, name, also_f2=False, younger=0):
    A(f"""
    s_waitcnt vmcnt({younger})
    v_readfirstlane_b32 s41, v126        ; epoch
    s_barrier                            ; Bq
    s_mul_i32 s42, s41, 0x9e3779b1
    s_add_u32 s42, s42, 0x7f4a7c15
    s_cmp_lg_u32 s22, 0
    s_cbranch_scc1 {name}
    """)
    flag_set(A, WS_F1, "s2", 64, NREP, None)
    if also_f2:
        flag_set(A, WS_F2, "s2", 64, NREP, None)
    A.label(name)


def gen_aux(A):
    _late[0] = False
    A.label("AUX")
    X = 8
    gen_p0(A, 0)
    stamp(A, 1)
    gen_f1_publish(A, "AUX_f1", True)
    stamp(A, 2)
    S = 64
    A(f"""
    v_min_u32 v7, 447, v0
    v_mul_u32_u24 v1, 0x124a, v7
    v_lshrrev_b32 v1, 16, v1             ; rg
    v_mul_u32_u24 v2, 14, v1
    v_sub_u32 v2, v7, v2                 ; chunk
    v_mul_u32_u24 v3, 3584, v1
    v_lshl_add_u32 v3, v2, 4, v3
    s_and_b32 s26, s2, 15
    s_mul_i32 s12, s26, 224
    s_cmp_ge_u32 s2, 16
    s_cselect_b32 s4, s50, s48
    s_cselect_b32 s5, s51, s49
    """)
    srd(A, 8, 4, 0, D * F * 2)
    for j in range(14):
        A(f"buffer_load_dwordx4 {v(X+4*j,4)}, v3, s[8:11], s12 offen")
        if j < 13:
            A(f"s_add_u32 s12, s12, {32*3584:#x}")
    for i in range(8):
        A(f"v_mov_b32 v{S+i}, 0")
    for j in range(14):
        A(f"s_waitcnt vmcnt({13-j})")
        for q in range(4):
            A(f"""
            v_lshlrev_b32 v72, 16, v{X+4*j+q}
            v_and_b32 v73, 0xffff0000, v{X+4*j+q}
            v_pk_add_f32 {v(S+2*q,2)}, {v(S+2*q,2)}, v[72:73]
            """)
    A(f"""
    v_mul_u32_u24 v4, 464, v1
    v_lshl_add_u32 v4, v2, 5, v4
    ds_write_b128 v4, {v(S,4)}
    ds_write_b128 v4, {v(S+4,4)} offset:16
    v_and_b32 v5, 127, v0
    v_min_u32 v5, 111, v5                ; column
    v_lshrrev_b32 v6, 7, v0              ; part 0..3
    v_mul_u32_u24 v7, {8*464}, v6
    v_lshl_add_u32 v7, v5, 2, v7
    s_waitcnt lgkmcnt(0)
    s_barrier
    """)
    for i in range(8):
        A(f"ds_read_b32 v{X+i}, v7 offset:{464*i}")
    A("s_waitcnt lgkmcnt(0)")
    for st in (4, 2, 1):
        for i in range(st):
            A(f"v_add_f32 v{X+i}, v{X+i}, v{X+i+st}")
    A(f"""
    v_lshlrev_b32 v7, 9, v6
    v_lshl_add_u32 v7, v5, 2, v7
    ds_write_b32 v7, v{X} offset:16384
    v_lshlrev_b32 v7, 2, v5
    s_waitcnt lgkmcnt(0)
    s_barrier
    ds_read_b32 v{X}, v7 offset:16384
    ds_read_b32 v{X+1}, v7 offset:{16384+512}
    ds_read_b32 v{X+2}, v7 offset:{16384+1024}
    ds_read_b32 v{X+3}, v7 offset:{16384+1536}
    s_mul_i32 s12, s2, 448
    s_add_u32 s12, s12, {WS_CS:#x}
    s_waitcnt lgkmcnt(0)
    v_add_f32 v{X}, v{X}, v{X+1}
    v_add_f32 v{X+2}, v{X+2}, v{X+3}
    v_add_f32 v{X}, v{X}, v{X+2}
    v_cmp_gt_u32 vcc, 112, v0
    s_and_saveexec_b64 s[32:33], vcc
    s_cbranch_execz AUX_c
    buffer_store_dword v{X}, v7, s[60:63], s12 offen sc1
    """)
    A.label("AUX_c")
    A("s_mov_b64 exec, s[32:33]")
    stamp(A, 3)
    A(f"""
    v_and_b32 v2, 63, v0
    v_lshlrev_b32 v5, 7, v2
    s_and_b32 s28, s2, {NREP-1}
    s_mul_i32 s28, s28, {REPS}
    s_add_u32 s28, s28, {WS_F2:#x}
    s_cmp_lg_u32 s22, 0
    s_cbranch_scc1 AUX_w
    """)
    poll(A, "AUX_p2", "buffer_load_dwordx4 v[8:11], v5, s[60:63], s28 offen sc1", q4_ok(8), sleep=8)
    A(f"""
    s_cmp_lg_u32 s2, 0
    s_cbranch_scc1 AUX_w
    s_add_u32 s26, s41, 1
    v_mov_b32 v8, s26
    s_mov_b64 exec, 1
    buffer_store_dword v8, off, s[60:63], 0 sc1
    s_mov_b64 exec, -1
    """)
    A.label("AUX_w")
    A("""
    s_waitcnt vmcnt(0)
    s_barrier
    """)
    stamp(A, 4)
    S1, S2 = 40, 48
    A(f"""
    v_lshrrev_b32 v1, 3, v0              ; dgrp 0..63
    v_and_b32 v2, 7, v0
    v_lshlrev_b32 v3, 8, v1
    v_lshl_add_u32 v3, v2, 4, v3
    s_lshr_b32 s24, s2, 1
    s_mul_i32 s24, s24, {HTB}
    s_and_b32 s25, s2, 1
    s_lshl_b32 s25, s25, 7
    s_add_u32 s24, s24, s25
    s_add_u32 s24, s24, {WS_HT:#x}
    """)
    for i in range(7):
        A(f"buffer_load_dwordx4 {v(X+4*i,4)}, v3, s[60:63], s24 offen sc1")
        if i < 6:
            A(f"s_add_u32 s24, s24, 16384")
    for i in range(16):
        A(f"v_mov_b32 v{S1+i}, 0")
    for i in range(7):
        A(f"s_waitcnt vmcnt({6-i})")
        for q in range(4):
            A(f"""
            v_lshlrev_b32 v56, 16, v{X+4*i+q}
            v_and_b32 v57, 0xffff0000, v{X+4*i+q}
            v_pk_add_f32 {v(S1+2*q,2)}, {v(S1+2*q,2)}, v[56:57]
            v_pk_fma_f32 {v(S2+2*q,2)}, v[56:57], v[56:57], {v(S2+2*q,2)}
            """)
    A(f"""
    v_mul_u32_u24 v4, 528, v1
    v_lshl_add_u32 v4, v2, 5, v4
    ds_write_b128 v4, {v(S1,4)}
    ds_write_b128 v4, {v(S1+4,4)} offset:16
    ds_write_b128 v4, {v(S2,4)} offset:256
    ds_write_b128 v4, {v(S2+4,4)} offset:272
    v_and_b32 v5, 127, v0
    v_lshrrev_b32 v6, 7, v0
    v_mul_u32_u24 v7, {16*528}, v6
    v_lshl_add_u32 v7, v5, 2, v7
    s_waitcnt lgkmcnt(0)
    s_barrier
    """)
    for i in range(16):
        A(f"ds_read_b32 v{X+i}, v7 offset:{528*i}")
    A("s_waitcnt lgkmcnt(0)")
    for st in (8, 4, 2, 1):
        for i in range(st):
            A(f"v_add_f32 v{X+i}, v{X+i}, v{X+i+st}")
    A(f"""
    v_lshlrev_b32 v7, 2, v0
    ds_write_b32 v7, v{X} offset:{64*528}
    s_waitcnt lgkmcnt(0)
    s_barrier
    s_cmp_lg_u32 s22, 0
    s_cbranch_scc1 AUX_done
    """)
    for i in range(4):
        A(f"ds_read_b32 v{X+i}, v7 offset:{64*528 + 512*i}")
        A(f"ds_read_b32 v{X+4+i}, v7 offset:{64*528 + 512*i + 256}")
    A(f"""
    s_lshl_b32 s26, s2, 8
    s_add_u32 s27, s26, {WS_MEAN:#x}
    s_add_u32 s26, s26, {WS_R2:#x}
    s_waitcnt lgkmcnt(0)
    v_add_f32 v{X}, v{X}, v{X+1}
    v_add_f32 v{X+2}, v{X+2}, v{X+3}
    v_add_f32 v{X+4}, v{X+4}, v{X+5}
    v_add_f32 v{X+6}, v{X+6}, v{X+7}
    v_add_f32 v40, v{X}, v{X+2}
    v_add_f32 v41, v{X+4}, v{X+6}
    v_mul_f32 v40, 0x3b124925, v40       ; mean
    v_cvt_pk_bf16_f32 v42, v40, v40
    v_lshlrev_b32 v42, 16, v42
    buffer_store_dword v42, v7, s[60:63], s27 offen sc1
    v_mul_f32 v41, 0x3b124925, v41
    v_fma_f32 v41, -v40, v40, v41
    """)
    var_to_s(A, 41)
    A(f"""
    v_mul_f32 v41, v41, v41
    v_rcp_f32 v41, v41
    v_and_b32 v2, 63, v0
    buffer_store_dword v41, v7, s[60:63], s26 offen sc1
    s_waitcnt vmcnt(0)
    """)
    flag_set(A, WS_F3, "s2", 8, NREP, None)
    A.label("AUX_done")
    stamp_end(A)
    A("s_endpgm")


def gen_phase1(A):
    XU = 112
    A(f"""
    s_sub_u32 s3, s2, {NAUX}
    s_and_b32 s26, s3, 7
    s_mul_i32 s26, s26, 28
    s_lshr_b32 s27, s3, 3
    s_add_u32 s43, s26, s27              ; dpair
    s_lshl_b32 s27, s43, 10
    v_lshl_add_u32 v3, v0, 1, s27
    s_lshr_b32 s28, s22, 2               ; channel
    s_lshl_b32 s26, s43, 1
    s_add_u32 s26, s26, s28
    s_lshl_b32 s26, s26, 1
    v_mov_b32 v31, s26                   ; 2*d
    global_load_ushort v10, v31, s[16:17]
    global_load_ushort v4, v3, s[4:5]
    global_load_ushort v5, v3, s[6:7]
    global_load_ushort v6, v3, s[8:9]
    global_load_ushort v7, v3, s[10:11]
    global_load_ushort v8, v3, s[12:13]
    global_load_ushort v9, v3, s[14:15]
    global_load_ushort v29, v31, s[18:19]
    s_mul_i32 s31, s28, {KG_CH}
    s_lshl_b32 s26, s23, 8
    s_add_u32 m0, s31, s26
    v_mov_b32 v30, 0x00003f80
    ds_write_addtid_b32 v30
    ; tile ids for later phases
    s_and_b32 s24, s3, 3
    s_lshl_b32 s24, s24, 2
    s_bfe_u32 s25, s3, 0x20003
    s_add_u32 s24, s24, s25              ; tblk
    s_bfe_u32 s46, s3, 0x10002
    s_mul_i32 s25, s46, 7
    s_lshr_b32 s47, s3, 5                ; dblk
    s_add_u32 s25, s25, s47              ; fblk
    """)
    PF0 = OPT.get("pf0", "late")

    def touch():
        A(f"""
        s_cmp_lt_u32 s22, 4
        s_cbranch_scc1 P1_nowd
        s_cmp_eq_u32 s22, 7
        s_cbranch_scc1 P1_nowd
        v_min_u32 v16, 55, v2
        s_mul_i32 s36, s3, {56*128}
        v_lshl_add_u32 v16, v16, 7, s36
        s_cmp_eq_u32 s22, 4
        s_cselect_b32 s34, s48, s50
        s_cselect_b32 s35, s49, s51
        s_cmp_eq_u32 s22, 6
        s_cselect_b32 s34, s52, s34
        s_cselect_b32 s35, s53, s35
        global_load_dword v128, v16, s[34:35]
        """)
        A.label("P1_nowd")

    if PF0 == "early": touch()
    gen_p0(A, 1, 8)
    if PF0 == "early2": touch()
    A(f"""
    s_add_u32 s58, s58, KG_TABLE-PC0
    s_addc_u32 s59, s59, 0
    v_lshlrev_b32 v18, 4, v0
    v_add_u32 v19, 8192, v18
    v_add_u32 v17, 16384, v18
    global_load_dwordx4 v[12:15], v17, s[58:59]
    global_load_dwordx4 v[20:23], v18, s[58:59]
    global_load_dwordx4 v[24:27], v19, s[58:59]
    """)
    stamp(A, 1)
    ACC = 32
    AR, AI = 44, 45
    BP, CP = 46, 48
    A2, B2 = 50, 51
    T0, T1 = 52, 54
    P = {r: 56 + 2 * (r - 1) for r in range(1, 8)}
    Z8, Q1 = 70, 72
    QA, QB = 74, 76
    BA, BB = 78, 80
    X0 = 82
    E0, E1, E2 = 86, 88, 90
    W0 = 92
    FR = 44
    A(f"""
    s_waitcnt vmcnt(10)
    v_lshlrev_b32 v28, 16, v10
    v_mul_f32 v28, 0x3fb8aa3b, v28
    v_exp_f32 v28, v28
    v_lshlrev_b32 v{AR}, 16, v4
    v_cvt_pk_bf16_f32 v28, v28, v28
    v_lshlrev_b32 v{AI}, 16, v5
    v_lshlrev_b32 v28, 16, v28           ; dt
    """)
    if "p0st" in OPT: stamp(A, 18)
    A(f"""
    v_mul_f32 v{A2}, v28, v{AR}
    v_mul_f32 v{B2}, v28, v{AI}
    v_mul_f32 v{A2}, 0x3fb8aa3b, v{A2}
    v_mul_f32 v{B2}, 0.15915494, v{B2}
    v_mul_f32 v{E1}, 0x41000000, v{A2}
    v_mul_f32 v{E1+1}, 0x41000000, v{B2}
    v_mul_f32 v{E2}, 0x43000000, v{A2}
    v_mul_f32 v{E2+1}, 0x43000000, v{B2}
    v_exp_f32 v{E0}, v{A2}
    v_fract_f32 v{E0+1}, v{B2}
    v_exp_f32 v{E1}, v{E1}
    v_fract_f32 v{E1+1}, v{E1+1}
    v_exp_f32 v{E2}, v{E2}
    v_fract_f32 v{E2+1}, v{E2+1}
    v_cos_f32 v{P[1]}, v{E0+1}
    v_sin_f32 v{P[1]+1}, v{E0+1}
    v_cos_f32 v{Z8}, v{E1+1}
    v_sin_f32 v{Z8+1}, v{E1+1}
    v_cos_f32 v{Q1}, v{E2+1}
    v_sin_f32 v{Q1+1}, v{E2+1}
    v_pk_mul_f32 {v(P[1],2)}, {v(P[1],2)}, {v(E0,2)} op_sel_hi:[1,0]
    v_pk_mul_f32 {v(Z8,2)}, {v(Z8,2)}, {v(E1,2)} op_sel_hi:[1,0]
    v_pk_mul_f32 {v(Q1,2)}, {v(Q1,2)}, {v(E2,2)} op_sel_hi:[1,0]
    """)
    rowof = {}
    for T in range(3):
        for g in range(4):
            for r in range(4):
                e = KALPHA[T][g] + [r, 128 * r, 2 * r][T]
                if e <= 2048:
                    rowof[e] = KG_TB[T] + 4 * g + r
    wsel = [0]

    def emit(row, reg, neg=""):
        w = W0 + wsel[0]; wsel[0] ^= 1
        A(f"v_cvt_pk_bf16_f32 v{w}, v{reg}, {neg}v{reg+1}")
        A(f"ds_write_addtid_b32 v{w} offset:{row*KG_ROW}")

    emitA = lambda e, reg: emit(rowof[e], reg)
    mulA = lambda d, x, y: cmul(A, d, x, y, T0)
    emitA(1, P[1])
    mulA(P[2], P[1], P[1]); emitA(2, P[2])
    mulA(P[3], P[2], P[1]); emitA(3, P[3])
    mulA(P[4], P[2], P[2]); emitA(4, P[4])
    mulA(P[5], P[4], P[1]); emitA(5, P[5])
    mulA(P[6], P[4], P[2]); emitA(6, P[6])
    mulA(P[7], P[4], P[3]); emitA(7, P[7])
    cur = Q1
    for i in range(1, 17):
        if i > 1:
            nxt = QA if cur != QA else QB
            mulA(nxt, cur, Q1)
            cur = nxt
        if i == int(OPT.get("f1at", 2)):
            gen_f1_publish(A, "P1_f1", younger=3)
            if PF0 == "mid": touch()
            if "p0st" in OPT: stamp(A, 14)
        emitA(128 * i, cur)
        for r in {1: range(1, 8), 2: (2, 4, 6), 3: (2, 4, 6), 4: (4,), 5: (4,), 6: (4,), 7: (4,)}.get(i, ()):
            mulA(X0, cur, P[r])
            emitA(128 * i + r, X0)
    A(f"""
    s_lshr_b32 s28, s22, 2
    v_lshlrev_b32 v{BP}, 16, v6
    v_lshlrev_b32 v{BP+1}, 16, v7
    v_lshlrev_b32 v{CP}, 16, v8
    v_lshlrev_b32 v{CP+1}, 16, v9
    v_lshlrev_b32 v29, 16, v29
    v_and_b32 v4, 255, v0
    v_cmp_eq_u32 vcc, 0, v4
    """)
    cmul(A, BA, CP, BP, T0)
    A(f"""
    v_cndmask_b32 v29, 0, v29, vcc
    v_pk_mul_f32 {v(BA,2)}, {v(BA,2)}, v[28:29] op_sel_hi:[1,0]
    """)
    curb = BA
    for j in range(16):
        if j > 0:
            nxt = BB if curb == BA else BA
            cmul(A, nxt, curb, Z8, T1)
            curb = nxt
        emit(KG_TB[3] + j, curb, "-")
    EX = KL_BASE + 2 * KL_S - 8192 * 0
    EX = 122880
    A(f"""
    s_and_b32 s40, s2, {NREP-1}
    s_mul_i32 s40, s40, {REPS}
    v_and_b32 v156, 7, v2
    v_lshlrev_b32 v156, 7, v156
    s_lshl_b32 s31, s22, 10
    s_add_u32 s31, s31, s40
    s_add_u32 s31, s31, {WS_F1:#x}
    buffer_load_dwordx4 v[160:163], v156, s[60:63], s31 offen sc1      ; early look at F1
    s_lshr_b32 s30, s43, 2
    s_mul_i32 s30, s30, {XUS}
    s_and_b32 s26, s43, 3
    s_lshl_b32 s26, s26, 5
    s_add_u32 s30, s30, s26
    s_add_u32 s30, s30, {WS_XU:#x}
    s_mov_b32 s38, {WS_ST1:#x}
    v_and_b32 v17, 1, v0
    v_lshrrev_b32 v16, 1, v0             ; tb8
    v_lshlrev_b32 v158, 6, v16
    v_lshlrev_b32 v157, 7, v16
    v_lshl_add_u32 v157, v17, 4, v157
    v_mul_u32_u24 v159, {CV_UD}, v17
    v_lshl_add_u32 v159, v16, 4, v159
    v_add_u32 v159, {CV_UX}, v159
    v_and_b32 v5, 15, v2
    v_mul_u32_u24 v5, {KG_ROW}, v5
    v_lshrrev_b32 v6, 4, v2
    v_lshl_add_u32 v5, v6, 4, v5
    s_mul_i32 s26, s28, {KG_CH}
    s_lshl_b32 s27, s23, 8
    s_add_u32 s26, s26, s27
    v_add_u32 v5, s26, v5
    s_mul_i32 s29, s28, {CV_KC}
    s_add_u32 s29, s29, {CV_BASE}
    v_lshrrev_b32 v6, 4, v2
    v_mul_u32_u24 v6, {KG_ROW}, v6
    v_and_b32 v16, 15, v2
    v_lshl_add_u32 v6, v16, 4, v6
    v_add_u32 v16, s26, v6
    s_mul_i32 s26, s28, {KG_CH}
    s_mul_i32 s27, s23, {4*KG_ROW}
    s_add_u32 s26, s26, s27
    v_add_u32 v6, s26, v6
    s_waitcnt lgkmcnt(0)
    """)
    stamp(A, 3)
    items = []
    for ks in range(4):
        for q, T in enumerate((3, 0, 1, 2)):
            b = FR + 16 * ks + 4 * q
            items.append(('ds', f"ds_read_b128 {v(b,4)}, v5 offset:{KG_TB[T]*KG_ROW + ks*64}", R(b, 4)))
    for ks in range(4):
        for T in range(3):
            a, b = FR + 16 * ks + 4 + 4 * T, FR + 16 * ks
            c = "0" if ks == 0 else v(ACC + 4 * T, 4)
            items.append(('use', f"v_mfma_f32_16x16x32_bf16 {v(ACC+4*T,4)}, {v(a,4)}, {v(b,4)}, {c}", R(a, 4) + R(b, 4)))
    Sched().run(items, A)
    A(f"""
    s_nop 5
    v_add_f32 v{ACC}, v{ACC}, v29
    ds_write_b128 v16, {v(ACC,4)}
    ds_write_b128 v16, {v(ACC+4,4)} offset:{4*KG_ROW}
    ds_write_b128 v16, {v(ACC+8,4)} offset:{8*KG_ROW}
    s_waitcnt vmcnt(0)
    {q4_ok(160)}
    s_cselect_b32 s39, 1, 0
    s_cbranch_scc0 P1_e1
    buffer_load_dwordx4 {v(XU,4)}, v157, s[60:63], s30 offen sc1
    buffer_load_dwordx4 v[132:135], v158, s[60:63], s38 offen sc1
    buffer_load_dwordx4 v[136:139], v158, s[60:63], s38 offen offset:16 sc1
    buffer_load_dwordx4 v[140:143], v158, s[60:63], s38 offen offset:32 sc1
    buffer_load_dwordx4 v[144:147], v158, s[60:63], s38 offen offset:48 sc1
    """)
    A.label("P1_e1")
    A(f"""
    s_waitcnt lgkmcnt(0)
    s_barrier                            ; Ba
    """)
    if "p0st" in OPT: stamp(A, 15)
    A(f"""
    s_cmp_eq_u32 s23, 3
    s_cbranch_scc1 P1_nomm
    ds_read_b128 {v(FR,4)}, v6
    ds_read_b128 {v(FR+4,4)}, v6 offset:256
    ds_read_b128 {v(FR+8,4)}, v6 offset:512
    ds_read_b128 {v(FR+12,4)}, v6 offset:768
    s_waitcnt lgkmcnt(2)
    v_pk_add_f32 {v(FR,2)}, {v(FR,2)}, {v(FR+4,2)}
    v_pk_add_f32 {v(FR+2,2)}, {v(FR+2,2)}, {v(FR+6,2)}
    s_waitcnt lgkmcnt(0)
    v_pk_add_f32 {v(FR+8,2)}, {v(FR+8,2)}, {v(FR+12,2)}
    v_pk_add_f32 {v(FR+10,2)}, {v(FR+10,2)}, {v(FR+14,2)}
    v_pk_add_f32 {v(FR,2)}, {v(FR,2)}, {v(FR+8,2)}
    v_pk_add_f32 {v(FR+2,2)}, {v(FR+2,2)}, {v(FR+10,2)}
    ds_write_b32 v12, v{FR}
    ds_write_b32 v13, v{FR+1}
    ds_write_b32 v14, v{FR+2}
    ds_write_b32 v15, v{FR+3}
    """)
    A.label("P1_nomm")
    A(f"""
    v_lshl_add_u32 v7, v4, 4, s29
    s_mul_i32 s26, s23, {CV_KS-4}
    s_add_u32 s26, s26, s29
    s_add_u32 s26, s26, 4096
    v_lshl_add_u32 v16, v2, 2, s26
    s_add_u32 s27, s23, 12
    v_mov_b32 v8, 0
    v_mov_b32 v9, 0
    v_mov_b32 v10, 0
    v_mov_b32 v11, 0
    s_cmp_eq_u32 s39, 1
    s_cbranch_scc1 P1_e2
    buffer_load_dwordx4 v[160:163], v156, s[60:63], s31 offen sc1
    """)
    A.label("P1_e2")
    A(f"""
    s_waitcnt lgkmcnt(0)
    s_barrier                            ; Bb
    """)
    if "p0st" in OPT: stamp(A, 16)
    items = [('ds', f"ds_read_b32 v{FR+e}, v{20+e}", [FR + e]) for e in range(8)]
    items += [('op', "v_cmp_gt_u32 vcc, s27, v2"), ('op', "s_and_saveexec_b64 s[32:33], vcc"),
              ('ds', "ds_write_b32 v16, v8", []), ('op', "s_mov_b64 exec, s[32:33]")]
    for q in range(4):
        items.append(('use', f"v_cvt_pk_bf16_f32 v{32+q}, v{FR+2*q}, v{FR+2*q+1}", R(FR + 2 * q, 2)))
    Sched().run(items, A)
    XU = 112
    U0 = 448
    A(f"""
    v_mov_b32 v36, v33
    v_mov_b32 v37, v34
    s_barrier
    """)
    if "p0st" in OPT: stamp(A, 17)
    A(f"""
    ds_write_b128 v7, v[32:35]
    ds_write_b64 v7, v[32:33] offset:{2*CV_KS - 8}
    ds_write_b64 v7, v[34:35] offset:{2*CV_KS}
    ds_write_b32 v7, v32 offset:{CV_KS - 4}
    ds_write_b64 v7, v[36:37] offset:{CV_KS}
    ds_write_b32 v7, v35 offset:{CV_KS + 8}
    ds_write_b32 v7, v32 offset:{3*CV_KS - 12}
    ds_write_b64 v7, v[36:37] offset:{3*CV_KS - 8}
    ds_write_b32 v7, v35 offset:{3*CV_KS}
    ; u pads: wave -> (ch = w>>2... only c<2): 28 chunks + 2 bytes
    s_mul_i32 s26, s28, {CV_UD}
    s_mul_i32 s27, s23, {CV_US}
    s_add_u32 s26, s26, s27
    s_add_u32 s26, s26, {CV_UX}
    v_lshl_add_u32 v16, v2, 4, s26
    v_mov_b32 v17, s26
    s_cmp_lt_u32 s23, 2
    s_cselect_b32 s32, 0x0fffffff, 0
    s_mov_b32 s33, 0
    s_mov_b64 exec, s[32:33]
    s_cbranch_execz P1_nz
    ds_write_b128 v16, v[8:11]
    s_cmp_eq_u32 s23, 1
    s_cbranch_scc0 P1_nz
    ds_write_b16 v17, v8 offset:448
    """)
    A.label("P1_nz")
    A(f"""
    s_mov_b64 exec, -1
    v_mov_b32 v7, v159
    """)
    stamp(A, 2)
    A(f"""
    s_cmp_eq_u32 s39, 1
    s_cbranch_scc1 P1_have
    s_waitcnt vmcnt(0)
    {q4_ok(160)}
    s_cbranch_scc1 P1_f_got
    """)
    poll(A, "P1_f", "buffer_load_dwordx4 v[160:163], v156, s[60:63], s31 offen sc1", q4_ok(160), sleep=1)
    A(f"""
    buffer_load_dwordx4 {v(XU,4)}, v157, s[60:63], s30 offen sc1
    buffer_load_dwordx4 v[132:135], v158, s[60:63], s38 offen sc1
    buffer_load_dwordx4 v[136:139], v158, s[60:63], s38 offen offset:16 sc1
    buffer_load_dwordx4 v[140:143], v158, s[60:63], s38 offen offset:32 sc1
    buffer_load_dwordx4 v[144:147], v158, s[60:63], s38 offen offset:48 sc1
    """)
    A.label("P1_have")
    stamp(A, 4)


def gen_xu_store(A):
    XU, U0 = 112, 448
    u = XU + 4
    A(f"""
    s_waitcnt vmcnt(4)
    ds_write_b128 v7, {v(XU,4)} offset:{CV_XOFF}
    """)
    for i in range(4):
        A(f"""
        v_lshlrev_b32 v{148+2*i}, 16, v{XU+i}
        v_and_b32 v{149+2*i}, 0xffff0000, v{XU+i}
        """)
    A("s_waitcnt vmcnt(2)")
    for i in range(4):
        A(f"v_pk_add_f32 {v(148+2*i,2)}, {v(148+2*i,2)}, {v(132+2*i,2)} neg_lo:[0,1] neg_hi:[0,1]")
    for i in range(4):
        A(f"v_cvt_pk_bf16_f32 v{u+i}, v{148+2*i}, v{149+2*i}")
    for i in range(4):
        A(f"""
        v_lshlrev_b32 v{148+2*i}, 16, v{u+i}
        v_and_b32 v{149+2*i}, 0xffff0000, v{u+i}
        """)
    A("s_waitcnt vmcnt(0)")
    for i in range(4):
        A(f"v_pk_mul_f32 {v(148+2*i,2)}, {v(148+2*i,2)}, {v(140+2*i,2)}")
    for i in range(4):
        A(f"v_cvt_pk_bf16_f32 v{u+i}, v{148+2*i}, v{149+2*i}")
    A(f"""
    v_cvt_pk_bf16_f32 v44, v149, v150
    v_cvt_pk_bf16_f32 v46, v151, v152
    v_cvt_pk_bf16_f32 v47, v153, v154
    ds_write_b128 v7, {v(u,4)} offset:{U0}
    ds_write_b16 v7, v{u} offset:{U0 + CV_US + 2}
    ds_write_b32 v7, v44 offset:{U0 + CV_US + 4}
    ds_write_b64 v7, v[46:47] offset:{U0 + CV_US + 8}
    ds_write_b16_d16_hi v7, v{u+3} offset:{U0 + CV_US + 16}
    """)
    stamp(A, 5)


def gen_conv(A):
    XR, ACC, FP = 12, 20, 40
    A(f"""
    v_and_b32 v4, 15, v2                 ; i / n
    v_lshrrev_b32 v5, 4, v2              ; g
    s_lshr_b32 s28, s22, 1               ; dsel
    s_and_b32 s30, s22, 1                ; role
    s_mul_i32 s27, s28, {CV_KC}
    s_add_u32 s27, s27, {CV_BASE}
    v_and_b32 v36, 3, v4
    v_sub_u32 v36, 3, v36
    v_mul_u32_u24 v36, {CV_KS}, v36
    v_lshrrev_b32 v37, 2, v4
    v_sub_u32 v37, v5, v37
    v_lshl_add_u32 v36, v37, 4, v36
    v_add_u32 v36, {4080 - 512*7}, v36
    v_add_u32 v36, s27, v36              ; F addr
    s_mul_i32 s27, s28, {CV_UD}
    s_add_u32 s27, s27, {CV_UX}
    v_and_b32 v37, 1, v4
    v_sub_u32 v37, 1, v37
    v_mul_u32_u24 v37, {CV_US}, v37
    v_lshrrev_b32 v38, 1, v4
    v_lshl_add_u32 v37, v38, 6, v37
    v_lshl_add_u32 v37, v5, 4, v37
    v_add_u32 v37, 448, v37
    v_add_u32 v37, s27, v37              ; G addr
    v_lshlrev_b32 v6, 7, v5
    v_lshl_add_u32 v6, v4, 2, v6
    s_add_u32 s26, s27, {CV_XOFF}
    v_add_u32 v6, s26, v6
    v_lshl_add_u32 v39, v2, 4, s26
    v_mul_u32_u24 v38, {HTB}, v5
    v_lshl_add_u32 v38, v4, 4, v38
    s_lshl_b32 s33, s43, 1
    s_add_u32 s33, s33, s28
    s_lshl_b32 s33, s33, 8
    s_add_u32 s33, s33, {WS_HT:#x}         ; HT + d*256
    """)
    gen_xu_store(A)
    A("""
    s_waitcnt lgkmcnt(0)
    s_barrier                            ; Bc
    """)
    stamp(A, 6)
    A("""
    s_cmp_eq_u32 s30, 0
    s_cbranch_scc0 CV_roleB
    """)
    for role, tiles in ((0, (7, 6, 1, 0)), (1, (5, 4, 3, 2))):
        if role == 1:
            A.label("CV_roleB")
        nf = max(tiles) + 1

        def reads(base):
            out = []
            for a in range(nf):
                out.append(('ds', f"ds_read_b128 {v(base+4*a,4)}, v36 offset:{512*(7-a)}", R(base + 4 * a, 4)))
                out.append(('ds', f"ds_read_b128 {v(base+32+4*a,4)}, v37 offset:{512*a}", R(base + 32 + 4 * a, 4)))
            return out

        def mfmas(base):
            pairs = [(a, c - a, q) for q, c in enumerate(tiles) for a in range(c + 1)]
            pairs.sort(key=lambda p: (max(p[0], p[1]), p[2]))
            return [('use', f"v_mfma_f32_16x16x32_bf16 {v(ACC+4*q,4)}, {v(base+32+4*b,4)}, {v(base+4*a,4)}, {v(ACC+4*q,4)}",
                     R(base + 32 + 4 * b, 4) + R(base + 4 * a, 4)) for a, b, q in pairs]

        def step(cur, nxt):
            it = [('op', "v_subrev_u32 v36, 64, v36"), ('op', "v_subrev_u32 v37, 64, v37")]
            rs = reads(nxt)
            i = 0
            for m in mfmas(cur):
                it.append(m)
                if i < len(rs):
                    it.append(rs[i]); i += 1
            return it + rs[i:]

        for q, c in enumerate(tiles):
            A(f"ds_read2_b32 {v(XR+2*q,2)}, v6 offset0:{0} offset1:16" if c == 0 else
              f"ds_read_b32 v{XR+2*q}, v6 offset:{512*c}\nds_read_b32 v{XR+2*q+1}, v6 offset:{512*c+64}")
        A("s_waitcnt lgkmcnt(0)")
        S = Sched()
        S.run(reads(FP), A)
        for q in range(4):
            A(f"""
            v_lshlrev_b32 v{ACC+4*q}, 16, v{XR+2*q}
            v_and_b32 v{ACC+4*q+1}, 0xffff0000, v{XR+2*q}
            v_lshlrev_b32 v{ACC+4*q+2}, 16, v{XR+2*q+1}
            v_and_b32 v{ACC+4*q+3}, 0xffff0000, v{XR+2*q+1}
            """)
        A("s_mov_b32 s36, 4")
        A.label(f"CV_loop{role}")
        S.run(step(FP, FP + 64) + step(FP + 64, FP), A)
        A(f"""
        s_sub_u32 s36, s36, 1
        s_cmp_lg_u32 s36, 0
        s_cbranch_scc1 CV_loop{role}
        s_nop 6
        """)
        for q, c in enumerate(tiles):
            A(f"""
            v_cvt_pk_bf16_f32 v{XR+2*q}, v{ACC+4*q}, v{ACC+4*q+1}
            v_cvt_pk_bf16_f32 v{XR+2*q+1}, v{ACC+4*q+2}, v{ACC+4*q+3}
            ds_write_b32 v6, v{XR+2*q} offset:{512*c}
            ds_write_b32 v6, v{XR+2*q+1} offset:{512*c+64}
            """)
        A(f"""
        s_add_u32 s34, s33, {2*tiles[1]*HTB:#x}
        s_add_u32 s35, s33, {2*tiles[3]*HTB:#x}
        s_waitcnt lgkmcnt(0)
        ds_read_b128 v[20:23], v39 offset:{512*tiles[1]}
        ds_read_b128 v[24:27], v39 offset:{512*tiles[3]}
        """)
        if role == 0:
            A("s_branch CV_out")
    A.label("CV_out")
    A(f"""
    s_waitcnt lgkmcnt(1)
    buffer_store_dwordx4 v[20:23], v38, s[60:63], s34 offen sc1
    s_waitcnt lgkmcnt(0)
    buffer_store_dwordx4 v[24:27], v38, s[60:63], s35 offen sc1
    """)
    stamp(A, 7)


def gen_consumer(A):
    _late[0] = True
    gen_conv(A)
    ACC = 24
    FP = 152
    acc = lambda m, tt: ACC + 16 * (m * 4 + tt)
    A(f"""
    v_lshrrev_b32 v4, 5, v2              ; h
    v_bfe_u32 v3, v2, 2, 2               ; r
    v_lshl_add_u32 v5, v4, 2, v3
    v_lshlrev_b32 v5, 8, v5
    v_bfe_u32 v6, v2, 4, 1
    v_lshl_add_u32 v5, v6, 5, v5
    v_and_b32 v6, 3, v2
    v_lshl_add_u32 v5, v6, 3, v5
    v_xor_b32 v6, s23, v3
    v_lshl_add_u32 v8, v6, 6, v5
    s_mov_b32 s33, 0
    """)
    A("""
    s_xor_b32 s37, s46, 1
    s_lshl_b32 s37, s37, 1
    v_xor_b32 v7, s37, v3
    """)
    for tt in range(4):
        A(f"""
        v_xor_b32 v6, {tt}, v7
        v_lshl_add_u32 v{9+tt}, v6, 6, v5
        """)
    A(f"""
    v_lshlrev_b32 v18, 7, v2
    v_mov_b32 v19, v3
    """)
    stamp(A, 11)
    A("s_waitcnt vmcnt(0)")
    stamp(A, 14)
    A(f"""
    s_barrier                            ; BH
    s_cmp_lg_u32 s22, 0
    s_cbranch_scc1 C_nf2
    """)
    flag_set(A, WS_F2, "s2", 64, NREP, None)
    A("s_nop 1")
    A("v_mov_b32 v3, v19")
    A.label("C_nf2")
    stamp(A, 8)
    for i in range(128):
        A(f"v_mov_b32 v{ACC+i}, 0")
    A(f"""
    s_add_u32 s28, s40, {WS_F2:#x}
    s_cmp_lg_u32 s22, 0
    s_cbranch_scc1 C_f2_got
    """)
    poll(A, "C_f2", f"buffer_load_dwordx4 {v(FP,4)}, v18, s[60:63], s28 offen sc1", q4_ok(FP))
    A("s_barrier                            ; BS")
    stamp(A, 9)

    def fa(base, kk, m): return base + 24 * kk + 4 * m
    def fb(base, kk, tt): return base + 24 * kk + 8 + 4 * tt

    def reads(base):
        out = []
        for kk in range(2):
            for kind, i in [('b', 0), ('a', 0), ('a', 1), ('b', 1), ('b', 2), ('b', 3)]:
                for j in range(2):
                    if kind == 'a':
                        d = fa(base, kk, i) + 2 * j
                        out.append(('ds', f"ds_read_b64_tr_b16 {v(d,2)}, v13 offset:{8192*(i+1) + 4096*kk + 2048*j}", R(d, 2)))
                    else:
                        d = fb(base, kk, i) + 2 * j
                        out.append(('ds', f"ds_read_b64_tr_b16 {v(d,2)}, v{14+i} offset:{4096*kk + 2048*j}", R(d, 2)))
        return out

    def addr_setup():
        return [('op', t) for t in f"""v_add_u32 v13, s33, v8
            v_add_u32 v14, s33, v9
            v_add_u32 v15, s33, v10
            v_add_u32 v16, s33, v11
            v_add_u32 v17, s33, v12
            s_add_u32 s33, s33, {G1_STAGE}
            s_cmp_eq_u32 s33, {G1_SLOTS*G1_STAGE}
            s_cselect_b32 s33, 0, s33""".split("\n")]

    def step(cur, nxt, bar):
        ms = []
        for kk in range(2):
            for tt in range(4):
                for m in range(2):
                    a, b = fa(cur, kk, m), fb(cur, kk, tt)
                    ms.append(('use', f"v_mfma_f32_32x32x16_bf16 {v(acc(m,tt),16)}, {v(a,4)}, {v(b,4)}, {v(acc(m,tt),16)}", R(a, 4) + R(b, 4)))
        rs = reads(nxt)
        ad = addr_setup()
        it = [ms[0]] + ad[:4] + [ms[1]] + ad[4:]
        if bar:
            it += [ms[2], ('drain',), ('op', "s_barrier")]
            rest = ms[3:]
        else:
            rest = ms[2:]
        i = 0
        for m in rest:
            it.append(m)
            for _ in range(2):
                if i < len(rs):
                    it.append(rs[i]); i += 1
        return it + rs[i:]

    S = Sched()
    S.run(addr_setup(), A)
    A("s_barrier                            ; B0")
    stamp(A, 10)
    S.run(reads(FP), A)
    CS, M, O = FP, FP + 32, 248 - 56
    O = FP + 40
    A(f"""
    s_lshl_b32 s26, s23, 7
    v_lshl_add_u32 v20, v4, 4, s26
    v_add_u32 v20, {G1_X}, v20
    v_and_b32 v21, 31, v2
    v_lshlrev_b32 v21, 2, v21
    v_add_u32 v21, {G1_X+1024}, v21
    s_lshl_b32 s26, s37, 7
    v_add_u32 v21, s26, v21
    v_xor_b32 v22, 128, v21
    v_xor_b32 v23, 256, v21
    v_xor_b32 v18, 384, v21
    s_lshl_b32 s26, s24, 2
    s_mul_i32 s26, s26, {HAT}
    s_lshl_b32 s29, s25, 3
    s_lshl_b32 s30, s23, 1
    s_add_u32 s29, s29, s30
    s_lshl_b32 s29, s29, 10
    s_add_u32 s26, s26, s29
    s_add_u32 s26, s26, {WS_HA:#x}
    s_mul_i32 s28, s37, {HAT}
    s_add_u32 s28, s28, s26
    s_xor_b32 s29, s37, 1
    s_mul_i32 s29, s29, {HAT}
    s_add_u32 s29, s29, s26
    s_xor_b32 s30, s37, 2
    s_mul_i32 s30, s30, {HAT}
    s_add_u32 s30, s30, s26
    s_xor_b32 s31, s37, 3
    s_mul_i32 s31, s31, {HAT}
    s_add_u32 s31, s31, s26
    v_lshlrev_b32 v6, 4, v2
    s_mov_b32 s36, 7
    """)
    A.label("C_loop3")
    S.run(step(FP, FP + 48, True), A)
    A(f"""
    s_cmp_eq_u32 s36, 1
    s_cbranch_scc1 C_last
    """)
    import copy
    S2 = copy.deepcopy(S)
    S.run(step(FP + 48, FP, False), A)
    A(f"""
    s_sub_u32 s36, s36, 1
    s_branch C_loop3
    """)
    A.label("C_last")
    cur = FP + 48
    OT = [248, 248, O, None]
    OT[3] = O + 8

    def mfm(tt):
        out = []
        for kk in range(2):
            for m in range(2):
                a, b = fa(cur, kk, m), fb(cur, kk, tt)
                out.append(('use', f"v_mfma_f32_32x32x16_bf16 {v(acc(m,tt),16)}, {v(a,4)}, {v(b,4)}, {v(acc(m,tt),16)}", R(a, 4) + R(b, 4)))
        return out

    def epi(tt, q):
        g_, u_ = acc(0, tt) + 4 * q, acc(1, tt) + 4 * q
        o = OT[tt] + 2 * q
        out = []
        for h in range(2):
            out.append(('use', f"v_pk_fma_f32 {v(g_+2*h,2)}, {v(CS+4*q+2*h,2)}, {v(M+2*tt,2)}, {v(g_+2*h,2)} op_sel_hi:[1,0,1] neg_lo:[0,1,0] neg_hi:[0,1,0]", R(CS + 4 * q, 4) + [M + 2 * tt]))
            out.append(('use', f"v_pk_fma_f32 {v(u_+2*h,2)}, {v(CS+16+4*q+2*h,2)}, {v(M+2*tt,2)}, {v(u_+2*h,2)} op_sel_hi:[1,0,1] neg_lo:[0,1,0] neg_hi:[0,1,0]", R(CS + 16 + 4 * q, 4)))
        out += [('op', f"v_max_f32 v{g_+i}, 0, v{g_+i}") for i in range(4)]
        out += [('op', f"v_pk_mul_f32 {v(g_+2*h,2)}, {v(g_+2*h,2)}, {v(u_+2*h,2)}") for h in range(2)]
        out += [('op', f"v_cvt_pk_bf16_f32 v{o+h}, v{g_+2*h}, v{g_+2*h+1}") for h in range(2)]
        if q & 1:
            out.append(('op', f"buffer_store_dwordx4 {v(o-2,4)}, v6, s[60:63], s{28+tt} offen offset:{1024*(q>>1)} sc1"))
        return out

    rd = [('ds', f"ds_read_b32 v{M+2*tt}, v{[21,22,23,18][tt]}", [M + 2 * tt]) for tt in range(4)]
    for q in range(4):
        for m in range(2):
            rd.append(('ds', f"ds_read_b128 {v(CS+16*m+4*q,4)}, v20 offset:{512*m + 32*q}", R(CS + 16 * m + 4 * q, 4)))
    items = []
    m0, m1, m2, m3 = mfm(0), mfm(1), mfm(2), mfm(3)
    items += [m0[0], m0[1]] + rd[:6] + [m0[2], m0[3]] + rd[6:]
    if OPT.get("ilv", "1") == "1":
        items += m1 + [('drain',), ('op', "s_barrier"), ('op', "s_nop 5")]
        for q in range(4):
            items += [m2[q]] + epi(0, q)
        for q in range(4):
            items += [m3[q]] + epi(1, q)
        for tt in (2, 3):
            for q in range(4):
                items += epi(tt, q)
    else:
        items += m1 + m2 + m3 + [('drain',), ('op', "s_barrier"), ('op', "s_nop 5")]
        for tt in range(4):
            for q in range(4):
                items += epi(tt, q)
    S2.run(items, A)
    stamp(A, 15)
    ACC4, AF, BF, NB = 16, 80, 160, 6
    A(f"""
    v_lshl_add_u32 v5, v4, 2, v3
    v_lshlrev_b32 v5, 7, v5
    v_bfe_u32 v7, v2, 4, 1
    v_lshl_add_u32 v5, v7, 5, v5
    v_and_b32 v7, 3, v2
    v_lshl_add_u32 v5, v7, 3, v5
    v_lshrrev_b32 v3, 1, v3
    s_and_b32 s26, s23, 1
    s_lshr_b32 s27, s23, 1
    s_lshl_b32 s28, s23, 12
    v_xor_b32 v7, s27, v3
    v_lshl_add_u32 v8, v7, 6, v5
    v_add_u32 v8, s28, v8
    v_xor_b32 v9, 64, v8
    v_add_u32 v10, 0x10000, v8
    v_add_u32 v11, 0x10000, v9
    v_add_u32 v12, 0x20000, v8
    v_add_u32 v13, 0x20000, v9
    v_xor_b32 v7, s26, v3
    v_lshl_add_u32 v14, v7, 6, v5
    s_lshl_b32 s28, s27, 12
    s_add_u32 s28, s28, {P4_X}
    v_add_u32 v14, s28, v14
    s_lshl_b32 s28, s24, 1
    s_add_u32 s28, s28, s46
    s_lshl_b32 s28, s28, 1
    s_add_u32 s28, s28, s26
    s_mul_i32 s29, s28, {32*896}
    s_mul_i32 s30, s28, {HAT}
    s_lshl_b32 s28, s47, 7
    s_add_u32 s29, s29, s28
    s_lshl_b32 s28, s27, 6
    s_add_u32 s29, s29, s28
    s_mul_i32 s35, s26, {2*HAT}
    s_sub_u32 s35, {HAT}, s35
    s_lshl_b32 s28, s23, 11
    s_add_u32 s30, s30, s28
    s_add_u32 s38, s30, {WS_HA:#x}
    s_add_u32 s39, s25, 1
    s_cmp_eq_u32 s39, 14
    s_cselect_b32 s39, 0, s39
    s_lshl_b32 s39, s39, 13
    s_add_u32 s30, s38, s39
    s_add_u32 s31, s30, s35
    s_lshl_b32 s34, s24, 9
    s_add_u32 s34, s34, {WS_F4:#x}
    s_and_b32 s28, s25, 3
    s_lshl_b32 s28, s28, 7
    s_lshr_b32 s32, s25, 2
    s_lshl_b32 s32, s32, 2
    s_add_u32 s28, s28, s32
    s_add_u32 s28, s28, s34
    v_mov_b32 v7, s42
    v_mul_u32_u24 v1, {2*128+12}, v2
    s_cmp_lt_u32 s25, 2
    s_cselect_b32 s32, 3, 1
    s_mov_b32 s33, 0
    v_and_b32 v15, 3, v2
    v_lshlrev_b32 v15, 7, v15
    """)
    for i in range(64):
        A(f"v_mov_b32 v{ACC4+i}, 0")
    A(f"""
    s_waitcnt vmcnt(0)
    s_barrier                            ; BX
    s_cmp_lg_u32 s23, 0
    s_cbranch_scc1 C_nf4
    s_mov_b64 exec, s[32:33]
    buffer_store_dword v7, v1, s[60:63], s28 offen sc1
    s_mov_b64 exec, -1
    """)
    A.label("C_nf4")
    A("s_cmp_eq_u32 s26, 0")
    A("s_cbranch_scc1 C_nsw")
    for i in range(8):
        A(f"v_swap_b32 v{O+i}, v{O+8+i}")
    A.label("C_nsw")
    stamp(A, 12)

    def ardsl(st, base):
        sl = st % 9
        out = []
        for kk in range(2):
            for dt in range(2):
                for j in range(2):
                    off = sl * 16384 + 2048 * kk + 1024 * j
                    reg = 8 + dt + 2 * (off >> 16)
                    d = base + 8 * kk + 4 * dt + 2 * j
                    out.append(('ds', f"ds_read_b64_tr_b16 {v(d,2)}, v{reg} offset:{off & 0xffff}", R(d, 2)))
        return out

    def bbuf(st): return BF + 16 * ((st + 2) % NB)

    def mf(st, kk, dt, tt):
        a = AF + 16 * (st % 5) + 8 * kk + 4 * dt
        b = bbuf(st) + (8 * tt + 4 * kk if st == 0 else 8 * kk + 4 * tt)
        c = ACC4 + 16 * (2 * dt + tt)
        return ('use', f"v_mfma_f32_32x32x16_bf16 {v(c,16)}, {v(a,4)}, {v(b,4)}, {v(c,16)}", R(a, 4))

    assert bbuf(0) == O
    S = Sched()
    for st in range(5):
        S.run(ardsl(st, AF + 16 * st), A)
    S.run([mf(0, kk, dt, tt) for kk in range(2) for dt in range(2) for tt in range(2)], A)
    A(f"""
    s_waitcnt lgkmcnt(0)
    s_barrier                            ; BY
    """)
    S = Sched()
    S.run(ardsl(5, AF), A)
    A(f"""
    s_cmp_lg_u32 s23, 0
    s_cbranch_scc1 C_f4_got
    """)
    poll(A, "C_f4", f"buffer_load_dwordx4 {v(BF,4)}, v15, s[60:63], s34 offen sc1", q4_ok(BF))

    def bl(i):
        st, kk, tt = i // 4, (i // 2) % 2, i % 2
        out = [('op', f"buffer_load_dwordx4 {v(bbuf(st)+8*kk+4*tt,4)}, v6, s[60:63], s{30+tt} offen offset:{1024*kk} sc1")]
        if i % 4 == 3:
            out += [('op', x) for x in f"""s_add_u32 s39, s39, 8192
            s_cmp_eq_u32 s39, {14*8192}
            s_cselect_b32 s39, 0, s39
            s_add_u32 s30, s38, s39
            s_add_u32 s31, s30, s35""".split("\n")]
        return out

    A("s_barrier                            ; BZ")
    if STAMP: S.q = []
    stamp(A, 13)
    issued = 4 + 4 * int(OPT.get("b0", 3))
    for i in range(4, issued):
        S.run(bl(i), A)
    stamp(A, 16)
    FR = AF
    for st in range(1, 13):
        if st == 2:
            stamp(A, 17); S.q = []
        items = []
        for kk in range(2):
            items.append(('op', f"s_waitcnt vmcnt({issued - (4*st + 2*kk + 2)})"))
            for dt in range(2):
                for tt in range(2):
                    items.append(mf(st, kk, dt, tt))
                    if issued < 56 and issued < 4 * (st + NB):
                        items += bl(issued); issued += 1
        S.run(items, A)
        if st + 5 < 14:
            S.run(ardsl(st + 5, AF + 16 * (st % 5)), A)
        if st == 9:
            A("s_waitcnt lgkmcnt(0)")
            S.q = []
            A("s_barrier                            ; BR")
        if st == 10:
            srd(A, 8, 54, 0, L * D * 2)
            A(f"""
            v_and_b32 v1, 31, v2
            s_lshl_b32 s28, s26, 7
            v_lshl_add_u32 v7, v1, 2, s28
            v_add_u32 v7, {P4_X+8192}, v7
            ds_read_b32 v{FR+8}, v7
            """)
            for q in range(4):
                A(f"ds_read_b64_tr_b16 {v(FR+2*q,2)}, v14 offset:{1024*q}")
            A(f"""
            v_mul_u32_u24 v1, 896, v1
            v_lshl_add_u32 v1, v4, 4, v1
            s_mul_i32 s28, s23, 12288
            v_add_u32 v5, s28, v6
            """)
            for i in range(1, 4):
                A(f"""
                s_xor_b32 s28, s23, {i}
                s_mul_i32 s28, s28, 12288
                v_add_u32 v{8+i}, s28, v6
                """)
    def send(i):
        return [('op', f"ds_write_b128 v{8+i}, {v(ACC4+16*i+4*q,4)} offset:{(i-1)*4096 + q*1024}") for q in range(4)]
    T = lambda i, kk: mf(13, kk, i >> 1, i & 1)
    items = [('op', "s_waitcnt vmcnt(0)"), T(3, 0), T(2, 0), T(3, 1), T(2, 1), T(1, 0), T(1, 1), T(0, 0), ('op', "s_nop 7")]
    items += send(3)[:1] + [T(0, 1)] + send(3)[1:] + send(2) + send(1)
    S.run(items, A)
    stamp(A, 18)
    A(f"""
    s_waitcnt lgkmcnt(0)
    s_barrier                            ; BE
    """)
    stamp(A, 19)
    PR = 160
    items = []
    for q in range(4):
        for i in range(3):
            d = PR + 16 * i + 4 * q
            items.append(('ds', f"ds_read_b128 {v(d,4)}, v5 offset:{i*4096 + q*1024}", R(d, 4)))
    OO = 96
    HX = 104
    for i in range(8):
        items.append(('op', f"v_lshlrev_b32 v{HX+2*i}, 16, v{FR+i}"))
        items.append(('op', f"v_and_b32 v{HX+2*i+1}, 0xffff0000, v{FR+i}"))
    for q in range(4):
        for h in range(2):
            a = ACC4 + 4 * q + 2 * h
            p0, p1, p2 = (PR + 16 * i + 4 * q + 2 * h for i in range(3))
            items.append(('use', f"v_pk_add_f32 {v(p0,2)}, {v(p0,2)}, {v(p1,2)}", R(p0, 2) + R(p1, 2)))
            items.append(('use', f"v_pk_add_f32 {v(a,2)}, {v(a,2)}, {v(p2,2)}", R(p2, 2)))
            for ln in f"""v_pk_add_f32 {v(a,2)}, {v(a,2)}, {v(p0,2)}
            v_pk_fma_f32 {v(a,2)}, {v(a,2)}, {v(FR+8,2)}, {v(HX+4*q+2*h,2)} op_sel_hi:[1,0,1]
            v_cvt_pk_bf16_f32 v{OO+2*q+h}, v{a}, v{a+1}""".split("\n"):
                items.append(('op', ln))
        if q & 1:
            o = OO + 2 * (q - 1)
            for ln in f"""s_nop 1
            v_permlane32_swap_b32 v{o}, v{o+2}
            v_permlane32_swap_b32 v{o+1}, v{o+3}
            buffer_store_dwordx4 {v(o,4)}, v1, s[8:11], s29 offen offset:{32*(q>>1)}""".split("\n"):
                items.append(('op', ln))
    Sched().run(items, A)
    stamp_end(A)
    A("s_endpgm")


def gen_loader(A):
    A.label("LOADER")
    WD = 32
    gen_xu_store(A)
    if OPT.get("pf0", "late") == "late":
        A(f"""
        v_min_u32 v16, 55, v2
        s_mul_i32 s36, s3, {56*128}
        v_lshl_add_u32 v16, v16, 7, s36
        s_cmp_eq_u32 s22, 4
        s_cselect_b32 s34, s48, s50
        s_cselect_b32 s35, s49, s51
        s_cmp_ge_u32 s22, 6
        s_cselect_b32 s34, s52, s34
        s_cselect_b32 s35, s53, s35
        global_load_dword v31, v16, s[34:35]
        """)
    A("""
    s_waitcnt lgkmcnt(0)
    s_barrier                            ; Bc
    """)
    stamp(A, 6)
    A(f"""
    v_lshrrev_b32 v4, 5, v2              ; h
    v_lshrrev_b32 v9, 4, v2
    v_lshlrev_b32 v10, 2, v9
    v_and_b32 v11, 15, v2
    v_xor_b32 v10, v10, v11
    s_lshl_b32 s26, s23, 3
    v_add_u32 v9, s26, v9
    v_lshlrev_b32 v11, 8, v9
    v_lshl_add_u32 v11, v10, 4, v11
    v_mul_u32_u24 v12, 3584, v9
    v_lshl_add_u32 v12, v10, 4, v12
    s_lshl_b32 s26, s25, 8
    v_add_u32 v12, s26, v12
    v_add_u32 v13, {4*3584-1024}, v12
    s_lshl_b32 s27, s23, 11              ; q*2048
    s_mov_b32 s29, 0                     ; W soffset
    s_mul_i32 s30, s24, {HTB}
    s_add_u32 s30, s30, {WS_HT:#x}         ; h soffset
    v_and_b32 v14, 31, v2
    v_lshlrev_b32 v14, 4, v14
    v_mul_u32_u24 v15, {F*4}, v4
    v_add_u32 v14, v14, v15
    v_lshrrev_b32 v3, 3, v2
    v_and_b32 v5, 7, v2
    s_lshl_b32 s28, s23, 5
    v_add_u32 v6, s28, v3
    v_mul_u32_u24 v16, 896, v6
    v_lshl_add_u32 v16, v5, 4, v16
    s_lshl_b32 s28, s47, 7
    v_add_u32 v16, s28, v16
    v_bfe_u32 v7, v2, 4, 1
    v_lshlrev_b32 v7, 2, v7
    v_xor_b32 v7, v7, v5
    v_lshlrev_b32 v24, 7, v6
    v_lshl_add_u32 v24, v7, 4, v24
    v_add_u32 v25, 0x10000, v24
    v_add_u32 v26, 0x20000, v24
    s_lshl_b32 s28, s23, 4
    v_add_u32 v6, s28, v3
    v_lshlrev_b32 v18, 8, v6
    v_lshl_add_u32 v18, v7, 4, v18
    v_add_u32 v19, 1024, v18
    v_lshlrev_b32 v20, 2, v2
    v_and_b32 v21, 7, v2
    v_lshlrev_b32 v21, 7, v21
    s_add_u32 s38, s40, {WS_F3:#x}
    s_mul_i32 s35, s25, {128*896:#x}
    """)
    srd(A, 4, 48, 0, D * F * 2)
    srd(A, 8, 50, 0, D * F * 2)
    srd(A, 12, 52, 0, D * F * 2)
    V = VM(A)
    V.q = []

    def wdma(st):
        base = (st % G1_SLOTS) * G1_STAGE
        A(f"s_add_u32 m0, s27, {base+8192}")
        A("s_nop 0")
        V.op("buffer_load_dwordx4 v12, s[4:7], s29 offen lds", ("s", st))
        V.op("buffer_load_dwordx4 v13, s[4:7], s29 offen offset:1024 lds", ("s", st))
        A(f"s_add_u32 m0, s27, {base+16384}")
        A("s_nop 0")
        V.op("buffer_load_dwordx4 v12, s[8:11], s29 offen lds", ("s", st))
        V.op("buffer_load_dwordx4 v13, s[8:11], s29 offen offset:1024 lds", ("s", st))
        A(f"s_add_u32 s29, s29, {32*3584:#x}")

    def hdma(st):
        base = (st % G1_SLOTS) * G1_STAGE
        A(f"s_add_u32 m0, s27, {base}")
        A("s_nop 0")
        V.op("buffer_load_dwordx4 v11, s[60:63], s30 offen sc1 lds", ("s", st))
        V.op("buffer_load_dwordx4 v11, s[60:63], s30 offen offset:1024 sc1 lds", ("s", st))
        A("s_add_u32 s30, s30, 8192")

    wdn = [0]

    def wdload(n):
        for _ in range(n):
            i = wdn[0]
            V.op(f"buffer_load_dwordx4 {v(WD+4*i,4)}, v16, s[12:15], s35 offen", ("w", i // 4))
            if i % 4 != 3:
                A("s_add_u32 s35, s35, 7168")
            else:
                A(f"""
                s_add_u32 s35, s35, {128*896 - 3*7168:#x}
                s_cmp_eq_u32 s35, {14*128*896:#x}
                s_cselect_b32 s35, 0, s35
                """)
            wdn[0] += 1

    def wdwrite(st):
        off = (st % 9) * 16384
        for i in range(4):
            A(f"ds_write_b128 v{24 + (off >> 16)}, {v(WD+16*st+4*i,4)} offset:{(off & 0xffff) + 1024*i}")

    W0 = int(OPT.get("w0", 2))
    for st in range(W0):
        wdma(st)
    wdload(int(OPT.get("n0", 16)))
    stamp(A, 7)
    A("s_barrier                            ; BH")
    stamp(A, 8)
    V.wait(("s", 3), ("w", 1))
    for st in range(W0, 6):
        wdma(st)
    wdload(int(OPT.get("n1", 0)))
    A("s_barrier                            ; BS")
    stamp(A, 9)
    A(f"s_setprio {OPT.get('prio3', 1)}")
    for st in range(6):
        hdma(st)
    V.wait(("s", 0))
    A("s_barrier                            ; B0")
    stamp(A, 10)
    WSCH = [int(x) for x in OPT.get("wsch", "6.6.0.0.0.8.10.10").split(".")]
    wdload(min(WSCH[0], 56 - wdn[0]))
    V.wait(("s", 1), ("s", 2))
    nxt = 6
    for b in range(1, 8):
        A(f"s_barrier                            ; B{b}")
        while nxt < 14 and nxt <= 2 * b + 4:
            hdma(nxt); wdma(nxt); nxt += 1
        if b == 5:
            V.op("buffer_load_dwordx4 v[28:31], v21, s[60:63], s38 offen sc1", "f3")
        if b == 6:
            V.wait("f3")
            A(q4_ok(28))
            A("s_cbranch_scc1 L_f3_got")
            poll(A, "L_f3", "buffer_load_dwordx4 v[28:31], v21, s[60:63], s38 offen sc1", q4_ok(28))
            A(f"""
            s_lshl_b32 s26, s25, 9
            s_add_u32 s26, s26, {WS_CS:#x}
            s_mov_b32 m0, {G1_X}
            s_lshl_b32 s28, s24, 9
            """)
            V.op("buffer_load_dwordx4 v14, s[60:63], s26 offen sc1 lds", "x")
            A(f"""
            s_and_b32 s26, s23, 1
            s_lshl_b32 s26, s26, 8
            s_add_u32 s28, s28, s26
            s_add_u32 s28, s28, {WS_MEAN:#x}
            s_add_u32 m0, s26, {G1_X+1024}
            s_lshl_b32 s31, s24, 1
            """)
            V.op("buffer_load_dword v20, s[60:63], s28 offen sc1 lds", "x")
            A(f"""
            s_add_u32 s31, s31, s46
            s_lshl_b32 s31, s31, 8
            s_add_u32 s31, s31, {WS_R2:#x}
            s_mov_b32 m0, {P4_X+8192}
            s_mul_i32 s34, s24, {HTB}
            """)
            V.op("buffer_load_dword v20, s[60:63], s31 offen sc1 lds", "x")
            A(f"""
            s_lshl_b32 s28, s46, 7
            s_add_u32 s34, s34, s28
            s_lshl_b32 s28, s47, 14
            s_add_u32 s34, s34, s28
            s_add_u32 s34, s34, {WS_HT:#x}
            s_add_u32 m0, s27, {P4_X}
            s_nop 0
            """)
            V.op("buffer_load_dwordx4 v18, s[60:63], s34 offen sc1 lds", "x")
            V.op("buffer_load_dwordx4 v19, s[60:63], s34 offen offset:1024 sc1 lds", "x")
        wdload(min(WSCH[b], 56 - wdn[0]))
        if b < 6:
            V.wait(("s", 2 * b + 1), ("s", 2 * b + 2))
        if b == 6:
            V.wait("x")
    stamp(A, 11)
    A("s_setprio 0")
    A("s_barrier                            ; B8")
    assert wdn[0] == 56
    for st in range(9):
        V.wait(("w", st))
        wdwrite(st)
    V.drain("lgkmcnt(0)")
    A("s_barrier                            ; BX")
    stamp(A, 12)
    A("s_barrier                            ; BY")
    for st in range(9, 14):
        wdwrite(st)
    A("s_waitcnt lgkmcnt(0)")
    A("s_barrier                            ; BZ")
    stamp(A, 13)
    if "hapf" in OPT:
        A(f"""
        v_subrev_u32 v3, 256, v0
        s_lshl_b32 s28, s47, 8
        v_add_u32 v3, s28, v3                ; 0..1791
        v_and_b32 v5, 1, v3
        v_mul_u32_u24 v5, {HAT}, v5
        v_lshrrev_b32 v3, 1, v3
        v_lshl_add_u32 v3, v3, 7, v5
        s_lshl_b32 s28, s24, 1
        s_add_u32 s28, s28, s46
        s_mul_i32 s28, s28, {2*HAT}
        s_add_u32 s28, s28, {WS_HA:#x}
        buffer_load_dword v5, v3, s[60:63], s28 offen sc1
        """)
    A("s_barrier                            ; BR")
    A("s_barrier                            ; BE")
    stamp_end(A)
    A("s_endpgm")


def main(path):
    ref = open(f"cdna_kernels/{NAME}.s.ref").read().split("\n")
    head = [l for l in ref if l.startswith(";") and "@launch" not in l]
    A = Asm()
    for l in head:
        A.raw(l)
    A.raw(f"; @launch grid=({GRID},1,1) block=(512,1,1) lds={LDS}")
    A.raw('.amdgcn_target "amdgcn-amd-amdhsa--gfx950"')
    A.raw(".text")
    A.raw(f".globl {KNAME}")
    A.raw(".p2align 8")
    A.raw(f".type {KNAME},@function")
    A.label(KNAME)
    A(f"""
    s_cmp_ge_u32 s2, {GRID}
    s_cbranch_scc1 EXIT
    s_load_dwordx16 s[4:19], s[0:1], {KA['A_re']}
    s_load_dwordx2 s[44:45], s[0:1], {KA['x']}
    s_load_dwordx8 s[48:55], s[0:1], {KA['Wg']}
    s_load_dwordx4 s[64:67], s[0:1], {KA['dbg']}
    s_getpc_b64 s[58:59]
    """)
    A.label("PC0")
    A(f"""
    s_lshr_b32 s22, s2, 3
    s_mul_i32 s22, s22, {NPF*128}
    v_subrev_u32 v1, 448, v0
    v_cmp_gt_u32 vcc, {NPF}, v1
    v_lshl_add_u32 v1, v1, 7, s22
    v_min_u32 v1, TABLE_END-PC0-4, v1
    s_and_saveexec_b64 s[24:25], vcc
    s_cbranch_execz PF_skip
    global_load_dword v127, v1, s[58:59]
    """)
    A.label("PF_skip")
    A(f"""
    s_mov_b64 exec, s[24:25]
    v_lshrrev_b32 v1, 6, v0
    v_and_b32 v2, 63, v0                 ; lane
    s_nop 0
    v_readfirstlane_b32 s22, v1          ; wave
    """)
    stamp_begin(A)
    A(f"""
    s_waitcnt lgkmcnt(0)
    s_and_b32 s23, s22, 3
    s_mov_b32 s20, s66
    s_mov_b32 s21, s67
    s_mov_b32 s60, s66
    s_mov_b32 s61, s67
    s_mov_b32 s62, {WS_USED:#x}
    s_mov_b32 s63, 0x00020000
    """)
    gen_p0_loads(A)
    A(f"""
    s_cmp_lt_u32 s2, {NAUX}
    s_cbranch_scc1 AUX
    """)
    gen_phase1(A)
    A("""
    s_cmp_ge_u32 s22, 4
    s_cbranch_scc1 LOADER
    """)
    gen_consumer(A)
    gen_loader(A)
    gen_aux(A)
    A.label("EXIT")
    A("s_endpgm")
    A.label("CODE_END")
    kg_table(A)
    A.raw(f""".section .rodata,"a"
.p2align 6
.amdhsa_kernel {KNAME}
  .amdhsa_next_free_vgpr 256
  .amdhsa_next_free_sgpr 100
  .amdhsa_accum_offset 256
  .amdhsa_group_segment_fixed_size 0
  .amdhsa_kernarg_size 128
  .amdhsa_user_sgpr_count 2
  .amdhsa_user_sgpr_kernarg_segment_ptr 1
  .amdhsa_system_sgpr_workgroup_id_x 1
.end_amdhsa_kernel
""")
    open(path, "w").write(A.text())


if __name__ == "__main__":
    main(sys.argv[1] if len(sys.argv) > 1 else f"km.s")
```

```python
import sys, os

NAME = "sequential_preLN__ssm_conv_s4__glu_gated_reglu__prompt"
KNAME = NAME + "_kernel"
L, D, N, F = 2048, 448, 256, 1792

WS_EPOCH = 0x0000000
WS_ST1 = 0x0004000
WS_CS = 0x0010000
WS_R2 = 0x0020000
WS_MEAN = 0x0030000
NREP = 4
REPS = 64 * 128 + 128
WS_F1 = 0x0040000
WS_F2 = 0x0050000
WS_F3 = 0x0060000
WS_F4 = 0x0070000
WS_XU = 0x0800000
WS_HT = 0x0100000
WS_HA = 0x1000000
WS_DBG = 0x2000000
WS_SIZE = 0x10000000
WS_USED = 0x1800000
HTB = D * 256 + int(os.environ.get("HPAD", "256"))
XUS = 32768 + int(os.environ.get("XPAD", "256"))
HAT = 112 * 1024

KA = dict(x=0, A_re=8, A_im=16, B_re=24, B_im=32, C_re=40, C_im=48, log_dt=56, Dskip=64,
          B_x=72, Wg=80, Wu=88, Wd=96, out=104, dbg=112, ws=120)
STAMP = os.environ.get("STAMP", "0") == "1"
OPT = dict(kv.split("=") for kv in os.environ.get("OPT", "").split(",") if kv)
NSTAMP = 22


class Asm:
    def __init__(self):
        self.lines = []

    def __call__(self, s):
        for ln in s.strip("\n").split("\n"):
            ln = ln.strip()
            if ln:
                self.lines.append("    " + ln)

    def label(self, n):
        self.lines.append(n + ":")

    def raw(self, s):
        self.lines.append(s)

    def text(self):
        return "\n".join(self.lines) + "\n"


def v(a, n=1):
    return f"v{a}" if n == 1 else f"v[{a}:{a+n-1}]"


def s(a, n=1):
    return f"s{a}" if n == 1 else f"s[{a}:{a+n-1}]"


def R(a, n):
    return list(range(a, a + n))


def cmul(A, d, x, y, t):
    A(f"v_pk_mul_f32 {v(t,2)}, {v(x,2)}, {v(y,2)} op_sel:[0,0] op_sel_hi:[1,0]")
    A(f"v_pk_fma_f32 {v(d,2)}, {v(x,2)}, {v(y,2)}, {v(t,2)} op_sel:[1,1,0] op_sel_hi:[0,1,1] neg_lo:[1,0,0]")


def srd(A, sd, sbase, off, nbytes):
    if off:
        A(f"s_add_u32 {s(sd)}, {s(sbase)}, {off:#x}")
        A(f"s_addc_u32 {s(sd+1)}, {s(sbase+1)}, 0")
    else:
        A(f"s_mov_b32 {s(sd)}, {s(sbase)}")
        A(f"s_mov_b32 {s(sd+1)}, {s(sbase+1)}")
    A(f"s_mov_b32 {s(sd+2)}, {nbytes:#x}")
    A(f"s_mov_b32 {s(sd+3)}, 0x00020000")


_late = [False]
def stamp(A, i):
    if STAMP and not ('p0st' in OPT and _late[0] and 14 <= i <= 19):
        A("s_memtime s[68:69]")
        A("s_waitcnt lgkmcnt(0)")
        A(f"s_mov_b32 s{72+i}, s68")


def stamp_begin(A):
    if STAMP:
        for i in range(NSTAMP):
            A(f"s_mov_b32 s{72+i}, 0")
        A("s_memrealtime s[68:69]")
        A("s_waitcnt lgkmcnt(0)")
        A("s_mov_b32 s70, s68")
        stamp(A, 0)


def stamp_end(A):
    if not STAMP:
        return
    stamp(A, NSTAMP - 2)
    A("s_waitcnt vmcnt(0)")
    stamp(A, NSTAMP - 1)
    A(f"""
    s_memrealtime s[68:69]
    s_waitcnt lgkmcnt(0)
    s_add_u32 s96, s20, {WS_DBG:#x}
    s_addc_u32 s97, s21, 0
    s_mov_b32 s98, 0x100000
    s_mov_b32 s99, 0x00020000
    v_lshrrev_b32 v1, 6, v0
    s_lshl_b32 s71, s2, 3
    v_add_u32 v1, s71, v1
    v_lshlrev_b32 v1, 7, v1
    """)
    for i in range(NSTAMP):
        A(f"v_mov_b32 v2, s{72+i}")
        A(f"buffer_store_dword v2, v1, s[96:99], 0 offen offset:{4*i}")
    if "spin" in OPT:
        n = len(A.lines)
        A(f"""
        s_cmp_lg_u32 s2, 100
        s_cbranch_scc1 SPN{n}
        s_cmp_lg_u32 s22, 0
        s_cbranch_scc1 SPN{n}
        s_memrealtime s[94:95]
        s_waitcnt lgkmcnt(0)
        ; realtime ticks per ... use cycle stamps: wait 2*(stamp_i - stamp_0) cycles
        s_sub_u32 s69, s{72+int(OPT['spin'])}, s72
        s_lshl_b32 s69, s69, 1
        s_memtime s[94:95]
        s_waitcnt lgkmcnt(0)
        s_add_u32 s69, s69, s94
        """)
        A.label(f"SPL{n}")
        A(f"""
        s_sleep 4
        s_memtime s[94:95]
        s_waitcnt lgkmcnt(0)
        s_sub_u32 s95, s94, s69
        s_cmp_lt_i32 s95, 0
        s_cbranch_scc1 SPL{n}
        """)
        A.label(f"SPN{n}")
    if "rspin" in OPT:
        n = len(A.lines)
        A(f"""
        s_cmp_lg_u32 s2, {OPT['rspin']}
        s_cbranch_scc1 SPN{n}
        s_cmp_lg_u32 s22, 0
        s_cbranch_scc1 SPN{n}
        s_sub_u32 s69, s68, s70
        s_lshl_b32 s69, s69, 1
        s_add_u32 s69, s69, s68
        """)
        A.label(f"SPL{n}")
        A(f"""
        s_sleep 4
        s_memrealtime s[94:95]
        s_waitcnt lgkmcnt(0)
        s_sub_u32 s95, s94, s69
        s_cmp_lt_i32 s95, 0
        s_cbranch_scc1 SPL{n}
        """)
        A.label(f"SPN{n}")
    if "dbg" in OPT:
        n = len(A.lines)
        A(f"""
        s_cmp_lg_u32 s2, {OPT['dbg']}
        s_cbranch_scc1 DBG{n}
        s_cmp_lg_u32 s22, 0
        s_cbranch_scc1 DBG{n}
        s_mov_b32 s92, s64
        s_mov_b32 s93, s65
        s_mov_b32 s94, 256
        s_mov_b32 s95, 0x00020000
        s_sub_u32 s69, s68, s70
        v_mov_b32 v2, s69
        buffer_store_dword v2, off, s[92:95], 0
        """)
        for i in range(1, NSTAMP):
            A(f"s_sub_u32 s69, s{72+i}, s72")
            A(f"v_mov_b32 v2, s69")
            A(f"buffer_store_dword v2, off, s[92:95], 0 offset:{4*i}")
        A.label(f"DBG{n}")
    A("v_mov_b32 v2, s68")
    A("buffer_store_dword v2, v1, s[96:99], 0 offen offset:124")
    A("v_mov_b32 v2, s70")
    A("buffer_store_dword v2, v1, s[96:99], 0 offen offset:120")


class Sched:
    def __init__(self):
        self.q = []

    def run(self, items, emit):
        for it in items:
            if it[0] == 'ds':
                emit(it[1])
                self.q.append(set(it[2]))
            elif it[0] == 'use':
                need = -1
                for i, d in enumerate(self.q):
                    if d & set(it[2]):
                        need = i
                if need >= 0:
                    n = min(len(self.q) - 1 - need, 15)
                    emit(f"s_waitcnt lgkmcnt({n})")
                    self.q = self.q[len(self.q) - n:] if n else []
                emit(it[1])
            elif it[0] == 'drain':
                emit("s_waitcnt lgkmcnt(0)")
                self.q = []
            else:
                emit(it[1])


class VM:
    def __init__(self, A):
        self.A = A
        self.q = []

    def op(self, text, tag):
        self.A(text)
        self.q.append(tag)
        assert len(self.q) <= 63, "too many outstanding vmem ops"

    def wait(self, *tags, extra=""):
        need = -1
        for i, t in enumerate(self.q):
            if t in tags:
                need = i
        if need >= 0:
            n = len(self.q) - 1 - need
            self.A(f"s_waitcnt vmcnt({n}) {extra}")
            self.q = self.q[len(self.q) - n:] if n else []
        elif extra:
            self.A(f"s_waitcnt {extra}")

    def drain(self, extra=""):
        self.A(f"s_waitcnt vmcnt(0) {extra}")
        self.q = []


def poll(A, name, load, okcode, cnt=36, sleep=1):
    A(f"s_mov_b32 s{cnt}, 0x40000")
    A.label(f"{name}_poll")
    A(load)
    A("s_waitcnt vmcnt(0)")
    A(okcode)
    A(f"""
    s_cbranch_scc1 {name}_got
    s_sub_u32 s{cnt}, s{cnt}, 1
    s_cmp_eq_u32 s{cnt}, 0
    s_cbranch_scc1 {name}_got
    s_sleep {sleep}
    s_branch {name}_poll
    """)
    A.label(f"{name}_got")


def flag_set(A, region, idx_sgpr, nline, nrep, after):
    A(f"""
    s_lshr_b32 s28, {idx_sgpr}, 2
    s_lshl_b32 s28, s28, 7
    s_and_b32 s32, {idx_sgpr}, 3
    s_lshl_b32 s32, s32, 2
    s_add_u32 s28, s28, s32
    s_add_u32 s28, s28, {region:#x}
    v_mul_u32_u24 v1, {REPS}, v2
    v_mov_b32 v3, s42
    s_mov_b64 exec, {(1<<nrep)-1}
    buffer_store_dword v3, v1, s[60:63], s28 offen sc1
    s_mov_b64 exec, -1
    """)


def q4_ok(r):
    return (f"v_xor_b32 v{r}, s42, v{r}\nv_xor_b32 v{r+1}, s42, v{r+1}\nv_xor_b32 v{r+2}, s42, v{r+2}\nv_xor_b32 v{r+3}, s42, v{r+3}\n"
            f"v_or3_b32 v{r}, v{r}, v{r+1}, v{r+2}\nv_or_b32 v{r}, v{r}, v{r+3}\nv_cmp_eq_u32 vcc, 0, v{r}\ns_nop 3\ns_cmp_eq_u64 vcc, exec")


def reduce64(A, regs, tmp, mid=None):
    for ctl in ("quad_perm:[1,0,3,2]", "quad_perm:[2,3,0,1]", "row_half_mirror", "row_mirror"):
        A("s_nop 0")
        for r in regs:
            A(f"v_add_f32_dpp v{r}, v{r}, v{r} {ctl} row_mask:0xf bank_mask:0xf")
    if mid: A(mid)
    for sw in ("v_permlane16_swap_b32", "v_permlane32_swap_b32"):
        for i, r in enumerate(regs):
            A(f"v_mov_b32 v{tmp+i}, v{r}")
        A("s_nop 1")
        for i, r in enumerate(regs):
            A(f"{sw} v{r}, v{tmp+i}")
        for i, r in enumerate(regs):
            A(f"v_add_f32 v{r}, v{r}, v{tmp+i}")


def reduce8(A, r):
    A(f"""
    s_nop 1
    v_add_f32_dpp v{r}, v{r}, v{r} quad_perm:[1,0,3,2] row_mask:0xf bank_mask:0xf
    s_nop 1
    v_add_f32_dpp v{r}, v{r}, v{r} quad_perm:[2,3,0,1] row_mask:0xf bank_mask:0xf
    s_nop 1
    v_add_f32_dpp v{r}, v{r}, v{r} row_half_mirror row_mask:0xf bank_mask:0xf
    """)


def var_to_s(A, r):
    A(f"""
    v_max_f32 v{r}, 0, v{r}
    v_cvt_pk_bf16_f32 v{r}, v{r}, v{r}
    v_lshlrev_b32 v{r}, 16, v{r}
    v_add_f32 v{r}, 0x3727c5ac, v{r}
    v_cvt_pk_bf16_f32 v{r}, v{r}, v{r}
    v_lshlrev_b32 v{r}, 16, v{r}
    v_sqrt_f32 v{r}, v{r}
    s_nop 0
    v_cvt_pk_bf16_f32 v{r}, v{r}, v{r}
    v_lshlrev_b32 v{r}, 16, v{r}
    """)


NAUX, NMAIN = 32, 224
GRID = 256
KG_ROW = 1056
KG_CH = 57 * KG_ROW
KG_TB = {0: 0, 1: 16, 3: 32, 2: 48}
KL_S = 8704
KPOS = lambda l: (l & 7) * 272 + (l >> 3)
KALPHA = [[0, 4, 128, 132], [512, 516, 1024, 1536], [256, 384, 2048, 2049]]
CV_BASE = 98304 + 64
CV_KS = 4160
CV_US = 4576
CV_KC = 4 * CV_KS
CV_UX = CV_BASE + 2 * CV_KC + 64
CV_XOFF = 2 * CV_US
CV_UD = CV_XOFF + 4096
KL_BASE = CV_UX
G1_STAGE = 24576
G1_SLOTS = 6
G1_X = G1_SLOTS * G1_STAGE
P4_SLOT = [0, 3, 4, 5, 6, 7, 8, 1, 2, 0, 3, 4, 5, 6]
P4_X = 149504
WD_EARLY = int(OPT.get("wde", 32))
LDS = 158208
assert CV_UX + 2 * CV_UD <= LDS and P4_X + 8192 + 256 <= LDS


def bf16_round_int(l):
    if l <= 256:
        return l
    sh = l.bit_length() - 8
    q, r = l >> sh, l & ((1 << sh) - 1)
    half = 1 << (sh - 1)
    if r > half or (r == half and (q & 1)):
        q += 1
    return q << sh


def kg_table(A):
    A.raw(".p2align 6")
    A.raw(".type KG_TABLE,@object")
    A.label("KG_TABLE")
    rows = []
    for tid in range(512):
        w, lane = tid >> 6, tid & 63
        ch, o = tid >> 8, tid & 255
        j, g = lane & 15, lane >> 4
        T = min(w & 3, 2)
        vals = [KL_BASE + ch * KL_S + 4 * KPOS(bf16_round_int(2047 - 8 * o - e)) for e in range(8)]
        vals += [KL_BASE + ch * KL_S + 4 * (KPOS(KALPHA[T][g] + [r, 128 * r, 2 * r][T]) + j) for r in range(4)]
        rows.append(vals)
    for part in range(3):
        for tid in range(512):
            A.raw(".long " + ", ".join(str(x) for x in rows[tid][4 * part:4 * part + 4]))
    A.raw(".size KG_TABLE, 24576")
    A.label("TABLE_END")


P0_LDS = 122880
NPF = 13


def gen_p0_loads(A):
    A(f"""
    s_lshl_b32 s26, s2, 3
    s_add_u32 s26, s26, s22              ; row
    s_mul_i32 s26, s26, 896
    v_lshl_add_u32 v1, v2, 4, s26
    v_mov_b32 v96, 0
    v_mov_b32 v97, 0
    v_mov_b32 v98, 0
    v_mov_b32 v99, 0
    s_mov_b32 s32, -1
    s_mov_b32 s33, 0x00ffffff
    s_mov_b64 exec, s[32:33]
    global_load_dwordx4 v[96:99], v1, s[44:45]
    s_mov_b64 exec, 1
    buffer_load_dword v126, off, s[60:63], 0 sc1
    s_mov_b64 exec, -1
    """)


def gen_p0(A, uid, younger=0):
    X = 96
    A(f"""
    s_mov_b32 s26, 0x3f803f80
    v_mov_b32 v104, 0
    v_mov_b32 v105, 0
    s_mul_i32 s27, s22, 928
    s_add_u32 s27, s27, {P0_LDS}
    v_lshl_add_u32 v116, v2, 4, s27
    v_bfe_u32 v117, v2, 2, 2             ; r
    v_mul_u32_u24 v117, 928, v117
    v_and_b32 v118, 3, v2
    v_lshl_add_u32 v117, v118, 3, v117
    v_lshrrev_b32 v118, 4, v2            ; g
    v_lshl_add_u32 v117, v118, 5, v117
    s_min_u32 s34, s22, 6
    s_lshl_b32 s27, s34, 7
    s_add_u32 s27, s27, {P0_LDS}
    v_add_u32 v117, s27, v117
    v_lshrrev_b32 v118, 3, v2
    v_mul_u32_u24 v118, {XUS}, v118
    v_and_b32 v119, 7, v2
    v_lshl_add_u32 v118, v119, 4, v118
    s_mul_i32 s34, s34, {8*XUS}
    s_lshl_b32 s35, s2, 7
    s_add_u32 s34, s34, s35
    s_add_u32 s34, s34, {WS_XU:#x}
    s_lshl_b32 s35, s2, 6
    s_lshl_b32 s27, s22, 2
    s_add_u32 s35, s35, s27
    s_add_u32 s35, s35, {WS_ST1:#x}
    v_lshlrev_b32 v119, 5, v2
    s_waitcnt vmcnt({younger+1})
    s_mov_b64 exec, s[32:33]
    ds_write_b128 v116, {v(X,4)}
    s_mov_b64 exec, -1
    """)
    for i in range(4):
        A(f"v_dot2c_f32_bf16 v104, s26, v{X+i}")
        A(f"v_dot2c_f32_bf16 v105, v{X+i}, v{X+i}")
    A(f"""
    s_waitcnt lgkmcnt(0)
    s_barrier                            ; Bp
    ds_read_b64_tr_b16 v[100:101], v117
    ds_read_b64_tr_b16 v[102:103], v117 offset:{4*928}
    """)
    reduce64(A, [104, 105], 120, mid=f"s_waitcnt lgkmcnt(0)\nbuffer_store_dwordx4 v[100:103], v118, s[60:63], s34 offen sc1")
    A(f"""
    v_mul_f32 v104, 0x3b124925, v104     ; mean
    v_mul_f32 v105, 0x3b124925, v105
    v_fma_f32 v105, -v104, v104, v105
    v_cvt_pk_bf16_f32 v120, v104, v104
    v_lshlrev_b32 v120, 16, v120         ; m_bf
    """)
    var_to_s(A, 105)
    A(f"""
    v_rcp_f32 v121, v105
    v_cmp_eq_u32 vcc, 0, v2
    s_mov_b64 exec, 3
    s_nop 0
    v_cndmask_b32 v120, v121, v120, vcc
    buffer_store_dword v120, v119, s[60:63], s35 offen sc1
    s_mov_b64 exec, -1
    """)


def gen_f1_publish(A, name, also_f2=False, younger=0):
    A(f"""
    s_waitcnt vmcnt({younger})
    v_readfirstlane_b32 s41, v126        ; epoch
    s_barrier                            ; Bq
    s_mul_i32 s42, s41, 0x9e3779b1
    s_add_u32 s42, s42, 0x7f4a7c15
    s_cmp_lg_u32 s22, 0
    s_cbranch_scc1 {name}
    """)
    flag_set(A, WS_F1, "s2", 64, NREP, None)
    if also_f2:
        flag_set(A, WS_F2, "s2", 64, NREP, None)
    A.label(name)


def gen_aux(A):
    _late[0] = False
    A.label("AUX")
    X = 8
    gen_p0(A, 0)
    stamp(A, 1)
    gen_f1_publish(A, "AUX_f1", False)
    stamp(A, 2)
    S = 64
    A(f"""
    v_min_u32 v7, 447, v0
    v_mul_u32_u24 v1, 0x124a, v7
    v_lshrrev_b32 v1, 16, v1             ; rg
    v_mul_u32_u24 v2, 14, v1
    v_sub_u32 v2, v7, v2                 ; chunk
    v_mul_u32_u24 v3, 3584, v1
    v_lshl_add_u32 v3, v2, 4, v3
    s_and_b32 s26, s2, 15
    s_mul_i32 s12, s26, 224
    s_cmp_ge_u32 s2, 16
    s_cselect_b32 s4, s50, s48
    s_cselect_b32 s5, s51, s49
    """)
    srd(A, 8, 4, 0, D * F * 2)
    for j in range(14):
        A(f"buffer_load_dwordx4 {v(X+4*j,4)}, v3, s[8:11], s12 offen")
        if j < 13:
            A(f"s_add_u32 s12, s12, {32*3584:#x}")
    for i in range(8):
        A(f"v_mov_b32 v{S+i}, 0")
    for j in range(14):
        A(f"s_waitcnt vmcnt({13-j})")
        for q in range(4):
            A(f"""
            v_lshlrev_b32 v72, 16, v{X+4*j+q}
            v_and_b32 v73, 0xffff0000, v{X+4*j+q}
            v_pk_add_f32 {v(S+2*q,2)}, {v(S+2*q,2)}, v[72:73]
            """)
    A(f"""
    v_mul_u32_u24 v4, 464, v1
    v_lshl_add_u32 v4, v2, 5, v4
    ds_write_b128 v4, {v(S,4)}
    ds_write_b128 v4, {v(S+4,4)} offset:16
    v_and_b32 v5, 127, v0
    v_min_u32 v5, 111, v5                ; column
    v_lshrrev_b32 v6, 7, v0              ; part 0..3
    v_mul_u32_u24 v7, {8*464}, v6
    v_lshl_add_u32 v7, v5, 2, v7
    s_waitcnt lgkmcnt(0)
    s_barrier
    """)
    for i in range(8):
        A(f"ds_read_b32 v{X+i}, v7 offset:{464*i}")
    A("s_waitcnt lgkmcnt(0)")
    for st in (4, 2, 1):
        for i in range(st):
            A(f"v_add_f32 v{X+i}, v{X+i}, v{X+i+st}")
    A(f"""
    v_lshlrev_b32 v7, 9, v6
    v_lshl_add_u32 v7, v5, 2, v7
    ds_write_b32 v7, v{X} offset:16384
    v_lshlrev_b32 v7, 2, v5
    s_waitcnt lgkmcnt(0)
    s_barrier
    ds_read_b32 v{X}, v7 offset:16384
    ds_read_b32 v{X+1}, v7 offset:{16384+512}
    ds_read_b32 v{X+2}, v7 offset:{16384+1024}
    ds_read_b32 v{X+3}, v7 offset:{16384+1536}
    s_mul_i32 s12, s2, 448
    s_add_u32 s12, s12, {WS_CS:#x}
    s_waitcnt lgkmcnt(0)
    v_add_f32 v{X}, v{X}, v{X+1}
    v_add_f32 v{X+2}, v{X+2}, v{X+3}
    v_add_f32 v{X}, v{X}, v{X+2}
    v_cmp_gt_u32 vcc, 112, v0
    s_and_saveexec_b64 s[32:33], vcc
    s_cbranch_execz AUX_c
    buffer_store_dword v{X}, v7, s[60:63], s12 offen sc1
    """)
    A.label("AUX_c")
    A("s_mov_b64 exec, s[32:33]")
    stamp(A, 3)
    A(f"""
    v_and_b32 v2, 63, v0
    v_lshlrev_b32 v5, 7, v2
    s_and_b32 s28, s2, {NREP-1}
    s_mul_i32 s28, s28, {REPS}
    s_add_u32 s29, s28, {WS_F2:#x}
    s_waitcnt vmcnt(0)
    s_barrier
    s_cmp_lg_u32 s22, 0
    s_cbranch_scc1 AUX_w
    """)
    flag_set(A, WS_F2, "s2", 64, NREP, None)
    poll(A, "AUX_p2", "buffer_load_dwordx4 v[8:11], v5, s[60:63], s29 offen sc1", q4_ok(8), sleep=4)
    A(f"""
    s_cmp_lg_u32 s2, 0
    s_cbranch_scc1 AUX_w
    s_add_u32 s26, s41, 1
    v_mov_b32 v8, s26
    s_mov_b64 exec, 1
    buffer_store_dword v8, off, s[60:63], 0 sc1
    s_mov_b64 exec, -1
    """)
    A.label("AUX_w")
    A("""
    s_waitcnt vmcnt(0)
    s_barrier
    """)
    stamp(A, 4)
    S1, S2 = 40, 48
    A(f"""
    v_lshrrev_b32 v1, 3, v0              ; dgrp 0..63
    v_and_b32 v2, 7, v0
    v_lshlrev_b32 v3, 8, v1
    v_lshl_add_u32 v3, v2, 4, v3
    s_lshr_b32 s24, s2, 1
    s_mul_i32 s24, s24, {HTB}
    s_and_b32 s25, s2, 1
    s_lshl_b32 s25, s25, 7
    s_add_u32 s24, s24, s25
    s_add_u32 s24, s24, {WS_HT:#x}
    """)
    for i in range(7):
        A(f"buffer_load_dwordx4 {v(X+4*i,4)}, v3, s[60:63], s24 offen sc1")
        if i < 6:
            A(f"s_add_u32 s24, s24, 16384")
    for i in range(16):
        A(f"v_mov_b32 v{S1+i}, 0")
    for i in range(7):
        A(f"s_waitcnt vmcnt({6-i})")
        for q in range(4):
            A(f"""
            v_lshlrev_b32 v56, 16, v{X+4*i+q}
            v_and_b32 v57, 0xffff0000, v{X+4*i+q}
            v_pk_add_f32 {v(S1+2*q,2)}, {v(S1+2*q,2)}, v[56:57]
            v_pk_fma_f32 {v(S2+2*q,2)}, v[56:57], v[56:57], {v(S2+2*q,2)}
            """)
    A(f"""
    v_mul_u32_u24 v4, 528, v1
    v_lshl_add_u32 v4, v2, 5, v4
    ds_write_b128 v4, {v(S1,4)}
    ds_write_b128 v4, {v(S1+4,4)} offset:16
    ds_write_b128 v4, {v(S2,4)} offset:256
    ds_write_b128 v4, {v(S2+4,4)} offset:272
    v_and_b32 v5, 127, v0
    v_lshrrev_b32 v6, 7, v0
    v_mul_u32_u24 v7, {16*528}, v6
    v_lshl_add_u32 v7, v5, 2, v7
    s_waitcnt lgkmcnt(0)
    s_barrier
    """)
    for i in range(16):
        A(f"ds_read_b32 v{X+i}, v7 offset:{528*i}")
    A("s_waitcnt lgkmcnt(0)")
    for st in (8, 4, 2, 1):
        for i in range(st):
            A(f"v_add_f32 v{X+i}, v{X+i}, v{X+i+st}")
    A(f"""
    v_lshlrev_b32 v7, 2, v0
    ds_write_b32 v7, v{X} offset:{64*528}
    s_waitcnt lgkmcnt(0)
    s_barrier
    s_cmp_lg_u32 s22, 0
    s_cbranch_scc1 AUX_done
    """)
    for i in range(4):
        A(f"ds_read_b32 v{X+i}, v7 offset:{64*528 + 512*i}")
        A(f"ds_read_b32 v{X+4+i}, v7 offset:{64*528 + 512*i + 256}")
    A(f"""
    s_lshl_b32 s26, s2, 8
    s_add_u32 s27, s26, {WS_MEAN:#x}
    s_add_u32 s26, s26, {WS_R2:#x}
    s_waitcnt lgkmcnt(0)
    v_add_f32 v{X}, v{X}, v{X+1}
    v_add_f32 v{X+2}, v{X+2}, v{X+3}
    v_add_f32 v{X+4}, v{X+4}, v{X+5}
    v_add_f32 v{X+6}, v{X+6}, v{X+7}
    v_add_f32 v40, v{X}, v{X+2}
    v_add_f32 v41, v{X+4}, v{X+6}
    v_mul_f32 v40, 0x3b124925, v40       ; mean
    v_cvt_pk_bf16_f32 v42, v40, v40
    v_lshlrev_b32 v42, 16, v42
    buffer_store_dword v42, v7, s[60:63], s27 offen sc1
    v_mul_f32 v41, 0x3b124925, v41
    v_fma_f32 v41, -v40, v40, v41
    """)
    var_to_s(A, 41)
    A(f"""
    v_mul_f32 v41, v41, v41
    v_rcp_f32 v41, v41
    v_and_b32 v2, 63, v0
    buffer_store_dword v41, v7, s[60:63], s26 offen sc1
    s_waitcnt vmcnt(0)
    """)
    flag_set(A, WS_F3, "s2", 8, NREP, None)
    A.label("AUX_done")
    stamp_end(A)
    A("s_endpgm")


def gen_phase1(A):
    XU = 112
    A(f"""
    s_sub_u32 s3, s2, {NAUX}
    s_and_b32 s26, s3, 7
    s_mul_i32 s26, s26, 28
    s_lshr_b32 s27, s3, 3
    s_add_u32 s43, s26, s27              ; dpair
    s_lshl_b32 s27, s43, 10
    v_lshl_add_u32 v3, v0, 1, s27
    s_lshr_b32 s28, s22, 2               ; channel
    s_lshl_b32 s26, s43, 1
    s_add_u32 s26, s26, s28
    s_lshl_b32 s26, s26, 1
    v_mov_b32 v31, s26                   ; 2*d
    global_load_ushort v10, v31, s[16:17]
    global_load_ushort v4, v3, s[4:5]
    global_load_ushort v5, v3, s[6:7]
    global_load_ushort v6, v3, s[8:9]
    global_load_ushort v7, v3, s[10:11]
    global_load_ushort v8, v3, s[12:13]
    global_load_ushort v9, v3, s[14:15]
    global_load_ushort v29, v31, s[18:19]
    s_mul_i32 s31, s28, {KG_CH}
    s_lshl_b32 s26, s23, 8
    s_add_u32 m0, s31, s26
    v_mov_b32 v30, 0x00003f80
    ds_write_addtid_b32 v30
    ; tile ids for later phases
    s_and_b32 s24, s3, 3
    s_lshl_b32 s24, s24, 2
    s_bfe_u32 s25, s3, 0x20003
    s_add_u32 s24, s24, s25              ; tblk
    s_bfe_u32 s46, s3, 0x10002
    s_mul_i32 s25, s46, 7
    s_lshr_b32 s47, s3, 5                ; dblk
    s_add_u32 s25, s25, s47              ; fblk
    """)
    PF0 = OPT.get("pf0", "late")

    def touch():
        A(f"""
        s_cmp_lt_u32 s22, 4
        s_cbranch_scc1 P1_nowd
        s_cmp_eq_u32 s22, 7
        s_cbranch_scc1 P1_nowd
        v_min_u32 v16, 55, v2
        s_mul_i32 s36, s3, {56*128}
        v_lshl_add_u32 v16, v16, 7, s36
        s_cmp_eq_u32 s22, 4
        s_cselect_b32 s34, s48, s50
        s_cselect_b32 s35, s49, s51
        s_cmp_eq_u32 s22, 6
        s_cselect_b32 s34, s52, s34
        s_cselect_b32 s35, s53, s35
        global_load_dword v128, v16, s[34:35]
        """)
        A.label("P1_nowd")

    if PF0 == "early": touch()
    gen_p0(A, 1, 8)
    if PF0 == "early2": touch()
    A(f"""
    s_add_u32 s58, s58, KG_TABLE-PC0
    s_addc_u32 s59, s59, 0
    v_lshlrev_b32 v18, 4, v0
    v_add_u32 v19, 8192, v18
    v_add_u32 v17, 16384, v18
    global_load_dwordx4 v[12:15], v17, s[58:59]
    global_load_dwordx4 v[20:23], v18, s[58:59]
    global_load_dwordx4 v[24:27], v19, s[58:59]
    """)
    stamp(A, 1)
    ACC = 32
    AR, AI = 44, 45
    BP, CP = 46, 48
    A2, B2 = 50, 51
    T0, T1 = 52, 54
    P = {r: 56 + 2 * (r - 1) for r in range(1, 8)}
    Z8, Q1 = 70, 72
    QA, QB = 74, 76
    BA, BB = 78, 80
    X0 = 82
    E0, E1, E2 = 86, 88, 90
    W0 = 92
    FR = 44
    A(f"""
    s_waitcnt vmcnt(10)
    v_lshlrev_b32 v28, 16, v10
    v_mul_f32 v28, 0x3fb8aa3b, v28
    v_exp_f32 v28, v28
    v_lshlrev_b32 v{AR}, 16, v4
    v_cvt_pk_bf16_f32 v28, v28, v28
    v_lshlrev_b32 v{AI}, 16, v5
    v_lshlrev_b32 v28, 16, v28           ; dt
    """)
    if "p0st" in OPT: stamp(A, 18)
    A(f"""
    v_mul_f32 v{A2}, v28, v{AR}
    v_mul_f32 v{B2}, v28, v{AI}
    v_mul_f32 v{A2}, 0x3fb8aa3b, v{A2}
    v_mul_f32 v{B2}, 0.15915494, v{B2}
    v_mul_f32 v{E1}, 0x41000000, v{A2}
    v_mul_f32 v{E1+1}, 0x41000000, v{B2}
    v_mul_f32 v{E2}, 0x43000000, v{A2}
    v_mul_f32 v{E2+1}, 0x43000000, v{B2}
    v_exp_f32 v{E0}, v{A2}
    v_fract_f32 v{E0+1}, v{B2}
    v_exp_f32 v{E1}, v{E1}
    v_fract_f32 v{E1+1}, v{E1+1}
    v_exp_f32 v{E2}, v{E2}
    v_fract_f32 v{E2+1}, v{E2+1}
    v_cos_f32 v{P[1]}, v{E0+1}
    v_sin_f32 v{P[1]+1}, v{E0+1}
    v_cos_f32 v{Z8}, v{E1+1}
    v_sin_f32 v{Z8+1}, v{E1+1}
    v_cos_f32 v{Q1}, v{E2+1}
    v_sin_f32 v{Q1+1}, v{E2+1}
    v_pk_mul_f32 {v(P[1],2)}, {v(P[1],2)}, {v(E0,2)} op_sel_hi:[1,0]
    v_pk_mul_f32 {v(Z8,2)}, {v(Z8,2)}, {v(E1,2)} op_sel_hi:[1,0]
    v_pk_mul_f32 {v(Q1,2)}, {v(Q1,2)}, {v(E2,2)} op_sel_hi:[1,0]
    """)
    rowof = {}
    for T in range(3):
        for g in range(4):
            for r in range(4):
                e = KALPHA[T][g] + [r, 128 * r, 2 * r][T]
                if e <= 2048:
                    rowof[e] = KG_TB[T] + 4 * g + r
    wsel = [0]

    def emit(row, reg, neg=""):
        w = W0 + wsel[0]; wsel[0] ^= 1
        A(f"v_cvt_pk_bf16_f32 v{w}, v{reg}, {neg}v{reg+1}")
        A(f"ds_write_addtid_b32 v{w} offset:{row*KG_ROW}")

    emitA = lambda e, reg: emit(rowof[e], reg)
    mulA = lambda d, x, y: cmul(A, d, x, y, T0)
    emitA(1, P[1])
    mulA(P[2], P[1], P[1]); emitA(2, P[2])
    mulA(P[3], P[2], P[1]); emitA(3, P[3])
    mulA(P[4], P[2], P[2]); emitA(4, P[4])
    mulA(P[5], P[4], P[1]); emitA(5, P[5])
    mulA(P[6], P[4], P[2]); emitA(6, P[6])
    mulA(P[7], P[4], P[3]); emitA(7, P[7])
    cur = Q1
    for i in range(1, 17):
        if i > 1:
            nxt = QA if cur != QA else QB
            mulA(nxt, cur, Q1)
            cur = nxt
        if i == int(OPT.get("f1at", 2)):
            gen_f1_publish(A, "P1_f1", younger=3)
            if PF0 == "mid": touch()
            if "p0st" in OPT: stamp(A, 14)
        emitA(128 * i, cur)
        for r in {1: range(1, 8), 2: (2, 4, 6), 3: (2, 4, 6), 4: (4,), 5: (4,), 6: (4,), 7: (4,)}.get(i, ()):
            mulA(X0, cur, P[r])
            emitA(128 * i + r, X0)
    A(f"""
    s_lshr_b32 s28, s22, 2
    v_lshlrev_b32 v{BP}, 16, v6
    v_lshlrev_b32 v{BP+1}, 16, v7
    v_lshlrev_b32 v{CP}, 16, v8
    v_lshlrev_b32 v{CP+1}, 16, v9
    v_lshlrev_b32 v29, 16, v29
    v_and_b32 v4, 255, v0
    v_cmp_eq_u32 vcc, 0, v4
    """)
    cmul(A, BA, CP, BP, T0)
    A(f"""
    v_cndmask_b32 v29, 0, v29, vcc
    v_pk_mul_f32 {v(BA,2)}, {v(BA,2)}, v[28:29] op_sel_hi:[1,0]
    """)
    curb = BA
    for j in range(16):
        if j > 0:
            nxt = BB if curb == BA else BA
            cmul(A, nxt, curb, Z8, T1)
            curb = nxt
        emit(KG_TB[3] + j, curb, "-")
    EX = KL_BASE + 2 * KL_S - 8192 * 0
    EX = 122880
    A(f"""
    s_and_b32 s40, s2, {NREP-1}
    s_mul_i32 s40, s40, {REPS}
    v_and_b32 v156, 7, v2
    v_lshlrev_b32 v156, 7, v156
    s_lshl_b32 s31, s22, 10
    s_add_u32 s31, s31, s40
    s_add_u32 s31, s31, {WS_F1:#x}
    buffer_load_dwordx4 v[160:163], v156, s[60:63], s31 offen sc1      ; early look at F1
    s_lshr_b32 s30, s43, 2
    s_mul_i32 s30, s30, {XUS}
    s_and_b32 s26, s43, 3
    s_lshl_b32 s26, s26, 5
    s_add_u32 s30, s30, s26
    s_add_u32 s30, s30, {WS_XU:#x}
    s_mov_b32 s38, {WS_ST1:#x}
    v_and_b32 v17, 1, v0
    v_lshrrev_b32 v16, 1, v0             ; tb8
    v_lshlrev_b32 v158, 6, v16
    v_lshlrev_b32 v157, 7, v16
    v_lshl_add_u32 v157, v17, 4, v157
    v_mul_u32_u24 v159, {CV_UD}, v17
    v_lshl_add_u32 v159, v16, 4, v159
    v_add_u32 v159, {CV_UX}, v159
    v_and_b32 v5, 15, v2
    v_mul_u32_u24 v5, {KG_ROW}, v5
    v_lshrrev_b32 v6, 4, v2
    v_lshl_add_u32 v5, v6, 4, v5
    s_mul_i32 s26, s28, {KG_CH}
    s_lshl_b32 s27, s23, 8
    s_add_u32 s26, s26, s27
    v_add_u32 v5, s26, v5
    s_mul_i32 s29, s28, {CV_KC}
    s_add_u32 s29, s29, {CV_BASE}
    v_lshrrev_b32 v6, 4, v2
    v_mul_u32_u24 v6, {KG_ROW}, v6
    v_and_b32 v16, 15, v2
    v_lshl_add_u32 v6, v16, 4, v6
    v_add_u32 v16, s26, v6
    s_mul_i32 s26, s28, {KG_CH}
    s_mul_i32 s27, s23, {4*KG_ROW}
    s_add_u32 s26, s26, s27
    v_add_u32 v6, s26, v6
    s_waitcnt lgkmcnt(0)
    """)
    stamp(A, 3)
    items = []
    for ks in range(4):
        for q, T in enumerate((3, 0, 1, 2)):
            b = FR + 16 * ks + 4 * q
            items.append(('ds', f"ds_read_b128 {v(b,4)}, v5 offset:{KG_TB[T]*KG_ROW + ks*64}", R(b, 4)))
    for ks in range(4):
        for T in range(3):
            a, b = FR + 16 * ks + 4 + 4 * T, FR + 16 * ks
            c = "0" if ks == 0 else v(ACC + 4 * T, 4)
            items.append(('use', f"v_mfma_f32_16x16x32_bf16 {v(ACC+4*T,4)}, {v(a,4)}, {v(b,4)}, {c}", R(a, 4) + R(b, 4)))
    Sched().run(items, A)
    A(f"""
    s_nop 5
    v_add_f32 v{ACC}, v{ACC}, v29
    ds_write_b128 v16, {v(ACC,4)}
    ds_write_b128 v16, {v(ACC+4,4)} offset:{4*KG_ROW}
    ds_write_b128 v16, {v(ACC+8,4)} offset:{8*KG_ROW}
    s_waitcnt vmcnt(0)
    {q4_ok(160)}
    s_cselect_b32 s39, 1, 0
    s_cbranch_scc0 P1_e1
    buffer_load_dwordx4 {v(XU,4)}, v157, s[60:63], s30 offen sc1
    buffer_load_dwordx4 v[132:135], v158, s[60:63], s38 offen sc1
    buffer_load_dwordx4 v[136:139], v158, s[60:63], s38 offen offset:16 sc1
    buffer_load_dwordx4 v[140:143], v158, s[60:63], s38 offen offset:32 sc1
    buffer_load_dwordx4 v[144:147], v158, s[60:63], s38 offen offset:48 sc1
    """)
    A.label("P1_e1")
    A(f"""
    s_waitcnt lgkmcnt(0)
    s_barrier                            ; Ba
    """)
    if "p0st" in OPT: stamp(A, 15)
    A(f"""
    s_cmp_eq_u32 s23, 3
    s_cbranch_scc1 P1_nomm
    ds_read_b128 {v(FR,4)}, v6
    ds_read_b128 {v(FR+4,4)}, v6 offset:256
    ds_read_b128 {v(FR+8,4)}, v6 offset:512
    ds_read_b128 {v(FR+12,4)}, v6 offset:768
    s_waitcnt lgkmcnt(2)
    v_pk_add_f32 {v(FR,2)}, {v(FR,2)}, {v(FR+4,2)}
    v_pk_add_f32 {v(FR+2,2)}, {v(FR+2,2)}, {v(FR+6,2)}
    s_waitcnt lgkmcnt(0)
    v_pk_add_f32 {v(FR+8,2)}, {v(FR+8,2)}, {v(FR+12,2)}
    v_pk_add_f32 {v(FR+10,2)}, {v(FR+10,2)}, {v(FR+14,2)}
    v_pk_add_f32 {v(FR,2)}, {v(FR,2)}, {v(FR+8,2)}
    v_pk_add_f32 {v(FR+2,2)}, {v(FR+2,2)}, {v(FR+10,2)}
    ds_write_b32 v12, v{FR}
    ds_write_b32 v13, v{FR+1}
    ds_write_b32 v14, v{FR+2}
    ds_write_b32 v15, v{FR+3}
    """)
    A.label("P1_nomm")
    A(f"""
    v_lshl_add_u32 v7, v4, 4, s29
    s_mul_i32 s26, s23, {CV_KS-4}
    s_add_u32 s26, s26, s29
    s_add_u32 s26, s26, 4096
    v_lshl_add_u32 v16, v2, 2, s26
    s_add_u32 s27, s23, 12
    v_mov_b32 v8, 0
    v_mov_b32 v9, 0
    v_mov_b32 v10, 0
    v_mov_b32 v11, 0
    s_cmp_eq_u32 s39, 1
    s_cbranch_scc1 P1_e2
    buffer_load_dwordx4 v[160:163], v156, s[60:63], s31 offen sc1
    """)
    A.label("P1_e2")
    A(f"""
    s_waitcnt lgkmcnt(0)
    s_barrier                            ; Bb
    """)
    if "p0st" in OPT: stamp(A, 16)
    items = [('ds', f"ds_read_b32 v{FR+e}, v{20+e}", [FR + e]) for e in range(8)]
    items += [('op', "v_cmp_gt_u32 vcc, s27, v2"), ('op', "s_and_saveexec_b64 s[32:33], vcc"),
              ('ds', "ds_write_b32 v16, v8", []), ('op', "s_mov_b64 exec, s[32:33]")]
    for q in range(4):
        items.append(('use', f"v_cvt_pk_bf16_f32 v{32+q}, v{FR+2*q}, v{FR+2*q+1}", R(FR + 2 * q, 2)))
    Sched().run(items, A)
    XU = 112
    U0 = 448
    A(f"""
    v_mov_b32 v36, v33
    v_mov_b32 v37, v34
    s_barrier
    """)
    if "p0st" in OPT: stamp(A, 17)
    A(f"""
    ds_write_b128 v7, v[32:35]
    ds_write_b64 v7, v[32:33] offset:{2*CV_KS - 8}
    ds_write_b64 v7, v[34:35] offset:{2*CV_KS}
    ds_write_b32 v7, v32 offset:{CV_KS - 4}
    ds_write_b64 v7, v[36:37] offset:{CV_KS}
    ds_write_b32 v7, v35 offset:{CV_KS + 8}
    ds_write_b32 v7, v32 offset:{3*CV_KS - 12}
    ds_write_b64 v7, v[36:37] offset:{3*CV_KS - 8}
    ds_write_b32 v7, v35 offset:{3*CV_KS}
    ; u pads: wave -> (ch = w>>2... only c<2): 28 chunks + 2 bytes
    s_mul_i32 s26, s28, {CV_UD}
    s_mul_i32 s27, s23, {CV_US}
    s_add_u32 s26, s26, s27
    s_add_u32 s26, s26, {CV_UX}
    v_lshl_add_u32 v16, v2, 4, s26
    v_mov_b32 v17, s26
    s_cmp_lt_u32 s23, 2
    s_cselect_b32 s32, 0x0fffffff, 0
    s_mov_b32 s33, 0
    s_mov_b64 exec, s[32:33]
    s_cbranch_execz P1_nz
    ds_write_b128 v16, v[8:11]
    s_cmp_eq_u32 s23, 1
    s_cbranch_scc0 P1_nz
    ds_write_b16 v17, v8 offset:448
    """)
    A.label("P1_nz")
    A(f"""
    s_mov_b64 exec, -1
    v_mov_b32 v7, v159
    """)
    stamp(A, 2)
    A(f"""
    s_cmp_eq_u32 s39, 1
    s_cbranch_scc1 P1_have
    s_waitcnt vmcnt(0)
    {q4_ok(160)}
    s_cbranch_scc1 P1_f_got
    """)
    poll(A, "P1_f", "buffer_load_dwordx4 v[160:163], v156, s[60:63], s31 offen sc1", q4_ok(160), sleep=1)
    A(f"""
    buffer_load_dwordx4 {v(XU,4)}, v157, s[60:63], s30 offen sc1
    buffer_load_dwordx4 v[132:135], v158, s[60:63], s38 offen sc1
    buffer_load_dwordx4 v[136:139], v158, s[60:63], s38 offen offset:16 sc1
    buffer_load_dwordx4 v[140:143], v158, s[60:63], s38 offen offset:32 sc1
    buffer_load_dwordx4 v[144:147], v158, s[60:63], s38 offen offset:48 sc1
    """)
    A.label("P1_have")
    stamp(A, 4)


def gen_xu_store(A):
    XU, U0 = 112, 448
    u = XU + 4
    A(f"""
    s_waitcnt vmcnt(4)
    ds_write_b128 v7, {v(XU,4)} offset:{CV_XOFF}
    """)
    for i in range(4):
        A(f"""
        v_lshlrev_b32 v{148+2*i}, 16, v{XU+i}
        v_and_b32 v{149+2*i}, 0xffff0000, v{XU+i}
        """)
    A("s_waitcnt vmcnt(2)")
    for i in range(4):
        A(f"v_pk_add_f32 {v(148+2*i,2)}, {v(148+2*i,2)}, {v(132+2*i,2)} neg_lo:[0,1] neg_hi:[0,1]")
    for i in range(4):
        A(f"v_cvt_pk_bf16_f32 v{u+i}, v{148+2*i}, v{149+2*i}")
    for i in range(4):
        A(f"""
        v_lshlrev_b32 v{148+2*i}, 16, v{u+i}
        v_and_b32 v{149+2*i}, 0xffff0000, v{u+i}
        """)
    A("s_waitcnt vmcnt(0)")
    for i in range(4):
        A(f"v_pk_mul_f32 {v(148+2*i,2)}, {v(148+2*i,2)}, {v(140+2*i,2)}")
    for i in range(4):
        A(f"v_cvt_pk_bf16_f32 v{u+i}, v{148+2*i}, v{149+2*i}")
    A(f"""
    v_cvt_pk_bf16_f32 v44, v149, v150
    v_cvt_pk_bf16_f32 v46, v151, v152
    v_cvt_pk_bf16_f32 v47, v153, v154
    ds_write_b128 v7, {v(u,4)} offset:{U0}
    ds_write_b16 v7, v{u} offset:{U0 + CV_US + 2}
    ds_write_b32 v7, v44 offset:{U0 + CV_US + 4}
    ds_write_b64 v7, v[46:47] offset:{U0 + CV_US + 8}
    ds_write_b16_d16_hi v7, v{u+3} offset:{U0 + CV_US + 16}
    """)
    stamp(A, 5)


def gen_conv(A):
    XR, ACC, FP = 12, 20, 40
    A(f"""
    v_and_b32 v4, 15, v2                 ; i / n
    v_lshrrev_b32 v5, 4, v2              ; g
    s_lshr_b32 s28, s22, 1               ; dsel
    s_and_b32 s30, s22, 1                ; role
    s_mul_i32 s27, s28, {CV_KC}
    s_add_u32 s27, s27, {CV_BASE}
    v_and_b32 v36, 3, v4
    v_sub_u32 v36, 3, v36
    v_mul_u32_u24 v36, {CV_KS}, v36
    v_lshrrev_b32 v37, 2, v4
    v_sub_u32 v37, v5, v37
    v_lshl_add_u32 v36, v37, 4, v36
    v_add_u32 v36, {4080 - 512*7}, v36
    v_add_u32 v36, s27, v36              ; F addr
    s_mul_i32 s27, s28, {CV_UD}
    s_add_u32 s27, s27, {CV_UX}
    v_and_b32 v37, 1, v4
    v_sub_u32 v37, 1, v37
    v_mul_u32_u24 v37, {CV_US}, v37
    v_lshrrev_b32 v38, 1, v4
    v_lshl_add_u32 v37, v38, 6, v37
    v_lshl_add_u32 v37, v5, 4, v37
    v_add_u32 v37, 448, v37
    v_add_u32 v37, s27, v37              ; G addr
    v_lshlrev_b32 v6, 7, v5
    v_lshl_add_u32 v6, v4, 2, v6
    s_add_u32 s26, s27, {CV_XOFF}
    v_add_u32 v6, s26, v6
    v_lshl_add_u32 v39, v2, 4, s26
    v_mul_u32_u24 v38, {HTB}, v5
    v_lshl_add_u32 v38, v4, 4, v38
    s_lshl_b32 s33, s43, 1
    s_add_u32 s33, s33, s28
    s_lshl_b32 s33, s33, 8
    s_add_u32 s33, s33, {WS_HT:#x}         ; HT + d*256
    """)
    gen_xu_store(A)
    A("""
    s_waitcnt lgkmcnt(0)
    s_barrier                            ; Bc
    """)
    stamp(A, 6)
    A("""
    s_cmp_eq_u32 s30, 0
    s_cbranch_scc0 CV_roleB
    """)
    for role, tiles in ((0, (7, 6, 1, 0)), (1, (5, 4, 3, 2))):
        if role == 1:
            A.label("CV_roleB")
        nf = max(tiles) + 1

        def reads(base):
            out = []
            for a in range(nf):
                out.append(('ds', f"ds_read_b128 {v(base+4*a,4)}, v36 offset:{512*(7-a)}", R(base + 4 * a, 4)))
                out.append(('ds', f"ds_read_b128 {v(base+32+4*a,4)}, v37 offset:{512*a}", R(base + 32 + 4 * a, 4)))
            return out

        def mfmas(base):
            pairs = [(a, c - a, q) for q, c in enumerate(tiles) for a in range(c + 1)]
            pairs.sort(key=lambda p: (max(p[0], p[1]), p[2]))
            return [('use', f"v_mfma_f32_16x16x32_bf16 {v(ACC+4*q,4)}, {v(base+32+4*b,4)}, {v(base+4*a,4)}, {v(ACC+4*q,4)}",
                     R(base + 32 + 4 * b, 4) + R(base + 4 * a, 4)) for a, b, q in pairs]

        def step(cur, nxt):
            it = [('op', "v_subrev_u32 v36, 64, v36"), ('op', "v_subrev_u32 v37, 64, v37")]
            rs = reads(nxt)
            i = 0
            for m in mfmas(cur):
                it.append(m)
                if i < len(rs):
                    it.append(rs[i]); i += 1
            return it + rs[i:]

        for q, c in enumerate(tiles):
            A(f"ds_read2_b32 {v(XR+2*q,2)}, v6 offset0:{0} offset1:16" if c == 0 else
              f"ds_read_b32 v{XR+2*q}, v6 offset:{512*c}\nds_read_b32 v{XR+2*q+1}, v6 offset:{512*c+64}")
        S = Sched()
        rr = reads(FP)
        S.run(rr[:6], A)
        A("s_waitcnt lgkmcnt(6)")
        S.run(rr[6:], A)
        for q in range(4):
            A(f"""
            v_lshlrev_b32 v{ACC+4*q}, 16, v{XR+2*q}
            v_and_b32 v{ACC+4*q+1}, 0xffff0000, v{XR+2*q}
            v_lshlrev_b32 v{ACC+4*q+2}, 16, v{XR+2*q+1}
            v_and_b32 v{ACC+4*q+3}, 0xffff0000, v{XR+2*q+1}
            """)
        A("s_mov_b32 s36, 4")
        A.label(f"CV_loop{role}")
        S.run(step(FP, FP + 64) + step(FP + 64, FP), A)
        A(f"""
        s_sub_u32 s36, s36, 1
        s_cmp_lg_u32 s36, 0
        s_cbranch_scc1 CV_loop{role}
        s_nop 6
        """)
        for q, c in enumerate(tiles):
            A(f"""
            v_cvt_pk_bf16_f32 v{XR+2*q}, v{ACC+4*q}, v{ACC+4*q+1}
            v_cvt_pk_bf16_f32 v{XR+2*q+1}, v{ACC+4*q+2}, v{ACC+4*q+3}
            ds_write_b32 v6, v{XR+2*q} offset:{512*c}
            ds_write_b32 v6, v{XR+2*q+1} offset:{512*c+64}
            """)
        A(f"""
        s_add_u32 s34, s33, {2*tiles[1]*HTB:#x}
        s_add_u32 s35, s33, {2*tiles[3]*HTB:#x}
        s_waitcnt lgkmcnt(0)
        ds_read_b128 v[20:23], v39 offset:{512*tiles[1]}
        ds_read_b128 v[24:27], v39 offset:{512*tiles[3]}
        """)
        if role == 0:
            A("s_branch CV_out")
    A.label("CV_out")
    A(f"""
    s_waitcnt lgkmcnt(1)
    buffer_store_dwordx4 v[20:23], v38, s[60:63], s34 offen sc1
    s_waitcnt lgkmcnt(0)
    buffer_store_dwordx4 v[24:27], v38, s[60:63], s35 offen sc1
    """)
    stamp(A, 7)


def gen_consumer(A):
    _late[0] = True
    gen_conv(A)
    ACC = 24
    FP = 152
    acc = lambda m, tt: ACC + 16 * (m * 4 + tt)
    A(f"""
    v_lshrrev_b32 v4, 5, v2              ; h
    v_bfe_u32 v3, v2, 2, 2               ; r
    v_lshl_add_u32 v5, v4, 2, v3
    v_lshlrev_b32 v5, 8, v5
    v_bfe_u32 v6, v2, 4, 1
    v_lshl_add_u32 v5, v6, 5, v5
    v_and_b32 v6, 3, v2
    v_lshl_add_u32 v5, v6, 3, v5
    v_xor_b32 v6, s23, v3
    v_lshl_add_u32 v8, v6, 6, v5
    s_mov_b32 s33, 0
    """)
    A("""
    s_xor_b32 s37, s46, 1
    s_lshl_b32 s37, s37, 1
    v_xor_b32 v7, s37, v3
    """)
    for tt in range(4):
        A(f"""
        v_xor_b32 v6, {tt}, v7
        v_lshl_add_u32 v{9+tt}, v6, 6, v5
        """)
    A(f"""
    v_lshlrev_b32 v18, 7, v2
    v_mov_b32 v19, v3
    """)
    A("s_waitcnt vmcnt(0)")
    A(f"""
    s_barrier                            ; BH
    s_cmp_lg_u32 s22, 0
    s_cbranch_scc1 C_nf2
    """)
    flag_set(A, WS_F2, "s2", 64, NREP, None)
    A("s_nop 1")
    A("v_mov_b32 v3, v19")
    A.label("C_nf2")
    stamp(A, 8)
    for i in range(128):
        A(f"v_mov_b32 v{ACC+i}, 0")
    A(f"""
    s_lshl_b32 s26, s23, 7
    v_lshl_add_u32 v20, v4, 4, s26
    v_add_u32 v20, {G1_X}, v20
    v_and_b32 v21, 31, v2
    v_lshlrev_b32 v21, 2, v21
    v_add_u32 v21, {G1_X+1024}, v21
    s_lshl_b32 s26, s37, 7
    v_add_u32 v21, s26, v21
    v_xor_b32 v22, 128, v21
    v_xor_b32 v23, 256, v21
    v_xor_b32 v19, 384, v21
    s_lshl_b32 s26, s24, 2
    s_mul_i32 s26, s26, {HAT}
    s_lshl_b32 s5, s25, 3
    s_lshl_b32 s6, s23, 1
    s_add_u32 s5, s5, s6
    s_lshl_b32 s5, s5, 10
    s_add_u32 s26, s26, s5
    s_add_u32 s26, s26, {WS_HA:#x}
    s_mul_i32 s4, s37, {HAT}
    s_add_u32 s4, s4, s26
    s_xor_b32 s5, s37, 1
    s_mul_i32 s5, s5, {HAT}
    s_add_u32 s5, s5, s26
    s_xor_b32 s6, s37, 2
    s_mul_i32 s6, s6, {HAT}
    s_add_u32 s6, s6, s26
    s_xor_b32 s7, s37, 3
    s_mul_i32 s7, s7, {HAT}
    s_add_u32 s7, s7, s26
    v_lshlrev_b32 v6, 4, v2
    """)
    A(f"""
    s_add_u32 s28, s40, {WS_F2:#x}
    s_cmp_lg_u32 s22, 0
    s_cbranch_scc1 C_f2_got
    """)
    poll(A, "C_f2", f"buffer_load_dwordx4 {v(FP,4)}, v18, s[60:63], s28 offen sc1", q4_ok(FP))
    A("s_barrier                            ; BS")
    if "cprio" in OPT: A(f"s_setprio {OPT['cprio']}")
    stamp(A, 9)

    def fa(base, kk, m): return base + 24 * kk + 4 * m
    def fb(base, kk, tt): return base + 24 * kk + 8 + 4 * tt

    def reads(base):
        out = []
        for kk in range(2):
            for kind, i in [('b', 0), ('a', 0), ('a', 1), ('b', 1), ('b', 2), ('b', 3)]:
                for j in range(2):
                    if kind == 'a':
                        d = fa(base, kk, i) + 2 * j
                        out.append(('ds', f"ds_read_b64_tr_b16 {v(d,2)}, v13 offset:{8192*(i+1) + 4096*kk + 2048*j}", R(d, 2)))
                    else:
                        d = fb(base, kk, i) + 2 * j
                        out.append(('ds', f"ds_read_b64_tr_b16 {v(d,2)}, v{14+i} offset:{4096*kk + 2048*j}", R(d, 2)))
        return out

    def addr_setup():
        return [('op', t) for t in f"""v_add_u32 v13, s33, v8
            v_add_u32 v14, s33, v9
            v_add_u32 v15, s33, v10
            v_add_u32 v16, s33, v11
            v_add_u32 v17, s33, v12
            s_add_u32 s33, s33, {G1_STAGE}
            s_cmp_eq_u32 s33, {G1_SLOTS*G1_STAGE}
            s_cselect_b32 s33, 0, s33""".split("\n")]

    def step(cur, nxt, bar):
        ms = []
        for kk in range(2):
            for tt in range(4):
                for m in range(2):
                    a, b = fa(cur, kk, m), fb(cur, kk, tt)
                    ms.append(('use', f"v_mfma_f32_32x32x16_bf16 {v(acc(m,tt),16)}, {v(a,4)}, {v(b,4)}, {v(acc(m,tt),16)}", R(a, 4) + R(b, 4)))
        rs = reads(nxt)
        ad = addr_setup()
        it = [ms[0]] + ad[:4] + [ms[1]] + ad[4:]
        if bar:
            it += [ms[2], ('drain',), ('op', "s_barrier")]
            rest = ms[3:]
        else:
            rest = ms[2:]
        i = 0
        for m in rest:
            it.append(m)
            for _ in range(int(OPT.get("rpg", 2))):
                if i < len(rs):
                    it.append(rs[i]); i += 1
        return it + rs[i:]

    S = Sched()
    S.run(addr_setup(), A)
    A("s_barrier                            ; B0")
    stamp(A, 10)
    S.run(reads(FP), A)
    CS, M, O = FP, FP + 32, 248 - 56
    O = FP + 40
    A(f"""
    s_mov_b32 s36, 7
    """)
    A.label("C_loop3")
    S.run(step(FP, FP + 48, True), A)
    A(f"""
    s_cmp_eq_u32 s36, 1
    s_cbranch_scc1 C_last
    """)
    import copy
    S2 = copy.deepcopy(S)
    S.run(step(FP + 48, FP, False), A)
    A(f"""
    s_sub_u32 s36, s36, 1
    s_branch C_loop3
    """)
    A.label("C_last")
    if STAMP and "p3st" in OPT:
        stamp(A, 11); S2.q = []
    cur = FP + 48
    OT = [248, 248, O, None]
    OT[3] = O + 8

    def mfm(tt):
        out = []
        for kk in range(2):
            for m in range(2):
                a, b = fa(cur, kk, m), fb(cur, kk, tt)
                out.append(('use', f"v_mfma_f32_32x32x16_bf16 {v(acc(m,tt),16)}, {v(a,4)}, {v(b,4)}, {v(acc(m,tt),16)}", R(a, 4) + R(b, 4)))
        return out

    def epi(tt, q):
        g_, u_ = acc(0, tt) + 4 * q, acc(1, tt) + 4 * q
        o = OT[tt] + 2 * q
        out = []
        for h in range(2):
            out.append(('use', f"v_pk_fma_f32 {v(g_+2*h,2)}, {v(CS+4*q+2*h,2)}, {v(M+2*tt,2)}, {v(g_+2*h,2)} op_sel_hi:[1,0,1] neg_lo:[0,1,0] neg_hi:[0,1,0]", R(CS + 4 * q, 4) + [M + 2 * tt]))
            out.append(('use', f"v_pk_fma_f32 {v(u_+2*h,2)}, {v(CS+16+4*q+2*h,2)}, {v(M+2*tt,2)}, {v(u_+2*h,2)} op_sel_hi:[1,0,1] neg_lo:[0,1,0] neg_hi:[0,1,0]", R(CS + 16 + 4 * q, 4)))
        out += [('op', f"v_max_f32 v{g_+i}, 0, v{g_+i}") for i in range(4)]
        out += [('op', f"v_pk_mul_f32 {v(g_+2*h,2)}, {v(g_+2*h,2)}, {v(u_+2*h,2)}") for h in range(2)]
        out += [('op', f"v_cvt_pk_bf16_f32 v{o+h}, v{g_+2*h}, v{g_+2*h+1}") for h in range(2)]
        if q & 1:
            out.append(('op', f"buffer_store_dwordx4 {v(o-2,4)}, v6, s[60:63], s{4+tt} offen offset:{1024*(q>>1)} sc1"))
        return out

    rd = [('ds', f"ds_read_b32 v{M+2*tt}, v{[21,22,23,19][tt]}", [M + 2 * tt]) for tt in range(4)]
    for q in range(4):
        for m in range(2):
            rd.append(('ds', f"ds_read_b128 {v(CS+16*m+4*q,4)}, v20 offset:{512*m + 32*q}", R(CS + 16 * m + 4 * q, 4)))
    items = []
    m0, m1, m2, m3 = mfm(0), mfm(1), mfm(2), mfm(3)
    items += [m0[0], m0[1]] + rd[:6] + [m0[2], m0[3]] + rd[6:]
    if OPT.get("ilv", "1") == "1":
        items += m1 + [('drain',), ('op', "s_barrier"), ('op', "s_nop 5")]
        if STAMP and "p3st" in OPT:
            items += [('op', "s_memtime s[68:69]"), ('op', "s_waitcnt lgkmcnt(0)"), ('op', "s_mov_b32 s86, s68")]
        for q in range(4):
            items += [m2[q]] + epi(0, q)
        for q in range(4):
            items += [m3[q]] + epi(1, q)
        for tt in (2, 3):
            for q in range(4):
                items += epi(tt, q)
    else:
        items += m1 + m2 + m3 + [('drain',), ('op', "s_barrier"), ('op', "s_nop 5")]
        for tt in range(4):
            for q in range(4):
                items += epi(tt, q)
    S2.run(items, A)
    stamp(A, 15)
    ACC4, AF, BF, NB = 16, 80, 160, 6
    A(f"""
    v_lshl_add_u32 v5, v4, 2, v3
    v_lshlrev_b32 v5, 7, v5
    v_bfe_u32 v7, v2, 4, 1
    v_lshl_add_u32 v5, v7, 5, v5
    v_and_b32 v7, 3, v2
    v_lshl_add_u32 v5, v7, 3, v5
    v_lshrrev_b32 v3, 1, v3
    s_and_b32 s26, s23, 1
    s_lshr_b32 s27, s23, 1
    s_lshl_b32 s28, s23, 12
    v_xor_b32 v7, s27, v3
    v_lshl_add_u32 v8, v7, 6, v5
    v_add_u32 v8, s28, v8
    v_xor_b32 v9, 64, v8
    v_add_u32 v10, 0x10000, v8
    v_add_u32 v11, 0x10000, v9
    v_add_u32 v12, 0x20000, v8
    v_add_u32 v13, 0x20000, v9
    v_xor_b32 v7, s26, v3
    v_lshl_add_u32 v14, v7, 6, v5
    s_lshl_b32 s28, s27, 12
    s_add_u32 s28, s28, {P4_X}
    v_add_u32 v14, s28, v14
    s_lshl_b32 s28, s24, 1
    s_add_u32 s28, s28, s46
    s_lshl_b32 s28, s28, 1
    s_add_u32 s28, s28, s26
    s_mul_i32 s29, s28, {32*896}
    s_mul_i32 s30, s28, {HAT}
    s_lshl_b32 s28, s47, 7
    s_add_u32 s29, s29, s28
    s_lshl_b32 s28, s27, 6
    s_add_u32 s29, s29, s28
    s_mul_i32 s35, s26, {2*HAT}
    s_sub_u32 s35, {HAT}, s35
    s_lshl_b32 s28, s23, 11
    s_add_u32 s30, s30, s28
    s_add_u32 s38, s30, {WS_HA:#x}
    s_add_u32 s39, s25, 1
    s_cmp_eq_u32 s39, 14
    s_cselect_b32 s39, 0, s39
    s_lshl_b32 s39, s39, 13
    s_add_u32 s30, s38, s39
    s_add_u32 s31, s30, s35
    s_lshl_b32 s34, s24, 9
    s_add_u32 s34, s34, {WS_F4:#x}
    s_and_b32 s28, s25, 3
    s_lshl_b32 s28, s28, 7
    s_lshr_b32 s32, s25, 2
    s_lshl_b32 s32, s32, 2
    s_add_u32 s28, s28, s32
    s_add_u32 s28, s28, s34
    v_mov_b32 v7, s42
    v_mul_u32_u24 v1, {2*128+12}, v2
    s_cmp_lt_u32 s25, 2
    s_cselect_b32 s32, 3, 1
    s_mov_b32 s33, 0
    v_and_b32 v15, 3, v2
    v_lshlrev_b32 v15, 7, v15
    """)
    for i in range(64):
        A(f"v_mov_b32 v{ACC4+i}, 0")
    A(f"""
    s_waitcnt vmcnt(0)
    s_barrier                            ; BX
    s_cmp_lg_u32 s23, 0
    s_cbranch_scc1 C_nf4
    s_mov_b64 exec, s[32:33]
    buffer_store_dword v7, v1, s[60:63], s28 offen sc1
    s_mov_b64 exec, -1
    """)
    A.label("C_nf4")
    A("s_cmp_eq_u32 s26, 0")
    A("s_cbranch_scc1 C_nsw")
    for i in range(8):
        A(f"v_swap_b32 v{O+i}, v{O+8+i}")
    A.label("C_nsw")
    stamp(A, 12)

    def ardsl(st, base):
        sl = st % 9
        out = []
        for kk in range(2):
            for dt in range(2):
                for j in range(2):
                    off = sl * 16384 + 2048 * kk + 1024 * j
                    reg = 8 + dt + 2 * (off >> 16)
                    d = base + 8 * kk + 4 * dt + 2 * j
                    out.append(('ds', f"ds_read_b64_tr_b16 {v(d,2)}, v{reg} offset:{off & 0xffff}", R(d, 2)))
        return out

    def bbuf(st): return BF + 16 * ((st + 2) % NB)

    def mf(st, kk, dt, tt):
        a = AF + 16 * (st % 5) + 8 * kk + 4 * dt
        b = bbuf(st) + (8 * tt + 4 * kk if st == 0 else 8 * kk + 4 * tt)
        c = ACC4 + 16 * (2 * dt + tt)
        return ('use', f"v_mfma_f32_32x32x16_bf16 {v(c,16)}, {v(a,4)}, {v(b,4)}, {v(c,16)}", R(a, 4))

    assert bbuf(0) == O
    S = Sched()
    for st in range(5):
        S.run(ardsl(st, AF + 16 * st), A)
    S.run([mf(0, kk, dt, tt) for kk in range(2) for dt in range(2) for tt in range(2)], A)
    A(f"""
    s_waitcnt lgkmcnt(0)
    s_barrier                            ; BY
    """)
    S = Sched()
    S.run(ardsl(5, AF), A)
    A(f"""
    s_cmp_lg_u32 s23, 0
    s_cbranch_scc1 C_f4_got
    """)
    poll(A, "C_f4", f"buffer_load_dwordx4 {v(BF,4)}, v15, s[60:63], s34 offen sc1", q4_ok(BF))

    def bl(i):
        st, kk, tt = i // 4, (i // 2) % 2, i % 2
        out = [('op', f"buffer_load_dwordx4 {v(bbuf(st)+8*kk+4*tt,4)}, v6, s[60:63], s{30+tt} offen offset:{1024*kk} sc1")]
        if i % 4 == 3:
            out += [('op', x) for x in f"""s_add_u32 s39, s39, 8192
            s_cmp_eq_u32 s39, {14*8192}
            s_cselect_b32 s39, 0, s39
            s_add_u32 s30, s38, s39
            s_add_u32 s31, s30, s35""".split("\n")]
        return out

    A("s_barrier                            ; BZ")
    if STAMP: S.q = []
    stamp(A, 13)
    issued = 4 + 4 * int(OPT.get("b0", 3))
    for i in range(4, issued):
        S.run(bl(i), A)
    stamp(A, 16)
    FR = AF
    for st in range(1, 13):
        if st == 2:
            stamp(A, 17); S.q = []
        items = []
        for kk in range(2):
            items.append(('op', f"s_waitcnt vmcnt({issued - (4*st + 2*kk + 2)})"))
            for dt in range(2):
                for tt in range(2):
                    items.append(mf(st, kk, dt, tt))
                    if issued < 56 and issued < 4 * (st + NB):
                        items += bl(issued); issued += 1
        S.run(items, A)
        if st + 5 < 14:
            S.run(ardsl(st + 5, AF + 16 * (st % 5)), A)
        if st == 9:
            A("s_waitcnt lgkmcnt(0)")
            S.q = []
            A("s_barrier                            ; BR")
        if st == 10:
            srd(A, 8, 54, 0, L * D * 2)
            A(f"""
            v_and_b32 v1, 31, v2
            s_lshl_b32 s28, s26, 7
            v_lshl_add_u32 v7, v1, 2, s28
            v_add_u32 v7, {P4_X+8192}, v7
            ds_read_b32 v{FR+8}, v7
            """)
            for q in range(4):
                A(f"ds_read_b64_tr_b16 {v(FR+2*q,2)}, v14 offset:{1024*q}")
            A(f"""
            v_mul_u32_u24 v1, 896, v1
            v_lshl_add_u32 v1, v4, 4, v1
            s_mul_i32 s28, s23, 12288
            v_add_u32 v5, s28, v6
            """)
            for i in range(1, 4):
                A(f"""
                s_xor_b32 s28, s23, {i}
                s_mul_i32 s28, s28, 12288
                v_add_u32 v{8+i}, s28, v6
                """)
    def send(i):
        return [('op', f"ds_write_b128 v{8+i}, {v(ACC4+16*i+4*q,4)} offset:{(i-1)*4096 + q*1024}") for q in range(4)]
    T = lambda i, kk: mf(13, kk, i >> 1, i & 1)
    items = [('op', "s_waitcnt vmcnt(0)"), T(3, 0), T(2, 0), T(3, 1), T(2, 1), T(1, 0), T(1, 1), T(0, 0), ('op', "s_nop 7")]
    items += send(3)[:1] + [T(0, 1)] + send(3)[1:] + send(2) + send(1)
    S.run(items, A)
    stamp(A, 18)
    A(f"""
    s_waitcnt lgkmcnt(0)
    s_barrier                            ; BE
    """)
    stamp(A, 19)
    PR = 160
    items = []
    for q in range(4):
        for i in range(3):
            d = PR + 16 * i + 4 * q
            items.append(('ds', f"ds_read_b128 {v(d,4)}, v5 offset:{i*4096 + q*1024}", R(d, 4)))
    OO = 96
    HX = 104
    for i in range(8):
        items.append(('op', f"v_lshlrev_b32 v{HX+2*i}, 16, v{FR+i}"))
        items.append(('op', f"v_and_b32 v{HX+2*i+1}, 0xffff0000, v{FR+i}"))
    for q in range(4):
        for h in range(2):
            a = ACC4 + 4 * q + 2 * h
            p0, p1, p2 = (PR + 16 * i + 4 * q + 2 * h for i in range(3))
            items.append(('use', f"v_pk_add_f32 {v(p0,2)}, {v(p0,2)}, {v(p1,2)}", R(p0, 2) + R(p1, 2)))
            items.append(('use', f"v_pk_add_f32 {v(a,2)}, {v(a,2)}, {v(p2,2)}", R(p2, 2)))
            for ln in f"""v_pk_add_f32 {v(a,2)}, {v(a,2)}, {v(p0,2)}
            v_pk_fma_f32 {v(a,2)}, {v(a,2)}, {v(FR+8,2)}, {v(HX+4*q+2*h,2)} op_sel_hi:[1,0,1]
            v_cvt_pk_bf16_f32 v{OO+2*q+h}, v{a}, v{a+1}""".split("\n"):
                items.append(('op', ln))
        if q & 1:
            o = OO + 2 * (q - 1)
            for ln in f"""s_nop 1
            v_permlane32_swap_b32 v{o}, v{o+2}
            v_permlane32_swap_b32 v{o+1}, v{o+3}
            buffer_store_dwordx4 {v(o,4)}, v1, s[8:11], s29 offen offset:{32*(q>>1)}""".split("\n"):
                items.append(('op', ln))
    Sched().run(items, A)
    stamp_end(A)
    A("s_endpgm")


def gen_loader(A):
    A.label("LOADER")
    WD = 32
    gen_xu_store(A)
    if OPT.get("pf0", "late") == "late":
        A(f"""
        v_min_u32 v16, 55, v2
        s_mul_i32 s36, s3, {56*128}
        v_lshl_add_u32 v16, v16, 7, s36
        s_cmp_eq_u32 s22, 4
        s_cselect_b32 s34, s48, s50
        s_cselect_b32 s35, s49, s51
        s_cmp_ge_u32 s22, 6
        s_cselect_b32 s34, s52, s34
        s_cselect_b32 s35, s53, s35
        global_load_dword v31, v16, s[34:35]
        """)
    A("""
    s_waitcnt lgkmcnt(0)
    s_barrier                            ; Bc
    """)
    stamp(A, 6)
    A(f"""
    v_lshrrev_b32 v4, 5, v2              ; h
    v_lshrrev_b32 v9, 4, v2
    v_lshlrev_b32 v10, 2, v9
    v_and_b32 v11, 15, v2
    v_xor_b32 v10, v10, v11
    s_lshl_b32 s26, s23, 3
    v_add_u32 v9, s26, v9
    v_lshlrev_b32 v11, 8, v9
    v_lshl_add_u32 v11, v10, 4, v11
    v_mul_u32_u24 v12, 3584, v9
    v_lshl_add_u32 v12, v10, 4, v12
    s_lshl_b32 s26, s25, 8
    v_add_u32 v12, s26, v12
    v_add_u32 v13, {4*3584-1024}, v12
    s_lshl_b32 s27, s23, 11              ; q*2048
    s_mov_b32 s29, 0                     ; W soffset
    s_mul_i32 s30, s24, {HTB}
    s_add_u32 s30, s30, {WS_HT:#x}         ; h soffset
    v_and_b32 v14, 31, v2
    v_lshlrev_b32 v14, 4, v14
    v_mul_u32_u24 v15, {F*4}, v4
    v_add_u32 v14, v14, v15
    v_lshrrev_b32 v3, 3, v2
    v_and_b32 v5, 7, v2
    s_lshl_b32 s28, s23, 5
    v_add_u32 v6, s28, v3
    v_mul_u32_u24 v16, 896, v6
    v_lshl_add_u32 v16, v5, 4, v16
    s_lshl_b32 s28, s47, 7
    v_add_u32 v16, s28, v16
    v_bfe_u32 v7, v2, 4, 1
    v_lshlrev_b32 v7, 2, v7
    v_xor_b32 v7, v7, v5
    v_lshlrev_b32 v24, 7, v6
    v_lshl_add_u32 v24, v7, 4, v24
    v_add_u32 v25, 0x10000, v24
    v_add_u32 v26, 0x20000, v24
    s_lshl_b32 s28, s23, 4
    v_add_u32 v6, s28, v3
    v_lshlrev_b32 v18, 8, v6
    v_lshl_add_u32 v18, v7, 4, v18
    v_add_u32 v19, 1024, v18
    v_lshlrev_b32 v20, 2, v2
    s_lshr_b32 s38, s24, 1
    s_lshl_b32 s38, s38, 7
    s_and_b32 s28, s24, 1
    s_lshl_b32 s28, s28, 3
    s_add_u32 s38, s38, s28
    s_add_u32 s38, s38, s40
    s_add_u32 s38, s38, {WS_F3:#x}
    s_mul_i32 s35, s25, {128*896:#x}
    """)
    srd(A, 4, 48, 0, D * F * 2)
    srd(A, 8, 50, 0, D * F * 2)
    srd(A, 12, 52, 0, D * F * 2)
    V = VM(A)
    V.q = []

    def wdma(st):
        base = (st % G1_SLOTS) * G1_STAGE
        A(f"s_add_u32 m0, s27, {base+8192}")
        A("s_nop 0")
        V.op("buffer_load_dwordx4 v12, s[4:7], s29 offen lds", ("s", st))
        V.op("buffer_load_dwordx4 v13, s[4:7], s29 offen offset:1024 lds", ("s", st))
        A(f"s_add_u32 m0, s27, {base+16384}")
        A("s_nop 0")
        V.op("buffer_load_dwordx4 v12, s[8:11], s29 offen lds", ("s", st))
        V.op("buffer_load_dwordx4 v13, s[8:11], s29 offen offset:1024 lds", ("s", st))
        A(f"s_add_u32 s29, s29, {32*3584:#x}")

    def hdma(st):
        base = (st % G1_SLOTS) * G1_STAGE
        A(f"s_add_u32 m0, s27, {base}")
        A("s_nop 0")
        V.op("buffer_load_dwordx4 v11, s[60:63], s30 offen sc1 lds", ("s", st))
        V.op("buffer_load_dwordx4 v11, s[60:63], s30 offen offset:1024 sc1 lds", ("s", st))
        A("s_add_u32 s30, s30, 8192")

    wdn = [0]

    def wdload(n):
        for _ in range(n):
            i = wdn[0]
            V.op(f"buffer_load_dwordx4 {v(WD+4*i,4)}, v16, s[12:15], s35 offen", ("w", i // 4))
            if i % 4 != 3:
                A("s_add_u32 s35, s35, 7168")
            else:
                A(f"""
                s_add_u32 s35, s35, {128*896 - 3*7168:#x}
                s_cmp_eq_u32 s35, {14*128*896:#x}
                s_cselect_b32 s35, 0, s35
                """)
            wdn[0] += 1

    def wdwrite(st):
        off = (st % 9) * 16384
        for i in range(4):
            A(f"ds_write_b128 v{24 + (off >> 16)}, {v(WD+16*st+4*i,4)} offset:{(off & 0xffff) + 1024*i}")

    W0 = int(OPT.get("w0", 2))
    for st in range(W0):
        wdma(st)
    wdload(int(OPT.get("n0", 20)))
    stamp(A, 7)
    A("s_barrier                            ; BH")
    stamp(A, 8)
    V.wait(("s", 3), ("w", 1))
    for st in range(W0, 6):
        wdma(st)
    wdload(int(OPT.get("n1", 0)))
    A("s_barrier                            ; BS")
    stamp(A, 9)
    A(f"s_setprio {OPT.get('prio3', 1)}")
    for st in range(6):
        hdma(st)
    V.wait(("s", 0))
    A("s_barrier                            ; B0")
    stamp(A, 10)
    WSCH = [int(x) for x in OPT.get("wsch", "0.8.0.0.0.6.12.10").split(".")]
    wdload(min(WSCH[0], 56 - wdn[0]))
    V.wait(("s", 1), ("s", 2))
    def xloads(op):
        A(f"""
        s_lshl_b32 s26, s25, 9
        s_add_u32 s26, s26, {WS_CS:#x}
        s_mov_b32 m0, {G1_X}
        s_lshl_b32 s28, s24, 9
        """)
        op("buffer_load_dwordx4 v14, s[60:63], s26 offen sc1 lds", "x")
        A(f"""
        s_and_b32 s26, s23, 1
        s_lshl_b32 s26, s26, 8
        s_add_u32 s28, s28, s26
        s_add_u32 s28, s28, {WS_MEAN:#x}
        s_add_u32 m0, s26, {G1_X+1024}
        s_lshl_b32 s31, s24, 1
        """)
        op("buffer_load_dword v20, s[60:63], s28 offen sc1 lds", "x")
        A(f"""
        s_add_u32 s31, s31, s46
        s_lshl_b32 s31, s31, 8
        s_add_u32 s31, s31, {WS_R2:#x}
        s_mov_b32 m0, {P4_X+8192}
        s_mul_i32 s34, s24, {HTB}
        """)
        op("buffer_load_dword v20, s[60:63], s31 offen sc1 lds", "x")
        A(f"""
        s_lshl_b32 s28, s46, 7
        s_add_u32 s34, s34, s28
        s_lshl_b32 s28, s47, 14
        s_add_u32 s34, s34, s28
        s_add_u32 s34, s34, {WS_HT:#x}
        s_add_u32 m0, s27, {P4_X}
        s_nop 0
        """)
        op("buffer_load_dwordx4 v18, s[60:63], s34 offen sc1 lds", "x")
        op("buffer_load_dwordx4 v19, s[60:63], s34 offen offset:1024 sc1 lds", "x")

    nxt = 6
    for b in range(1, 8):
        A(f"s_barrier                            ; B{b}")
        if "p3st" in OPT and b in (2, 4, 5, 6, 7): stamp(A, {2: 14, 4: 15, 5: 16, 6: 17, 7: 18}[b])
        while nxt < 14 and nxt <= 2 * b + 4:
            hdma(nxt); wdma(nxt); nxt += 1
        if b == 5:
            wdload(min(WSCH[b], 56 - wdn[0]))
            V.wait("f3")
            A("v_xor_b32 v28, s42, v28\nv_xor_b32 v29, s42, v29\nv_or_b32 v28, v28, v29\nv_cmp_eq_u32 vcc, 0, v28\ns_nop 3\ns_cmp_eq_u64 vcc, exec")
            A("s_cselect_b32 s39, 1, 0")
            A("s_cbranch_scc0 L_x1")
            xloads(lambda text, tag: A(text))
            A.label("L_x1")
        if b == 6:
            A("s_cmp_eq_u32 s39, 1")
            A("s_cbranch_scc1 L_x2")
            poll(A, "L_f3", "buffer_load_dwordx2 v[28:29], off, s[60:63], s38 sc1", "v_xor_b32 v28, s42, v28\nv_xor_b32 v29, s42, v29\nv_or_b32 v28, v28, v29\nv_cmp_eq_u32 vcc, 0, v28\ns_nop 3\ns_cmp_eq_u64 vcc, exec")
            xloads(lambda text, tag: A(text))
            A.label("L_x2")
            V.q.append("x")
        if b != 5:
            wdload(min(WSCH[b], 56 - wdn[0]))
        if b < 6:
            V.wait(("s", 2 * b + 1), ("s", 2 * b + 2))
        if b == 4:
            V.op("buffer_load_dwordx2 v[28:29], off, s[60:63], s38 sc1", "f3")
        if b == 6:
            V.wait("x")
    stamp(A, 11)
    A("s_setprio 0")
    A("s_barrier                            ; B8")
    assert wdn[0] == 56
    for st in range(9):
        V.wait(("w", st))
        wdwrite(st)
    V.drain("lgkmcnt(0)")
    A("s_barrier                            ; BX")
    stamp(A, 12)
    A("s_barrier                            ; BY")
    for st in range(9, 14):
        wdwrite(st)
    A("s_waitcnt lgkmcnt(0)")
    A("s_barrier                            ; BZ")
    stamp(A, 13)
    if "hapf" in OPT:
        A(f"""
        v_subrev_u32 v3, 256, v0
        s_lshl_b32 s28, s47, 8
        v_add_u32 v3, s28, v3                ; 0..1791
        v_and_b32 v5, 1, v3
        v_mul_u32_u24 v5, {HAT}, v5
        v_lshrrev_b32 v3, 1, v3
        v_lshl_add_u32 v3, v3, 7, v5
        s_lshl_b32 s28, s24, 1
        s_add_u32 s28, s28, s46
        s_mul_i32 s28, s28, {2*HAT}
        s_add_u32 s28, s28, {WS_HA:#x}
        buffer_load_dword v5, v3, s[60:63], s28 offen sc1
        """)
    A("s_barrier                            ; BR")
    A("s_barrier                            ; BE")
    stamp_end(A)
    A("s_endpgm")


def main(path):
    ref = open(f"cdna_kernels/{NAME}.s.ref").read().split("\n")
    head = [l for l in ref if l.startswith(";") and "@launch" not in l]
    A = Asm()
    for l in head:
        A.raw(l)
    A.raw(f"; @launch grid=({GRID},1,1) block=(512,1,1) lds={LDS}")
    A.raw('.amdgcn_target "amdgcn-amd-amdhsa--gfx950"')
    A.raw(".text")
    A.raw(f".globl {KNAME}")
    A.raw(".p2align 8")
    A.raw(f".type {KNAME},@function")
    A.label(KNAME)
    A(f"""
    s_cmp_ge_u32 s2, {GRID}
    s_cbranch_scc1 EXIT
    s_load_dwordx16 s[4:19], s[0:1], {KA['A_re']}
    s_load_dwordx2 s[44:45], s[0:1], {KA['x']}
    s_load_dwordx8 s[48:55], s[0:1], {KA['Wg']}
    s_load_dwordx4 s[64:67], s[0:1], {KA['dbg']}
    s_getpc_b64 s[58:59]
    """)
    A.label("PC0")
    A(f"""
    s_lshr_b32 s22, s2, 3
    s_mul_i32 s22, s22, {NPF*128}
    v_subrev_u32 v1, 448, v0
    v_cmp_gt_u32 vcc, {NPF}, v1
    v_lshl_add_u32 v1, v1, 7, s22
    v_min_u32 v1, TABLE_END-PC0-4, v1
    s_and_saveexec_b64 s[24:25], vcc
    s_cbranch_execz PF_skip
    global_load_dword v127, v1, s[58:59]
    """)
    A.label("PF_skip")
    A(f"""
    s_mov_b64 exec, s[24:25]
    v_lshrrev_b32 v1, 6, v0
    v_and_b32 v2, 63, v0                 ; lane
    s_nop 0
    v_readfirstlane_b32 s22, v1          ; wave
    """)
    stamp_begin(A)
    A(f"""
    s_waitcnt lgkmcnt(0)
    s_and_b32 s23, s22, 3
    s_mov_b32 s20, s66
    s_mov_b32 s21, s67
    s_mov_b32 s60, s66
    s_mov_b32 s61, s67
    s_mov_b32 s62, {WS_USED:#x}
    s_mov_b32 s63, 0x00020000
    """)
    gen_p0_loads(A)
    A(f"""
    s_cmp_lt_u32 s2, {NAUX}
    s_cbranch_scc1 AUX
    """)
    gen_phase1(A)
    A("""
    s_cmp_ge_u32 s22, 4
    s_cbranch_scc1 LOADER
    """)
    gen_consumer(A)
    gen_loader(A)
    gen_aux(A)
    A.label("EXIT")
    A("s_endpgm")
    A.label("CODE_END")
    kg_table(A)
    A.raw(f""".section .rodata,"a"
.p2align 6
.amdhsa_kernel {KNAME}
  .amdhsa_next_free_vgpr 256
  .amdhsa_next_free_sgpr 100
  .amdhsa_accum_offset 256
  .amdhsa_group_segment_fixed_size 0
  .amdhsa_kernarg_size 128
  .amdhsa_user_sgpr_count 2
  .amdhsa_user_sgpr_kernarg_segment_ptr 1
  .amdhsa_system_sgpr_workgroup_id_x 1
.end_amdhsa_kernel
""")
    open(path, "w").write(A.text())


if __name__ == "__main__":
    main(sys.argv[1] if len(sys.argv) > 1 else f"km.s")
```
